```python
import torch

def _softmax(x, axis=-1):
    return torch.softmax(x, dim=axis)
def _gelu(x):
    return torch.nn.functional.gelu(x, approximate="tanh")
def _silu(x):
    return torch.nn.functional.silu(x)
def _sigmoid(x):
    return torch.sigmoid(x)
def _layernorm(x, axis=-1, eps=1e-5):
    m = x.mean(dim=axis, keepdim=True)
    v = x.var(dim=axis, keepdim=True, unbiased=False)
    return (x - m) / torch.sqrt(v + eps)
def _scatter_add(tgt, idx, src, axis=0):
    return tgt.clone().index_add_(axis, idx, src)
def _segment_sum(src, seg, n):
    out = torch.zeros((n,) + src.shape[1:], dtype=src.dtype)
    return out.index_add_(0, seg, src)
def _pad(x, pw):
    flat = tuple(v for pair in reversed(pw) for v in pair)
    return torch.nn.functional.pad(x, flat)

kernel_name = 'concat_heads__linear_kernel_hedgehog__linear_kernel_hedgehog__prompt'

def setup_inputs():

    _w = (lambda a: (lambda t: t.to(torch.bfloat16) if t.is_floating_point() else t)(torch.as_tensor(a)))
    def _A_setup():
        B, S, D, H = 1, 2048, 1024, 32
        Dh = D // H
        return {
            "x": _w((lambda *s: torch.randn(*s, dtype=torch.bfloat16) * 0.4)(B, S, D)),
            "wqkv": _w((lambda *s: torch.randn(*s, dtype=torch.bfloat16) * 0.4)(D, 3 * D)),
            "w_phi": _w((lambda *s: torch.randn(*s, dtype=torch.bfloat16) * 0.4)(H, Dh, Dh) * (Dh ** -0.5)),
            "wo": _w((lambda *s: torch.randn(*s, dtype=torch.bfloat16) * 0.05)(D, D)),
        }
    _A_in = _A_setup()

    def _B_setup():
        B, S, D, H = 1, 2048, 1024, 32
        Dh = D // H
        return {
            "x": _w((lambda *s: torch.randn(*s, dtype=torch.bfloat16) * 0.4)(B, S, D)),
            "wqkv": _w((lambda *s: torch.randn(*s, dtype=torch.bfloat16) * 0.4)(D, 3 * D)),
            "w_phi": _w((lambda *s: torch.randn(*s, dtype=torch.bfloat16) * 0.4)(H, Dh, Dh) * (Dh ** -0.5)),
            "wo": _w((lambda *s: torch.randn(*s, dtype=torch.bfloat16) * 0.05)(D, D)),
        }
    _B_in = _B_setup()

    return {
        "A_x": _A_in["x"],
        "A_wqkv": _A_in["wqkv"],
        "A_w_phi": _A_in["w_phi"],
        "A_wo": _A_in["wo"],
        "B_x": _B_in["x"],
        "B_wqkv": _B_in["wqkv"],
        "B_w_phi": _B_in["w_phi"],
        "B_wo": _B_in["wo"],
    }

def reference(A_x, A_wqkv, A_w_phi, A_wo, B_x, B_wqkv, B_w_phi, B_wo):
    def _A_ref(x, wqkv, w_phi, wo):
        B, S, D = x.shape
        H = 32; Dh = D // H
        qkv = (lambda x, *d: x.permute(*d))((x @ wqkv).reshape(B, S, 3, H, Dh), 2, 0, 3, 1, 4)
        q, k, v = qkv[0], qkv[1], qkv[2]
        pq = torch.einsum("bhsd,hdf->bhsf", q, w_phi)
        pk = torch.einsum("bhsd,hdf->bhsf", k, w_phi)
        phi_q = torch.concatenate([_softmax(pq, axis=-1), _softmax(-pq, axis=-1)], axis=-1)
        phi_k = torch.concatenate([_softmax(pk, axis=-1), _softmax(-pk, axis=-1)], axis=-1)
        kv = torch.einsum("bhsf,bhsd->bhfd", phi_k, v)
        z  = torch.einsum("bhsf->bhf", phi_k)
        num = torch.einsum("bhqf,bhfd->bhqd", phi_q, kv)
        den = torch.einsum("bhqf,bhf->bhq", phi_q, z)[..., None] + 1e-6
        o = num / den
        return (lambda x, *d: x.permute(*d))(o, 0, 2, 1, 3).reshape(B, S, D) @ wo

    def _B_ref(x, wqkv, w_phi, wo):
        B, S, D = x.shape
        H = 32; Dh = D // H
        qkv = (lambda x, *d: x.permute(*d))((x @ wqkv).reshape(B, S, 3, H, Dh), 2, 0, 3, 1, 4)
        q, k, v = qkv[0], qkv[1], qkv[2]
        pq = torch.einsum("bhsd,hdf->bhsf", q, w_phi)
        pk = torch.einsum("bhsd,hdf->bhsf", k, w_phi)
        phi_q = torch.concatenate([_softmax(pq, axis=-1), _softmax(-pq, axis=-1)], axis=-1)
        phi_k = torch.concatenate([_softmax(pk, axis=-1), _softmax(-pk, axis=-1)], axis=-1)
        kv = torch.einsum("bhsf,bhsd->bhfd", phi_k, v)
        z  = torch.einsum("bhsf->bhf", phi_k)
        num = torch.einsum("bhqf,bhfd->bhqd", phi_q, kv)
        den = torch.einsum("bhqf,bhf->bhq", phi_q, z)[..., None] + 1e-6
        o = num / den
        return (lambda x, *d: x.permute(*d))(o, 0, 2, 1, 3).reshape(B, S, D) @ wo

    a = _A_ref(A_x, A_wqkv, A_w_phi, A_wo)
    b = _B_ref(B_x, B_wqkv, B_w_phi, B_wo)
    return torch.concatenate([a, b], axis=-1)
```

```python
import re, subprocess, os, tempfile
MC = "llvm-mc"

REG_RE = re.compile(r"(?<![\w.])([vas])(?:(\d+)\b|\[(\d+):(\d+)\])")
TRANS = ("v_exp_", "v_log_", "v_rcp_", "v_rsq_", "v_sqrt_", "v_sin_", "v_cos_")

def regs_of(tok):
    out = set()
    for m in REG_RE.finditer(tok):
        k = m.group(1)
        if m.group(2) is not None:
            out.add((k, int(m.group(2))))
        else:
            for i in range(int(m.group(3)), int(m.group(4)) + 1):
                out.add((k, i))
    for name in ("vcc", "m0", "exec"):
        if re.search(r"(?<![\w])" + name + r"(?![\w])", tok) or re.search(r"(?<![\w])" + name + r"_(lo|hi)", tok):
            out.add((name, 0))
    return out

def split_ops(s):
    ops, depth, cur = [], 0, ""
    for ch in s:
        if ch in "[(": depth += 1
        if ch in "])": depth -= 1
        if ch == "," and depth == 0:
            ops.append(cur.strip()); cur = ""
        else:
            cur += ch
    if cur.strip(): ops.append(cur.strip())
    return ops

class Ins:
    __slots__ = ("text", "op", "kind", "wr", "rd", "srcC", "srcAB", "passes", "trans", "size", "stdata", "nopn", "ldsdma")
    def __init__(self, text):
        self.text = text
        t = text.split(";")[0].strip()
        self.size = None
        if t.endswith(":") or t.startswith(".") or not t:
            self.op = None; self.kind = "meta"; return
        parts = t.split(None, 1)
        op = parts[0]; self.op = op
        ops = split_ops(parts[1]) if len(parts) > 1 else []
        self.wr = set(); self.rd = set(); self.srcC = set(); self.srcAB = set(); self.passes = 0
        self.trans = op.startswith(TRANS); self.stdata = set(); self.nopn = 0; self.ldsdma = False
        R = [regs_of(o) for o in ops]
        if op.startswith("v_mfma"):
            self.kind = "mfma"
            self.wr = R[0]; self.srcAB = R[1] | R[2]; self.srcC = R[3]
            self.rd = self.srcAB | self.srcC
            self.passes = 8 if "32x32" in op else 4
        elif op.startswith("v_cmp"):
            self.kind = "valu"; self.wr = set(R[0]); self.rd = set().union(*R[1:]) if len(R) > 1 else set()
            if op.startswith("v_cmpx"): self.wr.add(("exec", 0))
        elif op.startswith("v_"):
            self.kind = "valu"
            self.wr = set(R[0]); self.rd = set().union(*R[1:]) if len(R) > 1 else set()
            if op.startswith(("v_fmac", "v_dot2c", "v_pk_fmac")): self.rd |= R[0]
            if op.startswith("v_permlane32_swap") or op.startswith("v_permlane16_swap"):
                self.wr |= R[1]; self.rd |= R[0]
            if op.startswith(("v_add_co", "v_sub_co", "v_addc_co", "v_subb_co", "v_subrev_co")):
                self.wr |= R[1]; self.rd = set().union(*R[2:])
            if op.startswith("v_writelane"): self.rd |= R[0]
            if op.startswith("v_cndmask") and len(ops) == 3: self.rd.add(("vcc", 0))
        elif op.startswith("ds_read") or op.startswith("ds_bpermute") or op.startswith("ds_swizzle"):
            self.kind = "ds"; self.wr = R[0]; self.rd = set().union(*R[1:])
        elif op.startswith("ds_"):
            self.kind = "ds"; self.rd = set().union(*R)
        elif op.startswith(("buffer_load", "global_load")):
            self.kind = "vmem"
            if re.search(r"\blds\b", t):
                self.ldsdma = True; self.rd = set().union(*R) | {("m0", 0)}
            else:
                self.wr = R[0]; self.rd = set().union(*R[1:])
        elif op.startswith(("buffer_store", "buffer_atomic")):
            self.kind = "vmem"; self.rd = set().union(*R)
            if "x4" in op or "x3" in op: self.stdata = R[0]
            if op.startswith("buffer_atomic") and re.search(r"\bsc0\b", t): self.wr = R[0]
        elif op.startswith(("global_store", "global_atomic")):
            self.kind = "vmem"; self.rd = set().union(*R)
            if "x4" in op or "x3" in op: self.stdata = R[1]
        elif op.startswith(("buffer_inv", "buffer_wbl2")):
            self.kind = "vmem"
        elif op.startswith(("s_load", "s_buffer_load", "s_memtime", "s_memrealtime")):
            self.kind = "smem"; self.wr = R[0]; self.rd = set().union(*R[1:]) if len(R) > 1 else set()
        elif op == "s_nop":
            self.kind = "salu"; self.nopn = int(ops[0], 0)
        elif op.startswith(("s_cbranch", "s_branch", "s_endpgm", "s_setpc", "s_swappc")):
            self.kind = "branch"; self.rd = set().union(*R) if R else set()
        elif op.startswith(("s_waitcnt", "s_barrier", "s_sleep", "s_setprio", "s_cmp", "s_bitcmp")):
            self.kind = "salu"; self.rd = set().union(*R) if R else set()
        elif op.startswith("s_"):
            self.kind = "salu"; self.wr = set(R[0]) if R else set(); self.rd = set().union(*R[1:]) if len(R) > 1 else set()
            if "saveexec" in op: self.wr.add(("exec", 0)); self.rd.add(("exec", 0))
        else:
            raise ValueError("unknown instr: " + text)

def isv(r): return r[0] in ("v", "a")
def iss(r): return r[0] in ("s", "vcc")

def need_states(p, c):
    n = 0
    if p.kind == "valu":
        wv = {r for r in p.wr if isv(r)}
        ws = {r for r in p.wr if iss(r)}
        if c.kind == "mfma" and wv & c.rd: n = max(n, 2)
        if c.kind == "valu":
            if c.op.startswith("v_permlane") and wv & c.rd: n = max(n, 2)
            if ("dpp" in c.text or "row_" in c.text or "quad_perm" in c.text) and wv & c.rd: n = max(n, 2)
            if c.op.startswith(("v_readlane", "v_readfirstlane")) and wv & c.rd: n = max(n, 1)
            if ws & c.rd: n = max(n, 4 if c.op.startswith(("v_readlane", "v_writelane")) else 2)
            if p.trans and not c.trans and (wv & c.rd): n = max(n, 1)
            if ("exec", 0) in p.wr: n = max(n, 5)
        if c.kind == "mfma" and ("exec", 0) in p.wr: n = max(n, 4)
        if c.kind in ("vmem",) and ws & c.rd: n = max(n, 5)
        if c.kind in ("salu", "branch", "smem") and ws & c.rd: n = max(n, 4)
        if p.trans and c.kind in ("mfma", "vmem", "ds") and wv & c.rd: n = max(n, 2 if c.kind == "mfma" else 1)
    if p.kind == "mfma":
        P = p.passes
        if c.kind == "mfma":
            if p.wr & c.srcAB: n = max(n, {4: 8, 8: 12}[P])
            if p.wr & c.srcC:
                if not (p.wr == c.srcC and p.passes == c.passes): n = max(n, {4: 6, 8: 10}[P])
            elif p.wr & c.wr: n = max(n, {4: 8, 8: 12}[P])
        elif c.kind in ("valu", "vmem", "ds"):
            if p.wr & (c.rd | c.wr): n = max(n, {4: 8, 8: 12}[P])
            if c.kind == "valu" and p.srcC & c.wr: n = max(n, {4: 3, 8: 7}[P])
    if p.kind == "salu" and ("m0", 0) in p.wr and c.kind == "vmem" and c.ldsdma: n = max(n, 1)
    if p.kind == "vmem" and p.stdata:
        if p.stdata & c.wr: n = max(n, 2)
    return n

MAXLOOK = 20
def fix_hazards(ins, verbose=False):
    out = []
    added = 0
    for c in ins:
        if c.kind == "meta":
            out.append(c); continue
        dist = 0; need = 0
        for p in reversed(out):
            if p.kind == "meta": continue
            k = need_states(p, c)
            if k > dist: need = max(need, k - dist)
            dist += 1 + (p.nopn if p.op == "s_nop" else 0)
            if dist >= MAXLOOK: break
        if need:
            added += need
            if verbose: print(f"hazard: +{need} before: {c.text}")
            while need > 0:
                k = min(need, 16)
                out.append(Ins(f"s_nop {k-1}")); need -= k
        out.append(c)
    return out, added

def sizes(ins):
    txt = '.amdgcn_target "amdgcn-amd-amdhsa--gfx950"\n.text\n' + "\n".join(i.text for i in ins) + "\n"
    with tempfile.NamedTemporaryFile("w", suffix=".s", delete=False) as f:
        f.write(txt); name = f.name
    r = subprocess.run([MC, "-triple=amdgcn-amd-amdhsa", "-mcpu=gfx950", "-show-encoding", name], capture_output=True, text=True)
    os.unlink(name)
    if r.returncode != 0:
        print(r.stderr[:4000]); raise SystemExit("assembly failed")
    encs = [l for l in r.stdout.splitlines() if "; encoding:" in l]
    real = [i for i in ins if i.kind != "meta"]
    assert len(encs) == len(real), (len(encs), len(real))
    for i, l in zip(real, encs):
        e = l.split("encoding:")[1]
        i.size = e.count(",") + 1
        i.op_enc = l.split()[0] if False else None

def promotable(i):
    if i.kind != "valu" or i.size != 4: return False
    if i.op.endswith("_e32") or i.op.startswith(("v_readfirstlane", "v_permlane", "v_accvgpr", "v_nop", "v_dot2c", "v_cmpx")): return False
    if "dpp" in i.text or "sdwa" in i.text: return False
    return True

def fix_align(ins):
    class X: pass
    sizes_ok(ins)
    out = []; off = 0; pads = 0; promos = 0
    last4 = None
    for i in ins:
        if i.kind == "meta":
            t = i.text.strip()
            m = re.match(r"\.p2align\s+(\d+)", t)
            if m:
                a = 1 << int(m.group(1)); off = (off + a - 1) // a * a; last4 = None
            out.append(i); continue
        if i.size >= 8 and off % 8 == 4:
            if last4 is not None:
                p = out[last4]
                q = Ins(p.op + "_e64" + p.text[p.text.index(p.op) + len(p.op):]); q.size = 8
                out[last4] = q; promos += 1
            else:
                n = Ins("s_nop 0"); n.size = 4; out.append(n); pads += 1
            off += 4; last4 = None
        out.append(i)
        if i.size == 4:
            if off % 8 == 0:
                last4 = len(out) - 1 if promotable(i) else None
            else:
                last4 = None
        else:
            last4 = None
        off += i.size
    return out, pads, promos, off

def sizes_ok(ins):
    txt = '.amdgcn_target "amdgcn-amd-amdhsa--gfx950"\n.text\n' + "\n".join(i.text for i in ins) + "\n"
    with tempfile.NamedTemporaryFile("w", suffix=".s", delete=False) as f:
        f.write(txt); name = f.name
    r = subprocess.run([MC, "-triple=amdgcn-amd-amdhsa", "-mcpu=gfx950", "-show-encoding", name], capture_output=True, text=True)
    os.unlink(name)
    if r.returncode != 0:
        print(r.stderr[:4000]); raise SystemExit("assembly failed")
    encs = [l for l in r.stdout.splitlines() if "; encoding:" in l]
    real = [i for i in ins if i.kind != "meta"]
    assert len(encs) == len(real), (len(encs), len(real))
    for i, l in zip(real, encs):
        e = l.split("encoding:")[1]
        i.size = e.count(",") + 1

class Asm:
    def __init__(self):
        self.lines = []
    def __call__(self, s):
        for l in s.split("\n"):
            l = l.strip()
            if l: self.lines.append(l)
    def finish(self, verbose=False, align=True):
        ins = [Ins(l) for l in self.lines]
        ins, added = fix_hazards(ins, verbose)
        pads = promos = 0; size = None
        if align:
            ins, pads, promos, size = fix_align(ins)
        info = dict(hazard_nops=added, pads=pads, promos=promos, bytes=size)
        txt = "\n".join((i.text if (i.kind == "meta" and i.text.endswith(":")) else "    " + i.text) for i in ins)
        return txt, info
```

```python
import sys, json
from asmlib import Asm
KNAME = "concat_heads__linear_kernel_hedgehog__linear_kernel_hedgehog__prompt_kernel"

WS_KV   = 0x000000
WS_Z    = 0x200000
WS_F1   = 0x220000
WS_F2   = 0x230000
WS_O    = 0x400000
WS_DIAG = 0x1000000
WS_DUMP = 0x2000000
WS_SIZE = 0x10000000

XS = [0, 32768, 65536]
WB = 98304
PHI = 159744
LDS_BYTES = 163840
TSTR = 136
X1_OFF, X1Z_OFF, X2_OFF = 0, 4096, 5120

S_PTR = 4
SRD_X, SRD_W, SRD_WO, SRD_WS, SRD_OUT, SRD_DBG, SRD_T = 12, 16, 20, 24, 28, 32, 36
S_P2 = 40
S_HEAD, S_SPIN = 46, 47
S_XCD, S_J, S_B, S_R, S_C, S_W, S_RH, S_HH = 48, 49, 50, 51, 52, 53, 54, 55
S_KX, S_KW, S_MX, S_MW = 56, 57, 58, 59
S_T0, S_T1, S_T2, S_T3 = 60, 61, 62, 63
S_L2E = 64
S_NON = 44
S_STAMP = 70

ACC = [0, 64, 128]
V_XD, V_WD, V_XA, V_WA, V_LANE = 192, 200, 203, 207, 209
V_CNT = 210
V_PHI, V_ONE, V_ID = 212, 220, 224
V_T = 232
V_ST = 240
A_W, A_X = 0, 96
A_T, A_KVX, A_ZX = 128, 160, 176
MF16, MF32 = "v_mfma_f32_16x16x32_bf16", "v_mfma_f32_32x32x16_bf16"
SPIN_MAX = 1 << 16

def srd(i): return f"s[{i}:{i+3}]"
def vr(i, n): return f"v[{i}:{i+n-1}]"
def ar(i, n): return f"a[{i}:{i+n-1}]"

class Gen:
    def __init__(self, opt):
        self.o = opt
        self.A = Asm()
        self.nstamp = 0
        self.stamp_names = []
        self.vm = []
        self.nlab = 0
        self.vm_done = []
    def stamp(self, name):
        if not self.o.get("diag"): return
        if name in self.o.get("nostamp", ("kernarg", "step7", "r1")): return
        s = S_STAMP + 2 * self.nstamp
        assert s + 1 <= 101
        self.A(f"s_memtime s[{s}:{s+1}]")
        self.nstamp += 1; self.stamp_names.append(name)
    def em(self, x):
        if isinstance(x, str): self.A(x)
        elif x[0] == "vm": self.A(x[2]); self.vm.append(x[1])
        elif x[0] == "wait": self.A(f"s_waitcnt vmcnt({self.vmn(x[1])}){x[2]}")
        elif x[0] == "call": x[1]()
        else: raise ValueError(x)
    def vmn(self, tags):
        for t in tags: assert t in self.vm or t in self.vm_done, t
        idx = [i for i, t in enumerate(self.vm) if t in tags]
        if not idx: return 63
        n = len(self.vm) - 1 - max(idx)
        assert n <= 63
        return n
    def label(self, p):
        self.nlab += 1
        return f"L_{p}{self.nlab}"

    def prologue(self):
        A = self.A; o = self.o; em = self.em
        A(f"s_cmp_ge_u32 s2, 256\ns_cbranch_scc1 L_END")
        if o.get("diag"): A("s_memrealtime s[66:67]")
        self.stamp("start")
        A(f"s_lshl_b32 s3, s2, 3\ns_and_b32 s3, s3, 32")
        A(f"s_load_dwordx8 s[{S_PTR}:{S_PTR+7}], s[0:1], s3")
        A(f"s_load_dwordx4 s[{S_P2}:{S_P2+3}], s[0:1], 64")
        A(f"s_load_dwordx2 s[{S_P2+4}:{S_P2+5}], s[0:1], 80")
        A(f"s_getpc_b64 s[{SRD_T}:{SRD_T+1}]")
        A("L_PC:")
        A(f"v_lshrrev_b32 v1, 6, v0\nv_and_b32 v{V_LANE}, 63, v0")
        A(f"s_and_b32 s{S_XCD}, s2, 7\ns_lshr_b32 s{S_J}, s2, 3")
        A(f"v_readfirstlane_b32 s{S_W}, v1")
        A(f"s_lshr_b32 s{S_B}, s{S_XCD}, 2\ns_and_b32 s{S_R}, s{S_J}, 7")
        A(f"s_and_b32 s{S_C}, s{S_XCD}, 3\ns_lshl_b32 s{S_C}, s{S_C}, 2\ns_lshr_b32 s3, s{S_J}, 3\ns_add_u32 s{S_C}, s{S_C}, s3")
        L = f"v{V_LANE}"; t0, t1, t2 = f"v{V_T}", f"v{V_T+1}", f"v{V_T+2}"
        A(f"s_lshr_b32 s{S_RH}, s{S_W}, 1\ns_and_b32 s{S_HH}, s{S_W}, 1")
        A(f"v_bfe_u32 {t0}, {L}, 2, 3\ns_lshl_b32 s3, s{S_W}, 3\nv_add_u32 {t0}, s3, {t0}")
        A(f"v_mul_u32_u24 {t0}, 6144, {t0}")
        A(f"v_lshrrev_b32 {t1}, 5, {L}\nv_lshl_add_u32 {t0}, {t1}, 6, {t0}")
        A(f"s_lshl_b32 s3, s{S_HH}, 1\nv_and_b32 {t1}, 3, {L}\nv_xor_b32 {t1}, s3, {t1}\nv_lshl_add_u32 v{V_WD}, {t1}, 4, {t0}")
        A(f"v_add_u32 v{V_WD+1}, 1024, v{V_WD}\nv_add_u32 v{V_WD+2}, 2048, v{V_WD}")
        A(f"v_lshrrev_b32 {t0}, 3, {L}\ns_lshl_b32 s3, s{S_W}, 6\nv_add_u32 {t0}, s3, {t0}\nv_lshlrev_b32 {t0}, 11, {t0}")
        A(f"v_lshrrev_b32 {t1}, 4, {L}\nv_and_b32 {t2}, 7, {L}\nv_xor_b32 {t1}, {t1}, {t2}")
        A(f"v_lshl_add_u32 v{V_XD}, {t1}, 4, {t0}")
        A(f"v_xor_b32 v{V_XD+1}, 64, v{V_XD}\nv_add_u32 v{V_XD+1}, {16384-1024}, v{V_XD+1}")
        for j in range(2, 8):
            d = 16384 * 2 - (2048 if j % 4 >= 2 else -2048)
            A(f"v_add_u32 v{V_XD+j}, {d}, v{V_XD+j-2}")
        A(f"s_lshl_b32 s{S_MX}, s{S_W}, 13")
        A(f"s_mul_i32 s{S_MW}, s{S_W}, 3072\ns_add_u32 s{S_MW}, s{S_MW}, {WB}")
        A(f"s_mov_b32 s{S_KX}, 0\ns_mov_b32 s{S_KW}, 0")
        A(f"s_lshl_b32 s{S_T0}, s{S_R}, 19\ns_lshl_b32 s{S_T1}, s{S_C}, 7")
        A(f"s_mov_b32 s{SRD_X+2}, 0x80000\ns_mov_b32 s{SRD_X+3}, 0x20000")
        A(f"s_sub_u32 s{SRD_W+2}, 0x600000, s{S_T1}\ns_mov_b32 s{SRD_W+3}, 0x20000")
        A("s_waitcnt lgkmcnt(0)")
        A(f"s_add_u32 s{SRD_W}, s{S_PTR+2}, s{S_T1}\ns_addc_u32 s{SRD_W+1}, s{S_PTR+3}, 0")
        A(f"s_add_u32 s{SRD_X}, s{S_PTR}, s{S_T0}\ns_addc_u32 s{SRD_X+1}, s{S_PTR+1}, 0")
        self.stamp("kernarg")
        for g in [("w", 0), ("x", 0), ("w", 1)]:
            for ins in self.dma_group(*g): em(ins)
        if o.get("codepf", 1):
            A(f"s_mov_b32 s{SRD_T+2}, L_END-L_PC\ns_mov_b32 s{SRD_T+3}, 0x20000")
            A(f"v_lshlrev_b32 {t0}, 7, v0")
            n = o.get("codepf_n", 2)
            for i in range(n):
                em(("vm", "pf", f"buffer_load_dword v{V_T+4+i}, {t0}, {srd(SRD_T)}, 0 offen"))
                if i + 1 < n: A(f"v_add_u32 {t0}, 0x8000, {t0}")
        for base, p, n in ((SRD_WS, S_P2 + 4, WS_SIZE), (SRD_OUT, S_P2, 0x800000), (SRD_DBG, S_P2 + 2, 256), (SRD_WO, S_PTR + 6, 0x200000)):
            A(f"s_mov_b32 s{base}, s{p}\ns_mov_b32 s{base+1}, s{p+1}\ns_mov_b32 s{base+2}, {n}\ns_mov_b32 s{base+3}, 0x20000")
        A(f"s_lshl_b32 s{S_HEAD}, s{S_C}, 1\ns_add_u32 s{S_HEAD}, s{S_HEAD}, s{S_HH}")
        lab = self.label("non")
        A(f"s_or_b32 s3, s2, s{S_W}\ns_cmp_lg_u32 s3, 0\ns_cbranch_scc1 {lab}")
        A(f"s_memrealtime s[{S_T2}:{S_T3}]\ns_waitcnt lgkmcnt(0)\ns_or_b32 s{S_T2}, s{S_T2}, 1")
        A(f"v_mov_b32 v{V_CNT}, s{S_T2}\nv_mov_b32 v{V_CNT+1}, s{S_T3}\ns_mov_b64 exec, 1")
        A(f"buffer_store_dwordx2 {vr(V_CNT,2)}, off, {srd(SRD_DBG)}, 0 sc1")
        A(f"s_mov_b64 exec, -1\n{lab}:")
        A(f"s_mov_b32 s{SRD_T}, s{S_PTR+4}\ns_mov_b32 s{SRD_T+1}, s{S_PTR+5}\ns_mov_b32 s{SRD_T+2}, 0x10000\ns_mov_b32 s{SRD_T+3}, 0x20000")
        A(f"s_lshl_b32 s{S_T0}, s{S_C}, 12\nv_lshlrev_b32 {t0}, 4, v0")
        A(f"s_lshl_b32 s3, s{S_W}, 10\ns_add_u32 m0, s3, {PHI}")
        em(("vm", "phi", f"buffer_load_dwordx4 {t0}, {srd(SRD_T)}, s{S_T0} offen lds"))
        pre = o.get("pre", [("x", 1), ("w", 2), ("w", 3)])
        for g in pre:
            for ins in self.dma_group(*g): em(ins)
        self.pend0 = []
        for g in [("x", 1), ("w", 2), ("w", 3), ("x", 2), ("w", 4)]:
            if g not in pre: self.pend0 += self.dma_group(*g)
        A(f"v_and_b32 {t0}, 15, {L}\nv_lshlrev_b32 {t0}, 7, {t0}\ns_lshl_b32 s3, s{S_RH}, 14\nv_add_u32 {t0}, s3, {t0}")
        A(f"v_lshrrev_b32 {t1}, 4, {L}\nv_bfe_u32 {t2}, {L}, 1, 3\nv_xor_b32 {t1}, {t1}, {t2}")
        A(f"v_lshl_add_u32 v{V_XA}, {t1}, 4, {t0}")
        A(f"v_xor_b32 v{V_XA+1}, 64, v{V_XA}")
        for t in range(2): A(f"v_add_u32 v{V_XA+2+t}, 32768, v{V_XA+t}")
        A(f"v_lshrrev_b32 {t0}, 4, {L}\nv_mul_u32_u24 {t0}, 3072, {t0}")
        A(f"v_bfe_u32 {t1}, {L}, 2, 2\nv_lshl_add_u32 {t0}, {t1}, 6, {t0}")
        A(f"v_bfe_u32 {t1}, {L}, 4, 1\nv_lshl_add_u32 {t0}, {t1}, 5, {t0}")
        A(f"v_and_b32 {t1}, 3, {L}\nv_lshl_add_u32 {t0}, {t1}, 3, {t0}")
        A(f"s_lshl_b32 s3, s{S_HH}, 9\ns_add_u32 s3, s3, {WB}\nv_add_u32 v{V_WA}, s3, {t0}")
        A(f"v_xor_b32 v{V_WA+1}, 32, v{V_WA}")
        for i in range(4): A(f"v_mov_b32 v{V_ONE+i}, 0x3f803f80")
        A(f"v_and_b32 {t0}, 31, {L}\nv_lshrrev_b32 {t1}, 5, {L}\nv_lshlrev_b32 {t1}, 2, {t1}\nv_sub_u32 {t0}, {t0}, {t1}")
        A(f"v_mov_b32 {t1}, 0x3f80\nv_mov_b32 {t2}, 0x3f800000")
        for j in range(2):
            for u in range(4):
                f0 = 16 * j + 8 * (u // 2) + 2 * (u % 2)
                d = V_ID + 4 * j + u
                A(f"v_cmp_eq_u32 vcc, {f0}, {t0}\nv_cndmask_b32 v{d}, 0, {t1}, vcc")
                A(f"v_cmp_eq_u32 vcc, {f0+1}, {t0}\nv_cndmask_b32 v{d}, v{d}, {t2}, vcc")
        A(f"s_mov_b32 s{S_L2E}, 0x3fb8aa3b\ns_mov_b32 s{S_L2E+1}, 0x3fb8aa3b")

    def f1base(self, s):
        self.A(f"s_lshl_b32 s{s}, s{S_B}, 5\ns_add_u32 s{s}, s{s}, s{S_HEAD}\ns_lshl_b32 s{s}, s{s}, 1\ns_add_u32 s{s}, s{s}, s{S_RH}\ns_lshl_b32 s{s}, s{s}, 7\ns_add_u32 s{s}, s{s}, {WS_F1}")
    def f1w(self, s):
        self.f1base(s); self.A(f"s_lshl_b32 s3, s{S_R}, 3\ns_add_u32 s{s}, s{s}, s3")
    def f2w(self, s):
        self.A(f"s_lshl_b32 s{s}, s{S_B}, 4\ns_lshl_b32 s3, s{S_R}, 1\ns_add_u32 s{s}, s{s}, s3\ns_add_u32 s{s}, s{s}, s{S_RH}")
        self.A(f"s_lshl_b32 s{s}, s{s}, 5\ns_add_u32 s{s}, s{s}, s{S_HEAD}\ns_lshl_b32 s{s}, s{s}, 3\ns_add_u32 s{s}, s{s}, {WS_F2}")

    def dma_group(self, kind, i):
        out = []
        if kind == "x":
            base = XS[i % 3]
            for j in range(8):
                if j % 4 == 0: out.append(f"s_add_u32 m0, s{S_MX}, {base + 4096*(j//4)}" if base + j else f"s_mov_b32 m0, s{S_MX}")
                out.append(("vm", ("x", i), f"buffer_load_dwordx4 v{V_XD+j}, {srd(SRD_X)}, s{S_KX} offen offset:{1024*(j%4)} lds"))
            out.append(f"s_add_u32 s{S_KX}, s{S_KX}, 128")
        else:
            base = 12288 * (i % 5)
            out.append(f"s_add_u32 m0, s{S_MW}, {base}" if base else f"s_mov_b32 m0, s{S_MW}")
            for p in range(3):
                out.append(("vm", ("w", i), f"buffer_load_dwordx4 v{V_WD+p}, {srd(SRD_W)}, s{S_KW} offen offset:{1024*p} lds"))
            out.append(f"s_add_u32 s{S_KW}, s{S_KW}, {32*6144}")
        return out

    def x_reads(self, gm):
        i, m = divmod(gm, 8)
        slot = i % 3
        off = (32768 if slot >= 1 else 0) + 2048 * m
        return [f"ds_read_b128 {ar(A_X + 8*(gm%4) + 4*s, 4)}, v{V_XA + s + (2 if slot == 2 else 0)} offset:{off}" for s in range(2)]
    def w_reads(self, i):
        out = []
        for n in range(6):
            p, nb = divmod(n, 2)
            for s in range(2):
                pos = (2 * i + s) % 5
                for rd in range(2):
                    out.append(f"ds_read_b64_tr_b16 {ar(A_W + 48*(i&1) + 4*(2*n+s) + 2*rd, 2)}, v{V_WA+nb} offset:{pos*12288 + 1024*p + 256*rd}")
        return out
    def order1(self, m):
        ns = list(range(6)) if m % 2 == 0 else list(range(5, -1, -1))
        return [(n, s) for k, n in enumerate(ns) for s in ((0, 1) if k % 2 == 0 else (1, 0))]
    def mfmas1(self, i, m):
        out = []; seen = set()
        for n, s in self.order1(m):
            p, nb = divmod(n, 2)
            w = ar(A_W + 48 * (i & 1) + 4 * (2 * n + s), 4)
            x = ar(A_X + 8 * ((8 * i + m) % 4) + 4 * s, 4)
            d = vr(ACC[p] + 8 * m + 4 * nb, 4)
            c = "0" if (i == 0 and n not in seen) else d
            seen.add(n)
            a, b = (w, x) if p < 2 else (x, w)
            out.append(f"{MF16} {d}, {a}, {b}, {c}")
        return out
    def pack_ops(self, m):
        out = []; done = []
        for n, s in self.order1(m):
            if n in done: continue
            done.append(n)
            p, nb = divmod(n, 2)
            src = ACC[p] + 8 * m + 4 * nb
            if p < 2: dst = ACC[p] + 8 * (m // 2) + 4 * nb + 2 * (m % 2)
            else: dst = ACC[2] + 4 * m + 2 * nb
            out.append((n, [f"v_cvt_pk_bf16_f32 v{dst}, v{src}, v{src+1}", f"v_cvt_pk_bf16_f32 v{dst+1}, v{src+2}, v{src+3}"]))
        res = []
        parts = []
        for n, _ in out:
            if n // 2 not in parts: parts.append(n // 2)
        d = dict(out)
        for p in parts:
            res += d[2 * p] + d[2 * p + 1]
            if p == 2:
                b = ACC[2] + 4 * m
                res += [f"v_permlane16_swap_b32 v{b}, v{b+2}", f"v_permlane16_swap_b32 v{b+1}, v{b+3}"]
            elif m % 2 == 1:
                b = ACC[p] + 8 * (m // 2)
                for nb in range(2):
                    res += [f"v_permlane16_swap_b32 v{b+4*nb}, v{b+4*nb+2}", f"v_permlane16_swap_b32 v{b+4*nb+1}, v{b+4*nb+3}"]
        cv = [x for x in res if "cvt" in x]; sw = [x for x in res if "swap" in x]
        return cv + sw

    def phase1(self):
        A = self.A; o = self.o; em = self.em
        em(("wait", [("w", 0), ("x", 0), ("w", 1)], "")); A("s_barrier")
        self.stamp("first data")
        for r in self.x_reads(0) + self.w_reads(0)[:16] + self.x_reads(1) + self.x_reads(2) + self.w_reads(0)[16:]: A(r)
        pend = list(self.pend0)
        for i in range(16):
            fill = [[] for _ in range(96)]
            pre = {}
            for m in range(5):
                for k, r in enumerate(self.x_reads(8 * i + m + 3)):
                    fill[12 * m + (9 if m == 0 else 2) + 2 * k].append(r)
            pre[0] = "s_waitcnt lgkmcnt(8)"
            pre[8] = "s_waitcnt lgkmcnt(0)"
            pre[36] = "s_waitcnt lgkmcnt(4)"
            pre[48] = "s_waitcnt lgkmcnt(4)"
            pre[60] = "s_waitcnt lgkmcnt(0)"
            slots = [g for g in range(1, 59) if not fill[g] and g not in pre and g + 1 not in pre]
            if pend:
                step = len(slots) / len(pend)
                for k, x in enumerate(pend): fill[slots[int(k * step)]].append(x)
                pend = []
            need = [("x", i + 1), ("w", 2 * i + 2), ("w", 2 * i + 3)] if i < 15 else ["cnt"]
            if i == 0: need += ["phi"]
            fill[60].append(("wait", need, "")); fill[60].append("s_barrier")
            if i < 15:
                rd = self.x_reads(8 * i + 8) + self.w_reads(i + 1)[:16] + self.x_reads(8 * i + 9) + self.x_reads(8 * i + 10) + self.w_reads(i + 1)[16:]
                for k, r in enumerate(rd): fill[61 + k].append(r)
                if 2 * i + 5 < 32:
                    for k, x in enumerate(self.dma_group("w", 2 * i + 5)): fill[91 + k if o.get("wlate") else 62 + 3 * k].append(x)
                if i + 3 < 16: pend += self.dma_group("x", i + 3)
                if 2 * i + 6 < 32: pend += self.dma_group("w", 2 * i + 6)
            if i == 0:
                fill[93].append(("call", self.phi_reads))
            if i == 14:
                pend += [("vm", "cnt", f"buffer_load_dwordx2 {vr(V_CNT,2)}, off, {srd(SRD_DBG)}, 0 sc1")]
            if i == 15 and not o.get("nopack"):
                q = []
                for g in range(12, 96):
                    if g % 12 == 1: q += self.pack_ops(g // 12 - 1)
                    for _ in range(2 - len(fill[g]) - (1 if g + 1 in pre else 0)):
                        if q: fill[g].append(q.pop(0))
                self.pack_left = q
            g = 0
            for m in range(8):
                for mf in self.mfmas1(i, m):
                    if g in pre: A(pre[g])
                    A(mf)
                    for x in fill[g]: em(x)
                    g += 1
            if i in (0, 7, 14): self.stamp(f"step{i}")
        for x in getattr(self, "pack_left", []): A(x)
        for m in (range(7, 8) if not o.get("nopack") else range(8)):
            for x in self.pack_ops(m): A(x)
        self.stamp("p1end")

    def get_nonce(self):
        A = self.A
        lab, done = self.label("nl"), self.label("nd")
        A(f"s_mov_b32 s{S_SPIN}, 0\n{lab}:")
        A(f"v_readfirstlane_b32 s{S_NON}, v{V_CNT}\nv_readfirstlane_b32 s{S_NON+1}, v{V_CNT+1}")
        A(f"s_add_u32 s{S_SPIN}, s{S_SPIN}, 1\ns_nop 2\ns_cmp_lg_u32 s{S_NON}, 0\ns_cbranch_scc1 {done}")
        A(f"s_cmp_ge_u32 s{S_SPIN}, {SPIN_MAX}\ns_cbranch_scc1 {done}")
        A(f"buffer_load_dwordx2 {vr(V_CNT,2)}, off, {srd(SRD_DBG)}, 0 sc1\ns_waitcnt vmcnt(0)\ns_branch {lab}")
        A(f"{done}:")
    def phi_reads(self):
        A = self.A; L = f"v{V_LANE}"; t0, t1 = f"v{V_T+2}", f"v{V_T+3}"
        A(f"v_lshrrev_b32 {t0}, 5, {L}\nv_lshlrev_b32 {t0}, 9, {t0}")
        A(f"v_bfe_u32 {t1}, {L}, 2, 2\nv_lshl_add_u32 {t0}, {t1}, 6, {t0}")
        A(f"v_bfe_u32 {t1}, {L}, 4, 1\nv_lshl_add_u32 {t0}, {t1}, 5, {t0}")
        A(f"v_and_b32 {t1}, 3, {L}\nv_lshl_add_u32 {t0}, {t1}, 3, {t0}")
        A(f"s_lshl_b32 s3, s{S_HH}, 11\ns_add_u32 s3, s3, {PHI}\nv_add_u32 {t0}, s3, {t0}")
        for j in range(2):
            for rd in range(2):
                A(f"ds_read_b64_tr_b16 {vr(V_PHI + 4*j + 2*rd, 2)}, {t0} offset:{1024*j + 256*rd}")

    def unit_S0(self, frag, P):
        return [f"{MF32} {vr(P,16)}, {vr(V_PHI,4)}, {vr(frag,4)}, 0", f"{MF32} {vr(P,16)}, {vr(V_PHI+4,4)}, {vr(frag+4,4)}, {vr(P,16)}"]
    def unit_S1(self, P):
        a, b = V_ST, V_ST + 1
        out = [f"v_max3_f32 v{a}, v{P}, v{P+1}, v{P+2}", f"v_max3_f32 v{b}, -v{P}, -v{P+1}, -v{P+2}"]
        for k in range(3, 15, 2):
            out += [f"v_max3_f32 v{a}, v{a}, v{P+k}, v{P+k+1}", f"v_max3_f32 v{b}, v{b}, -v{P+k}, -v{P+k+1}"]
        out += [f"v_max_f32 v{a}, v{a}, v{P+15}", f"v_max_f32 v{b}, v{b}, -v{P+15}"]
        out += [f"v_permlane32_swap_b32 v{a}, v{b}", f"v_max_f32 v{a}, v{a}, v{b}", f"v_mul_f32 v{a}, 0xbfb8aa3b, v{a}", f"v_mov_b32 v{b}, v{a}",
                f"v_permlane32_swap_b32 v{a}, v{b}"]
        return out
    def unit_S2(self, P, E):
        st = vr(V_ST, 2); c = f"s[{S_L2E}:{S_L2E+1}]"
        out = [f"v_pk_fma_f32 {vr(E+2*k,2)}, {vr(P+2*k,2)}, {c}, {st} op_sel_hi:[1,1,0]" for k in range(8)]
        out += [f"v_pk_fma_f32 {vr(P+2*k,2)}, {vr(P+2*k,2)}, {c}, {st} op_sel:[0,0,1] op_sel_hi:[1,1,1] neg_lo:[1,0,0] neg_hi:[1,0,0]" for k in range(8)]
        return out
    def unit_S3(self, P, E):
        return [f"v_exp_f32 v{E+k}, v{E+k}" for k in range(16)] + [f"v_exp_f32 v{P+k}, v{P+k}" for k in range(16)]
    def unit_S4(self, P, E):
        ta, tb, tc, td = V_ST + 2, V_ST + 4, V_ST + 6, V_ST + 8
        out = [f"v_pk_add_f32 {vr(ta,2)}, {vr(E,2)}, {vr(E+2,2)}", f"v_pk_add_f32 {vr(tc,2)}, {vr(E+4,2)}, {vr(E+6,2)}"]
        for k in (8, 12): out += [f"v_pk_add_f32 {vr(ta,2)}, {vr(ta,2)}, {vr(E+k,2)}", f"v_pk_add_f32 {vr(tc,2)}, {vr(tc,2)}, {vr(E+k+2,2)}"]
        out += [f"v_pk_add_f32 {vr(ta,2)}, {vr(ta,2)}, {vr(tc,2)}"]
        out += [f"v_pk_add_f32 {vr(tb,2)}, {vr(P,2)}, {vr(P+2,2)}", f"v_pk_add_f32 {vr(td,2)}, {vr(P+4,2)}, {vr(P+6,2)}"]
        for k in (8, 12): out += [f"v_pk_add_f32 {vr(tb,2)}, {vr(tb,2)}, {vr(P+k,2)}", f"v_pk_add_f32 {vr(td,2)}, {vr(td,2)}, {vr(P+k+2,2)}"]
        out += [f"v_pk_add_f32 {vr(tb,2)}, {vr(tb,2)}, {vr(td,2)}"]
        a, b = V_ST, V_ST + 1
        out += [f"v_add_f32 v{a}, v{ta}, v{ta+1}", f"v_add_f32 v{b}, v{tb}, v{tb+1}"]
        out += [f"v_permlane32_swap_b32 v{a}, v{b}", f"v_add_f32 v{a}, v{a}, v{b}", f"v_rcp_f32 v{a}, v{a}", f"v_mov_b32 v{b}, v{a}",
                f"v_permlane32_swap_b32 v{a}, v{b}"]
        return out
    def unit_S5a(self, P, E):
        st = vr(V_ST, 2)
        out = [f"v_pk_mul_f32 {vr(E+2*k,2)}, {vr(E+2*k,2)}, {st} op_sel_hi:[1,0]" for k in range(8)]
        out += [f"v_pk_mul_f32 {vr(P+2*k,2)}, {vr(P+2*k,2)}, {st} op_sel:[0,1] op_sel_hi:[1,1]" for k in range(8)]
        return out
    def unit_S5b(self, P, E, F0, F1):
        return [f"v_cvt_pk_bf16_f32 v{F0+k}, v{E+2*k}, v{E+2*k+1}" for k in range(8)] + [f"v_cvt_pk_bf16_f32 v{F1+k}, v{P+2*k}, v{P+2*k+1}" for k in range(8)]

    def interleave(self, main, extra, start=0, every=1):
        k = 0
        for idx, x in enumerate(main):
            self.em(x)
            if idx >= start and (idx - start) % every == 0 and k < len(extra):
                e = extra[k]; k += 1
                for y in (e if isinstance(e, list) else [e]): self.em(y)
        for e in extra[k:]:
            for y in (e if isinstance(e, list) else [e]): self.em(y)

    def wo_setup(self):
        A = self.A; L = f"v{V_LANE}"; t0, t1 = f"v{V_T}", f"v{V_T+1}"
        V = V_XD
        A(f"s_lshr_b32 s{S_T0}, s{S_J}, 2\ns_lshl_b32 s{S_T0}, s{S_T0}, 8\ns_lshl_b32 s3, s{S_W}, 6\ns_add_u32 s{S_T0}, s{S_T0}, s3")
        A(f"v_lshrrev_b32 {t0}, 2, {L}\nv_lshlrev_b32 {t0}, 11, {t0}\nv_add_u32 {t0}, s{S_T0}, {t0}")
        A(f"v_bfe_u32 {t1}, {L}, 4, 1\nv_lshlrev_b32 {t1}, 1, {t1}\nv_xor_b32 {t1}, {t1}, {L}\nv_and_b32 {t1}, 3, {t1}")
        A(f"v_lshl_add_u32 v{V}, {t1}, 4, {t0}")
        for i in range(1, 4): A(f"v_add_u32 v{V+i}, {32768-1024}, v{V+i-1}")
        A(f"s_add_u32 s{S_MX}, s{S_W}, 1\ns_lshl_b32 s{S_MX}, s{S_MX}, 15\ns_mov_b32 s{S_KX}, 0")
        A(f"v_lshrrev_b32 {t0}, 5, {L}\nv_lshlrev_b32 {t0}, 10, {t0}\nv_add_u32 {t0}, s{S_MX}, {t0}")
        A(f"v_bfe_u32 {t1}, {L}, 4, 1\nv_mul_u32_u24 {t1}, {256+32}, {t1}\nv_add_u32 {t0}, {t0}, {t1}")
        A(f"v_bfe_u32 {t1}, {L}, 2, 2\nv_lshl_add_u32 {t0}, {t1}, 6, {t0}")
        A(f"v_and_b32 {t1}, 3, {L}\nv_lshl_add_u32 v{V+4}, {t1}, 3, {t0}\nv_xor_b32 v{V+5}, 32, v{V+4}")
    def wo_dma(self, rnd):
        out = []
        for grp in range(8):
            ops = [f"s_add_u32 m0, s{S_MX}, {4096*grp}" if grp else f"s_mov_b32 m0, s{S_MX}"]
            out.append(ops[0])
            for i in range(4):
                out.append(("vm", ("wo", rnd), f"buffer_load_dwordx4 v{V_XD+i}, {srd(SRD_WO)}, s{S_KX} offen offset:{1024*i} lds"))
            out.append(f"s_add_u32 s{S_KX}, s{S_KX}, {64*2048}")
        return out
    def wo_reads(self, rnd):
        out = []
        for kb in range(16):
            for nb in range(2):
                for rd in range(2):
                    out.append(f"ds_read_b64_tr_b16 {ar(128*rnd + 8*kb + 4*nb + 2*rd, 2)}, v{V_XD+4+nb} offset:{2048*kb + 512*rd}")
        return out

    def e1(self):
        A = self.A; o = self.o; em = self.em
        L = f"v{V_LANE}"; t0, t1 = f"v{V_T}", f"v{V_T+1}"
        V_TW, V_TR = V_WD, V_WD + 1
        KVO, ZO = 160, 176
        WSET = [(32, 48), (96, 112)]
        A(f"s_mul_i32 s3, s{S_RH}, 0x80008000")
        for k in range(8): A(f"v_xor_b32 v{V_PHI+k}, s3, v{V_PHI+k}")
        for x in self.unit_S0(ACC[1], WSET[0][0]): A(x)
        self.wo_setup()
        A(f"s_lshl_b32 s{S_T1}, s{S_W}, 13")
        A(f"v_and_b32 {t0}, 31, {L}\nv_mul_u32_u24 {t0}, {TSTR}, {t0}\nv_lshrrev_b32 {t1}, 5, {L}\nv_lshl_add_u32 {t0}, {t1}, 3, {t0}\nv_add_u32 v{V_TW}, s{S_T1}, {t0}")
        A(f"v_lshlrev_b32 {t0}, 3, {t1}\nv_bfe_u32 {t1}, {L}, 2, 2\nv_add_u32 {t0}, {t0}, {t1}\nv_mul_u32_u24 {t0}, {TSTR}, {t0}")
        A(f"v_bfe_u32 {t1}, {L}, 4, 1\nv_lshl_add_u32 {t0}, {t1}, 5, {t0}\nv_and_b32 {t1}, 3, {L}\nv_lshl_add_u32 {t0}, {t1}, 3, {t0}\nv_add_u32 v{V_TR}, s{S_T1}, {t0}")
        dma = self.wo_dma(0)
        def kv_mfmas(u):
            out = []
            for sg in (1, 0):
                kv = ar(A_KVX, 16) if sg else vr(KVO, 16)
                z = ar(A_ZX, 16) if sg else vr(ZO, 16)
                for j in range(2):
                    T = ar(A_T + 8 * sg + 4 * j, 4)
                    first = (u == 0 and j == 0)
                    out.append(f"{MF32} {kv}, {T}, {vr(ACC[2] + 8*u + 4*j, 4)}, {'0' if first else kv}")
                    out.append(f"{MF32} {z}, {T}, {vr(V_ONE,4)}, {'0' if first else z}")
            return out
        for u in range(4):
            P, E = WSET[u % 2]
            for x in self.unit_S1(P) + self.unit_S2(P, E): A(x)
            ex = []
            prev = kv_mfmas(u - 1) if u else []
            d = dma[12 * u:12 * u + 12]
            s3 = self.unit_S3(P, E)
            if prev: A("s_waitcnt lgkmcnt(0)")
            for k, x in enumerate(s3):
                A(x)
                if k % 4 == 0 and prev: A(prev[k // 4])
                if k % 4 == 2 and d: em(d.pop(0))
                if k % 8 == 3 and d: em(d.pop(0))
            assert not d
            for x in self.unit_S4(P, E) + self.unit_S5a(P, E): A(x)
            s5 = self.unit_S5b(P, E, E, E + 8)
            nxt = self.unit_S0(ACC[1] + 8 * (u + 1), WSET[(u + 1) % 2][0]) if u < 3 else []
            self.interleave(s5, nxt, start=0, every=6)
            for sg in range(2):
                for q in range(4):
                    A(f"ds_write_b64 v{V_TW}, {vr(E + 8*sg + 2*q, 2)} offset:{64*sg + 16*q}")
            for sg in (1, 0):
                for j in range(2):
                    for rd in range(2):
                        A(f"ds_read_b64_tr_b16 {ar(A_T + 8*sg + 4*j + 2*rd, 2)}, v{V_TR} offset:{64*sg + (16*j + 4*rd)*TSTR}")
        self.stamp("e1 units")
        A("s_waitcnt lgkmcnt(0)")
        last = kv_mfmas(3)
        V_XW, V_XR, V_ZW, V_ZR = V_XA, V_XA + 1, V_XA + 2, V_XA + 3
        for x in last[:4]: A(x)
        A(f"v_lshlrev_b32 {t0}, 4, {L}\nv_add_u32 v{V_XW}, s{S_T1}, {t0}\nv_xor_b32 v{V_XR}, 16384, v{V_XW}")
        A(f"v_lshrrev_b32 {t0}, 5, {L}\nv_lshlrev_b32 {t0}, 4, {t0}\nv_add_u32 v{V_ZW}, s{S_T1}, {t0}\nv_xor_b32 v{V_ZR}, 16384, v{V_ZW}")
        for x in last[4:]: A(x)
        for q in range(4): A(f"ds_write_b128 v{V_XW}, {ar(A_KVX + 4*q, 4)} offset:{X1_OFF + 1024*q}")
        A(f"s_mov_b32 exec_lo, 1\ns_mov_b32 exec_hi, 1")
        for q in range(4): A(f"ds_write_b128 v{V_ZW}, {ar(A_ZX + 4*q, 4)} offset:{X1Z_OFF + 32*q}")
        A("s_mov_b64 exec, -1")
        A("s_waitcnt lgkmcnt(0)\ns_barrier")
        R = 96
        for q in range(4): A(f"ds_read_b128 {vr(R + 4*q, 4)}, v{V_XR} offset:{X1_OFF + 1024*q}")
        for q in range(4): A(f"ds_read_b128 {vr(R + 16 + 4*q, 4)}, v{V_ZR} offset:{X1Z_OFF + 32*q}")
        A(f"s_lshl_b32 s{S_T0}, s{S_B}, 5\ns_add_u32 s{S_T0}, s{S_T0}, s{S_HEAD}\ns_lshl_b32 s{S_T0}, s{S_T0}, 3\ns_add_u32 s{S_T0}, s{S_T0}, s{S_R}")
        A(f"s_lshl_b32 s{S_T0}, s{S_T0}, 1\ns_add_u32 s{S_T0}, s{S_T0}, s{S_RH}")
        A(f"s_lshl_b32 s{S_T2}, s{S_T0}, 6\ns_add_u32 s{S_T2}, s{S_T2}, {WS_Z}\ns_lshl_b32 s{S_T0}, s{S_T0}, 11")
        A(f"v_lshlrev_b32 {t1}, 4, {L}")
        A("s_waitcnt lgkmcnt(4)")
        for k in range(8): A(f"v_pk_add_f32 {vr(KVO+2*k,2)}, {vr(KVO+2*k,2)}, {vr(R+2*k,2)}")
        for k in range(8): A(f"v_cvt_pk_bf16_f32 v{KVO+k}, v{KVO+2*k}, v{KVO+2*k+1}")
        for j in range(2): em(("vm", "pub1", f"buffer_store_dwordx4 {vr(KVO+4*j,4)}, {t1}, {srd(SRD_WS)}, s{S_T0} offen offset:{1024*j} sc1"))
        A("s_waitcnt lgkmcnt(0)")
        for k in range(8): A(f"v_pk_add_f32 {vr(ZO+2*k,2)}, {vr(ZO+2*k,2)}, {vr(R+16+2*k,2)}")
        for k in range(8): A(f"v_cvt_pk_bf16_f32 v{ZO+k}, v{ZO+2*k}, v{ZO+2*k+1}")
        A(f"s_mov_b32 exec_lo, 1\ns_mov_b32 exec_hi, 1")
        for j in range(2): em(("vm", "pub1", f"buffer_store_dwordx4 {vr(ZO+4*j,4)}, {t0}, {srd(SRD_WS)}, s{S_T2} offen offset:{32*j} sc1"))
        A("s_mov_b64 exec, -1")
        self.stamp("pub1")

    def flag_store(self, fn, tags):
        A = self.A
        fn(S_T0)
        self.em(("wait", tags, ""))
        A(f"s_mov_b64 exec, 1")
        self.em(("vm", "flag", f"buffer_store_dwordx2 {vr(V_CNT,2)}, off, {srd(SRD_WS)}, s{S_T0} sc1"))
        A("s_mov_b64 exec, -1")

    def poll(self, soff, nlanes):
        A = self.A
        lab, done = self.label("poll"), self.label("pdone")
        A(f"v_lshlrev_b32 v{V_T+6}, 3, v{V_LANE}\ns_mov_b32 s{S_SPIN}, 0")
        A("s_mov_b32 exec_hi, 0")
        if nlanes < 32: A(f"s_mov_b32 exec_lo, {(1 << nlanes) - 1}")
        A(f"{lab}:")
        A(f"buffer_load_dwordx2 {vr(V_T+2,2)}, v{V_T+6}, {srd(SRD_WS)}, {soff} offen sc1")
        A(f"s_add_u32 s{S_SPIN}, s{S_SPIN}, 1")
        A("s_waitcnt vmcnt(0)")
        A(f"v_cmp_ne_u64 vcc, s[{S_NON}:{S_NON+1}], {vr(V_T+2,2)}")
        A(f"s_cmp_ge_u32 s{S_SPIN}, {SPIN_MAX}\ns_cbranch_scc1 {done}")
        A(f"s_nop 4\ns_cbranch_vccnz {lab}")
        A(f"{done}:\ns_mov_b64 exec, -1")
        self.vm_done += self.vm; self.vm = []

    FQ = [64, 80, 128, 144]
    def e2(self):
        A = self.A; o = self.o; em = self.em
        WSET = [(32, 48), (96, 112)]
        self.em(("wait", [("wo", 0)], ""))
        r1 = self.wo_reads(0)
        for x in self.unit_S0(ACC[0], WSET[0][0]): A(x)
        for x in r1: A(x)
        self.stamp("r1")
        dma = self.wo_dma(1)
        for u in range(4):
            P, E = WSET[u % 2]
            for x in self.unit_S1(P) + self.unit_S2(P, E): A(x)
            d = dma[16 * (u - 1):16 * u] if u else []
            if u == 1: A("s_waitcnt lgkmcnt(0)")
            for k, x in enumerate(self.unit_S3(P, E)):
                A(x)
                if k % 2 == 1 and d: em(d.pop(0))
            assert not d
            for x in self.unit_S4(P, E) + self.unit_S5a(P, E): A(x)
            s5 = self.unit_S5b(P, E, self.FQ[u], self.FQ[u] + 8)
            nxt = self.unit_S0(ACC[0] + 8 * (u + 1), WSET[(u + 1) % 2][0]) if u < 3 else []
            self.interleave(s5, nxt, start=0, every=6)
            if u == 0:
                self.get_nonce()
                self.flag_store(self.f1w, ["pub1"])
        self.stamp("e2")

    def e3(self):
        A = self.A; o = self.o; em = self.em
        L = f"v{V_LANE}"; t0, t1 = f"v{V_T}", f"v{V_T+1}"
        V_XW, V_XR = V_XA, V_XA + 1
        A(f"s_lshl_b32 s{S_T1}, s{S_B}, 5\ns_add_u32 s{S_T1}, s{S_T1}, s{S_HEAD}")
        A(f"s_lshl_b32 s{S_T2}, s{S_T1}, 10\ns_add_u32 s{S_T2}, s{S_T2}, {WS_Z}")
        A(f"s_lshl_b32 s{S_T1}, s{S_T1}, 15\ns_lshl_b32 s3, s{S_RH}, 11\ns_add_u32 s{S_T1}, s{S_T1}, s3")
        A(f"v_lshlrev_b32 {t0}, 4, {L}")
        tz = f"v{V_T+4}"; tz2 = f"v{V_T+5}"
        A(f"v_bfe_u32 {t1}, {L}, 3, 1\nv_lshlrev_b32 {t1}, 2, {t1}\nv_and_b32 {tz}, 3, {L}\nv_add_u32 {tz}, {tz}, {t1}\nv_lshlrev_b32 {tz}, 7, {tz}")
        A(f"v_lshrrev_b32 {t1}, 5, {L}\nv_lshl_add_u32 {tz}, {t1}, 4, {tz}\ns_lshl_b32 s3, s{S_RH}, 6\nv_add_u32 {tz}, s3, {tz}\nv_xor_b32 {tz2}, 64, {tz}")
        self.f1base(S_T0)
        self.poll(f"s{S_T0}", 8)
        self.stamp("sync1")
        PL, ZF, S, KVF = 0, 96, 112, 160
        for r in range(8):
            for j in range(2):
                em(("vm", ("pl", r), f"buffer_load_dwordx4 {vr(PL + 8*r + 4*j, 4)}, {t0}, {srd(SRD_WS)}, s{S_T1} offen offset:{1024*j} sc1"))
            if r < 7: A(f"s_add_u32 s{S_T1}, s{S_T1}, 4096")
        for sl in range(2):
            for j in range(2):
                em(("vm", "zl", f"buffer_load_dwordx4 {vr(ZF + 8*sl + 4*j, 4)}, {tz2 if sl else tz}, {srd(SRD_WS)}, s{S_T2} offen offset:{32*j} sc1"))
        for r in range(8):
            em(("wait", [("pl", r)], ""))
            for j in range(2):
                A(f"{MF32} {vr(S,16)}, {vr(V_ID + 4*j, 4)}, {vr(PL + 8*r + 4*j, 4)}, {'0' if r + j == 0 else vr(S,16)}")
        A(f"s_lshl_b32 s{S_T1}, s{S_B}, 4\ns_lshl_b32 s3, s{S_R}, 1\ns_add_u32 s{S_T1}, s{S_T1}, s3\ns_add_u32 s{S_T1}, s{S_T1}, s{S_RH}")
        A(f"s_lshl_b32 s{S_T1}, s{S_T1}, 5\ns_add_u32 s{S_T1}, s{S_T1}, s{S_HEAD}\ns_lshl_b32 s{S_T1}, s{S_T1}, 13\ns_add_u32 s{S_T1}, s{S_T1}, {WS_O}")
        A(f"v_bfe_u32 {t0}, {L}, 4, 1\nv_lshlrev_b32 {t0}, 10, {t0}\nv_lshrrev_b32 {t1}, 5, {L}\nv_lshl_add_u32 {t0}, {t1}, 8, {t0}\nv_and_b32 {t1}, 15, {L}\nv_lshl_add_u32 {t0}, {t1}, 4, {t0}")
        for k in range(8): A(f"v_cvt_pk_bf16_f32 v{KVF+k}, v{S+2*k}, v{S+2*k+1}")
        for j in range(2): A(f"ds_write_b128 v{V_XW}, {vr(KVF + 4*j, 4)} offset:{X2_OFF + 1024*j}")
        A("s_waitcnt lgkmcnt(0)\ns_barrier")
        for j in range(2): A(f"ds_read_b128 {vr(KVF + 8 + 4*j, 4)}, v{V_XR} offset:{X2_OFF + 1024*j}")
        em(("wait", ["zl"], ""))
        self.stamp("kvsum")
        SETS = [(0, 16), (32, 48)]
        def mm(u):
            N, D = SETS[u % 2]; F = self.FQ[u]
            den = [f"{MF32} {vr(D,16)}, {vr(ZF + 4*k, 4)}, {vr(F + 4*k, 4)}, {'0' if k == 0 else vr(D,16)}" for k in range(4)]
            num = [f"{MF32} {vr(N,16)}, {vr(KVF + 4*k, 4)}, {vr(F + 4*k, 4)}, {'0' if k == 0 else vr(N,16)}" for k in range(4)]
            return den, num
        def fin(u):
            N, D = SETS[u % 2]
            a = [f"v_add_f32 v{D}, v{D}, v{D+1}", f"v_add_f32 v{D+2}, v{D+2}, v{D+3}", f"v_add_f32 v{D+4}, v{D+4}, v{D+5}", f"v_add_f32 v{D+6}, v{D+6}, v{D+7}",
                 f"v_add_f32 v{D}, v{D}, v{D+2}", f"v_add_f32 v{D+4}, v{D+4}, v{D+6}", f"v_add_f32 v{D}, v{D}, v{D+4}", f"v_add_f32 v{D}, 0x358637bd, v{D}",
                 f"v_rcp_f32 v{D}, v{D}"]
            b = [f"v_mul_f32 v{N+k}, v{N+k}, v{D}" for k in range(16)]
            b += [f"v_cvt_pk_bf16_f32 v{N+k}, v{N+2*k}, v{N+2*k+1}" for k in range(8)]
            b += [("vm", "pub2", f"buffer_store_dwordx4 {vr(N+4*j,4)}, {t0}, {srd(SRD_WS)}, s{S_T1} offen offset:{2048*(u%2) + 512*j} sc1") for j in range(2)]
            if u == 1: b.append(f"s_add_u32 s{S_T1}, s{S_T1}, 4096")
            return a, b
        d0, n0 = mm(0)
        for x in d0: A(x)
        A("s_waitcnt lgkmcnt(0)")
        for x in n0: A(x)
        for u in range(4):
            a, b = fin(u)
            if u < 3:
                d, n = mm(u + 1)
                self.interleave(a + b[:24], d + n, start=0, every=4)
                for x in b[24:]: em(x)
            else:
                for x in a + b: em(x)
        self.stamp("e3")
        r2 = self.wo_reads(1)
        h = o.get("r2split", 64)
        for x in r2[:h]: A(x)
        self.flag_store(self.f2w, ["pub2"])
        for x in r2[h:]: A(x)
        self.stamp("pub2")

    def gemm2(self):
        A = self.A; o = self.o; em = self.em
        L = f"v{V_LANE}"; t0, t1 = f"v{V_T}", f"v{V_T+1}"
        V_OD, V_OA, V_OUT, OF = V_WD, V_XA, V_WD + 1, 64
        NS = 10
        A(f"s_and_b32 s{S_T2}, s{S_XCD}, 3\ns_lshl_b32 s{S_T2}, s{S_T2}, 2\ns_and_b32 s3, s{S_J}, 3\ns_add_u32 s{S_T2}, s{S_T2}, s3")
        A(f"s_lshl_b32 s{S_T1}, s{S_B}, 4\ns_add_u32 s{S_T1}, s{S_T1}, s{S_T2}")
        A(f"s_lshl_b32 s{S_T0}, s{S_T1}, 8\ns_add_u32 s{S_T0}, s{S_T0}, {WS_F2}")
        A(f"s_lshl_b32 s{S_KX}, s{S_T1}, 18\ns_add_u32 s{S_KX}, s{S_KX}, {WS_O}")
        A(f"s_lshl_b32 s{S_MX}, s{S_W}, 12")
        A(f"v_lshlrev_b32 v{V_OA}, 4, {L}\nv_add_u32 v{V_OD}, s{S_MX}, v{V_OA}")
        A(f"v_add_u32 v{V_OA+1}, 0x10000, v{V_OA}\nv_add_u32 v{V_OA+2}, 0x20000, v{V_OA}")
        A(f"s_lshl_b32 s{S_KW}, s{S_T2}, 19\ns_lshl_b32 s3, s{S_B}, 11\ns_add_u32 s{S_KW}, s{S_KW}, s3")
        A(f"s_lshr_b32 s3, s{S_J}, 2\ns_lshl_b32 s3, s3, 8\ns_add_u32 s{S_KW}, s{S_KW}, s3\ns_lshl_b32 s3, s{S_W}, 6\ns_add_u32 s{S_KW}, s{S_KW}, s3")
        A(f"v_and_b32 {t0}, 15, {L}\nv_lshlrev_b32 {t0}, 12, {t0}\nv_bfe_u32 {t1}, {L}, 4, 1\nv_lshl_add_u32 {t0}, {t1}, 5, {t0}\nv_lshrrev_b32 {t1}, 5, {L}\nv_lshl_add_u32 v{V_OUT}, {t1}, 4, {t0}")
        A("s_waitcnt lgkmcnt(0)\ns_barrier")
        self.poll(f"s{S_T0}", 32)
        self.stamp("sync2")
        def dma(i):
            base = 16384 * (i % NS)
            out = [f"s_add_u32 m0, s{S_MX}, {base}" if base else f"s_mov_b32 m0, s{S_MX}"]
            out += [("vm", ("o", i), f"buffer_load_dwordx4 v{V_OD}, {srd(SRD_WS)}, s{S_KX} offen offset:{1024*k} sc1 lds") for k in range(4)]
            out.append(f"s_add_u32 s{S_KX}, s{S_KX}, 16384")
            return out
        def reads(gm):
            i, m = divmod(gm, 8)
            off = 16384 * (i % NS) + 1024 * m
            return [f"ds_read_b128 {vr(OF + 8*(gm%4) + 4*s, 4)}, v{V_OA + (off + 8192*s) // 65536} offset:{(off + 8192*s) % 65536}" for s in range(2)]
        def mf(i, m):
            out = []
            nbs = (0, 1) if m % 2 == 0 else (1, 0)
            for k, nb in enumerate(nbs):
                for q, s in enumerate((0, 1) if k == 0 else (1, 0)):
                    d = vr(8 * m + 4 * nb, 4)
                    out.append(f"{MF16} {d}, {ar(8*(2*i+s) + 4*nb, 4)}, {vr(OF + 8*((8*i+m)%4) + 4*s, 4)}, {'0' if i == 0 and q == 0 else d}")
            return out
        def fin(m):
            b = 8 * m
            return [f"v_cvt_pk_bf16_f32 v{b}, v{b}, v{b+1}", f"v_cvt_pk_bf16_f32 v{b+1}, v{b+2}, v{b+3}",
                    f"v_cvt_pk_bf16_f32 v{b+2}, v{b+4}, v{b+5}", f"v_cvt_pk_bf16_f32 v{b+3}, v{b+6}, v{b+7}",
                    f"v_permlane16_swap_b32 v{b}, v{b+2}", f"v_permlane16_swap_b32 v{b+1}, v{b+3}",
                    ("vm", "out", f"buffer_store_dwordx4 {vr(b,4)}, v{V_OUT}, {srd(SRD_OUT)}, s{S_KW} offen"), f"s_add_u32 s{S_KW}, s{S_KW}, 0x10000"]
        npre = o.get("g2pre", 3)
        for i in range(npre):
            for x in dma(i): em(x)
        nxt = npre
        em(("wait", [("o", 0)], "")); A("s_barrier")
        self.stamp("o first")
        for gm in range(3):
            for r in reads(gm): A(r)
        rate = o.get("g2rate", 1.5)
        acc = 0.0
        for i in range(16):
            fill = [[] for _ in range(32)]
            pre = {0: "s_waitcnt lgkmcnt(4)", 4: "s_waitcnt lgkmcnt(4)", 8: "s_waitcnt lgkmcnt(4)", 12: "s_waitcnt lgkmcnt(4)", 16: "s_waitcnt lgkmcnt(4)", 20: "s_waitcnt lgkmcnt(0)"}
            for m in range(8):
                gm = 8 * i + m + 3
                if gm < 128:
                    for k, r in enumerate(reads(gm)): fill[4 * m + 1 + k].append(r)
            if i < 15:
                fill[20].insert(0, ("wait", [("o", i + 1)], "")); fill[20].insert(1, "s_barrier")
            acc += rate
            ops = []
            while acc >= 1 and nxt < 16 and (nxt - NS) < i:
                ops += dma(nxt); nxt += 1; acc -= 1
            slots = [g for g in range(0, 20) if len(fill[g]) == 0] + [g for g in range(0, 20) if len(fill[g]) == 1 and g + 1 not in pre]
            slots = sorted(slots[:max(len(ops), 0)])
            assert len(slots) >= len(ops)
            for g, x in zip(slots, ops): fill[g].append(x)
            if i == 15:
                for m in range(6):
                    ops = fin(m)
                    for k, x in enumerate(ops): fill[4 * (m + 2) + k // 2].append(x)
            g = 0
            for m in range(8):
                for x in mf(i, m):
                    if g in pre: A(pre[g])
                    A(x)
                    for y in fill[g]: em(y)
                    g += 1
        assert nxt == 16
        for m in (6, 7):
            for x in fin(m): em(x)
        self.stamp("g2end")

    def diag_out(self):
        if not self.o.get("diag"): return
        A = self.A
        A("s_waitcnt vmcnt(0)")
        self.stamp("end")
        A("s_memrealtime s[68:69]")
        A("s_waitcnt lgkmcnt(0)")
        A(f"s_lshl_b32 s3, s2, 2\ns_add_u32 s3, s3, s{S_W}\ns_lshl_b32 s3, s3, 7\ns_add_u32 s3, s3, {WS_DIAG}")
        vals = ["s66", "s68"] + [f"s{S_STAMP+2*k}" for k in range(self.nstamp)]
        A(f"v_mov_b32 v{V_T+1}, 0")
        for k, s in enumerate(vals):
            A(f"v_mov_b32 v{V_T}, {s}")
            A(f"buffer_store_dword v{V_T}, v{V_T+1}, {srd(SRD_WS)}, s3 offen offset:{4*k}")

    def build(self):
        A = self.A
        self.prologue()
        self.phase1()
        if not self.o.get("p1only"):
            self.e1(); self.e2(); self.e3(); self.gemm2()
        self.diag_out()
        A("L_END:\ns_endpgm")
        body, info = A.finish(verbose=self.o.get("verbose"))
        hdr = open("concat_heads__linear_kernel_hedgehog__linear_kernel_hedgehog__prompt.s.ref").read().split("; Override")[0]
        txt = hdr + f"""; @launch grid=(256,1,1) block=(256,1,1) lds={LDS_BYTES}
.amdgcn_target "amdgcn-amd-amdhsa--gfx950"
.text
.globl {KNAME}
.p2align 8
.type {KNAME},@function
{KNAME}:
{body}
.section .rodata,"a"
.p2align 6
.amdhsa_kernel {KNAME}
  .amdhsa_next_free_vgpr 512
  .amdhsa_next_free_sgpr 102
  .amdhsa_accum_offset 256
  .amdhsa_group_segment_fixed_size 0
  .amdhsa_kernarg_size 88
  .amdhsa_user_sgpr_count 2
  .amdhsa_user_sgpr_kernarg_segment_ptr 1
  .amdhsa_system_sgpr_workgroup_id_x 1
.end_amdhsa_kernel
"""
        return txt, info

if __name__ == "__main__":
    out = sys.argv[1]
    opt = {}
    for a in sys.argv[2:]:
        k, v = a.split("=", 1)
        opt[k] = eval(v)
    g = Gen(opt)
    txt, info = g.build()
    open(out, "w").write(txt)
    json.dump(dict(stamps=g.stamp_names, opt={k: str(v) for k, v in opt.items()}), open(out + ".json", "w"))
    print(out, info, len(g.stamp_names))
```

```python
import sys, json
from asmlib import Asm
KNAME = "concat_heads__linear_kernel_hedgehog__linear_kernel_hedgehog__prompt_kernel"

WS_KV   = 0x000000
WS_Z    = 0x200000
WS_F1   = 0x220000
WS_F2   = 0x230000
WS_O    = 0x400000
WS_DIAG = 0x1000000
WS_DUMP = 0x2000000
WS_SIZE = 0x10000000

XS = [0, 32768, 65536]
WB = 98304
PHI = 159744
LDS_BYTES = 163840
TSTR = 136
X1_OFF, X1Z_OFF, X2_OFF = 0, 4096, 5120

S_PTR = 4
SRD_X, SRD_W, SRD_WO, SRD_WS, SRD_OUT, SRD_DBG, SRD_T = 12, 16, 20, 24, 28, 32, 36
S_P2 = 40
S_HEAD, S_SPIN = 46, 47
S_XCD, S_J, S_B, S_R, S_C, S_W, S_RH, S_HH = 48, 49, 50, 51, 52, 53, 54, 55
S_KX, S_KW, S_MX, S_MW = 56, 57, 58, 59
S_T0, S_T1, S_T2, S_T3 = 60, 61, 62, 63
S_L2E = 64
S_NON = 44
S_STAMP = 70

ACC = [0, 64, 128]
V_XD, V_WD, V_XA, V_WA, V_LANE = 192, 200, 203, 207, 209
V_CNT = 210
V_PHI, V_ONE, V_ID = 212, 220, 224
V_T = 232
V_ST = 240
A_W, A_X = 0, 96
A_T, A_KVX, A_ZX = 128, 160, 176
MF16, MF32 = "v_mfma_f32_16x16x32_bf16", "v_mfma_f32_32x32x16_bf16"
SPIN_MAX = 1 << 16

def srd(i): return f"s[{i}:{i+3}]"
def vr(i, n): return f"v[{i}:{i+n-1}]"
def ar(i, n): return f"a[{i}:{i+n-1}]"

class Gen:
    def __init__(self, opt):
        self.o = opt
        self.A = Asm()
        self.nstamp = 0
        self.stamp_names = []
        self.vm = []
        self.nlab = 0
        self.vm_done = []
    def stamp(self, name):
        if not self.o.get("diag"): return
        if name in self.o.get("nostamp", ("kernarg", "step7", "r1")): return
        s = S_STAMP + 2 * self.nstamp
        assert s + 1 <= 101
        self.A(f"s_memtime s[{s}:{s+1}]")
        self.nstamp += 1; self.stamp_names.append(name)
    def em(self, x):
        if isinstance(x, str): self.A(x)
        elif x[0] == "vm": self.A(x[2]); self.vm.append(x[1])
        elif x[0] == "wait": self.A(f"s_waitcnt vmcnt({self.vmn(x[1])}){x[2]}")
        elif x[0] == "call": x[1]()
        else: raise ValueError(x)
    def vmn(self, tags):
        for t in tags: assert t in self.vm or t in self.vm_done, t
        idx = [i for i, t in enumerate(self.vm) if t in tags]
        if not idx: return 63
        n = len(self.vm) - 1 - max(idx)
        assert n <= 63
        return n
    def label(self, p):
        self.nlab += 1
        return f"L_{p}{self.nlab}"

    def prologue(self):
        A = self.A; o = self.o; em = self.em
        A(f"s_cmp_ge_u32 s2, 256\ns_cbranch_scc1 L_END")
        if o.get("diag"): A("s_memrealtime s[66:67]")
        self.stamp("start")
        A(f"s_lshl_b32 s3, s2, 3\ns_and_b32 s3, s3, 32")
        A(f"s_load_dwordx8 s[{S_PTR}:{S_PTR+7}], s[0:1], s3")
        A(f"s_load_dwordx4 s[{S_P2}:{S_P2+3}], s[0:1], 64")
        A(f"s_load_dwordx2 s[{S_P2+4}:{S_P2+5}], s[0:1], 80")
        A(f"s_getpc_b64 s[{SRD_T}:{SRD_T+1}]")
        A("L_PC:")
        A(f"v_lshrrev_b32 v1, 6, v0\nv_and_b32 v{V_LANE}, 63, v0")
        A(f"s_and_b32 s{S_XCD}, s2, 7\ns_lshr_b32 s{S_J}, s2, 3")
        A(f"v_readfirstlane_b32 s{S_W}, v1")
        A(f"s_lshr_b32 s{S_B}, s{S_XCD}, 2\ns_and_b32 s{S_R}, s{S_J}, 7")
        cm = o.get("cmap", "blk")
        if cm == "blk":
            A(f"s_and_b32 s{S_C}, s{S_XCD}, 3\ns_lshl_b32 s{S_C}, s{S_C}, 2\ns_lshr_b32 s3, s{S_J}, 3\ns_add_u32 s{S_C}, s{S_C}, s3")
        elif cm == "il":
            A(f"s_and_b32 s{S_C}, s{S_XCD}, 3\ns_lshr_b32 s3, s{S_J}, 3\ns_lshl_b32 s3, s3, 2\ns_add_u32 s{S_C}, s{S_C}, s3")
        elif cm == "rev":
            A(f"s_and_b32 s{S_C}, s{S_XCD}, 3\ns_lshl_b32 s{S_C}, s{S_C}, 2\ns_lshr_b32 s3, s{S_J}, 3\ns_sub_u32 s{S_C}, s{S_C}, s3\ns_add_u32 s{S_C}, s{S_C}, 3")
        elif cm == "4x8":
            A(f"s_and_b32 s{S_R}, s{S_J}, 3\ns_and_b32 s3, s{S_XCD}, 1\ns_lshl_b32 s3, s3, 2\ns_add_u32 s{S_R}, s{S_R}, s3")
            A(f"s_lshr_b32 s{S_C}, s{S_J}, 2\ns_and_b32 s3, s{S_XCD}, 2\ns_lshl_b32 s3, s3, 2\ns_add_u32 s{S_C}, s{S_C}, s3")
        L = f"v{V_LANE}"; t0, t1, t2 = f"v{V_T}", f"v{V_T+1}", f"v{V_T+2}"
        A(f"s_lshr_b32 s{S_RH}, s{S_W}, 1\ns_and_b32 s{S_HH}, s{S_W}, 1")
        A(f"v_bfe_u32 {t0}, {L}, 2, 3\ns_lshl_b32 s3, s{S_W}, 3\nv_add_u32 {t0}, s3, {t0}")
        A(f"v_mul_u32_u24 {t0}, 6144, {t0}")
        A(f"v_lshrrev_b32 {t1}, 5, {L}\nv_lshl_add_u32 {t0}, {t1}, 6, {t0}")
        A(f"s_lshl_b32 s3, s{S_HH}, 1\nv_and_b32 {t1}, 3, {L}\nv_xor_b32 {t1}, s3, {t1}\nv_lshl_add_u32 v{V_WD}, {t1}, 4, {t0}")
        A(f"v_add_u32 v{V_WD+1}, 1024, v{V_WD}\nv_add_u32 v{V_WD+2}, 2048, v{V_WD}")
        A(f"v_lshrrev_b32 {t0}, 3, {L}\ns_lshl_b32 s3, s{S_W}, 6\nv_add_u32 {t0}, s3, {t0}\nv_lshlrev_b32 {t0}, 11, {t0}")
        A(f"v_lshrrev_b32 {t1}, 4, {L}\nv_and_b32 {t2}, 7, {L}\nv_xor_b32 {t1}, {t1}, {t2}")
        A(f"v_lshl_add_u32 v{V_XD}, {t1}, 4, {t0}")
        A(f"v_xor_b32 v{V_XD+1}, 64, v{V_XD}\nv_add_u32 v{V_XD+1}, {16384-1024}, v{V_XD+1}")
        for j in range(2, 8):
            d = 16384 * 2 - (2048 if j % 4 >= 2 else -2048)
            A(f"v_add_u32 v{V_XD+j}, {d}, v{V_XD+j-2}")
        A(f"s_lshl_b32 s{S_MX}, s{S_W}, 13")
        A(f"s_mul_i32 s{S_MW}, s{S_W}, 3072\ns_add_u32 s{S_MW}, s{S_MW}, {WB}")
        A(f"s_mov_b32 s{S_KX}, 0\ns_mov_b32 s{S_KW}, 0")
        A(f"s_lshl_b32 s{S_T0}, s{S_R}, 19\ns_lshl_b32 s{S_T1}, s{S_C}, 7")
        A(f"s_mov_b32 s{SRD_X+2}, 0x80000\ns_mov_b32 s{SRD_X+3}, 0x20000")
        A(f"s_sub_u32 s{SRD_W+2}, 0x600000, s{S_T1}\ns_mov_b32 s{SRD_W+3}, 0x20000")
        A("s_waitcnt lgkmcnt(0)")
        A(f"s_add_u32 s{SRD_W}, s{S_PTR+2}, s{S_T1}\ns_addc_u32 s{SRD_W+1}, s{S_PTR+3}, 0")
        A(f"s_add_u32 s{SRD_X}, s{S_PTR}, s{S_T0}\ns_addc_u32 s{SRD_X+1}, s{S_PTR+1}, 0")
        self.stamp("kernarg")
        for g in [("w", 0), ("x", 0), ("w", 1)]:
            for ins in self.dma_group(*g): em(ins)
        if o.get("codepf", 1):
            A(f"s_mov_b32 s{SRD_T+2}, L_END-L_PC\ns_mov_b32 s{SRD_T+3}, 0x20000")
            A(f"v_lshlrev_b32 {t0}, 7, v0")
            n = o.get("codepf_n", 2)
            for i in range(n):
                em(("vm", "pf", f"buffer_load_dword v{V_T+4+i}, {t0}, {srd(SRD_T)}, 0 offen"))
                if i + 1 < n: A(f"v_add_u32 {t0}, 0x8000, {t0}")
        for base, p, n in ((SRD_WS, S_P2 + 4, WS_SIZE), (SRD_OUT, S_P2, 0x800000), (SRD_DBG, S_P2 + 2, 256), (SRD_WO, S_PTR + 6, 0x200000)):
            A(f"s_mov_b32 s{base}, s{p}\ns_mov_b32 s{base+1}, s{p+1}\ns_mov_b32 s{base+2}, {n}\ns_mov_b32 s{base+3}, 0x20000")
        A(f"s_lshl_b32 s{S_HEAD}, s{S_C}, 1\ns_add_u32 s{S_HEAD}, s{S_HEAD}, s{S_HH}")
        lab = self.label("non")
        A(f"s_or_b32 s3, s2, s{S_W}\ns_cmp_lg_u32 s3, 0\ns_cbranch_scc1 {lab}")
        A(f"s_memrealtime s[{S_T2}:{S_T3}]\ns_waitcnt lgkmcnt(0)\ns_or_b32 s{S_T2}, s{S_T2}, 1")
        A(f"v_mov_b32 v{V_CNT}, s{S_T2}\nv_mov_b32 v{V_CNT+1}, s{S_T3}\ns_mov_b64 exec, 1")
        A(f"buffer_store_dwordx2 {vr(V_CNT,2)}, off, {srd(SRD_DBG)}, 0 sc1")
        A(f"s_mov_b64 exec, -1\n{lab}:")
        A(f"s_mov_b32 s{SRD_T}, s{S_PTR+4}\ns_mov_b32 s{SRD_T+1}, s{S_PTR+5}\ns_mov_b32 s{SRD_T+2}, 0x10000\ns_mov_b32 s{SRD_T+3}, 0x20000")
        A(f"s_lshl_b32 s{S_T0}, s{S_C}, 12\nv_lshlrev_b32 {t0}, 4, v0")
        A(f"s_lshl_b32 s3, s{S_W}, 10\ns_add_u32 m0, s3, {PHI}")
        em(("vm", "phi", f"buffer_load_dwordx4 {t0}, {srd(SRD_T)}, s{S_T0} offen lds"))
        pre = o.get("pre", [("x", 1), ("w", 2), ("w", 3)])
        for g in pre:
            for ins in self.dma_group(*g): em(ins)
        if o.get("xpf"):
            A(f"s_lshl_b32 s{S_T0}, s{S_C}, 15\nv_lshlrev_b32 {t0}, 7, v0")
            em(("vm", "xpf", f"buffer_load_dword v{V_T+8}, {t0}, {srd(SRD_X)}, s{S_T0} offen{o.get('xpfpol','')}"))
        if o.get("wpf"):
            A(f"v_and_b32 {t0}, 127, v0\nv_mul_u32_u24 {t0}, 6144, {t0}\nv_lshrrev_b32 {t1}, 7, v0\nv_lshl_add_u32 {t0}, {t1}, 11, {t0}")
            A(f"s_mul_i32 s{S_T0}, s{S_R}, {128*6144}")
            em(("vm", "wpf", f"buffer_load_dword v{V_T+9}, {t0}, {srd(SRD_W)}, s{S_T0} offen{o.get('wpfpol','')}"))
            A(f"v_and_b32 {t0}, 127, v0\nv_mul_u32_u24 {t0}, 6144, {t0}\nv_add_u32 {t0}, 4096, {t0}\nv_cmp_gt_u32 vcc, 128, v0\ns_and_saveexec_b64 s[{S_T2}:{S_T3}], vcc")
            em(("vm", "wpf", f"buffer_load_dword v{V_T+10}, {t0}, {srd(SRD_W)}, s{S_T0} offen{o.get('wpfpol','')}"))
            A(f"s_mov_b64 exec, -1")
        self.pend0 = []
        for g in [("x", 1), ("w", 2), ("w", 3), ("x", 2), ("w", 4)]:
            if g not in pre: self.pend0 += self.dma_group(*g)
        A(f"v_and_b32 {t0}, 15, {L}\nv_lshlrev_b32 {t0}, 7, {t0}\ns_lshl_b32 s3, s{S_RH}, 14\nv_add_u32 {t0}, s3, {t0}")
        A(f"v_lshrrev_b32 {t1}, 4, {L}\nv_bfe_u32 {t2}, {L}, 1, 3\nv_xor_b32 {t1}, {t1}, {t2}")
        A(f"v_lshl_add_u32 v{V_XA}, {t1}, 4, {t0}")
        A(f"v_xor_b32 v{V_XA+1}, 64, v{V_XA}")
        for t in range(2): A(f"v_add_u32 v{V_XA+2+t}, 32768, v{V_XA+t}")
        A(f"v_lshrrev_b32 {t0}, 4, {L}\nv_mul_u32_u24 {t0}, 3072, {t0}")
        A(f"v_bfe_u32 {t1}, {L}, 2, 2\nv_lshl_add_u32 {t0}, {t1}, 6, {t0}")
        A(f"v_bfe_u32 {t1}, {L}, 4, 1\nv_lshl_add_u32 {t0}, {t1}, 5, {t0}")
        A(f"v_and_b32 {t1}, 3, {L}\nv_lshl_add_u32 {t0}, {t1}, 3, {t0}")
        A(f"s_lshl_b32 s3, s{S_HH}, 9\ns_add_u32 s3, s3, {WB}\nv_add_u32 v{V_WA}, s3, {t0}")
        A(f"v_xor_b32 v{V_WA+1}, 32, v{V_WA}")
        for i in range(4): A(f"v_mov_b32 v{V_ONE+i}, 0x3f803f80")
        A(f"v_and_b32 {t0}, 31, {L}\nv_lshrrev_b32 {t1}, 5, {L}\nv_lshlrev_b32 {t1}, 2, {t1}\nv_sub_u32 {t0}, {t0}, {t1}")
        A(f"v_mov_b32 {t1}, 0x3f80\nv_mov_b32 {t2}, 0x3f800000")
        for j in range(2):
            for u in range(4):
                f0 = 16 * j + 8 * (u // 2) + 2 * (u % 2)
                d = V_ID + 4 * j + u
                A(f"v_cmp_eq_u32 vcc, {f0}, {t0}\nv_cndmask_b32 v{d}, 0, {t1}, vcc")
                A(f"v_cmp_eq_u32 vcc, {f0+1}, {t0}\nv_cndmask_b32 v{d}, v{d}, {t2}, vcc")
        A(f"s_mov_b32 s{S_L2E}, 0x3fb8aa3b\ns_mov_b32 s{S_L2E+1}, 0x3fb8aa3b")

    def f1base(self, s):
        self.A(f"s_lshl_b32 s{s}, s{S_B}, 5\ns_add_u32 s{s}, s{s}, s{S_HEAD}\ns_lshl_b32 s{s}, s{s}, 1\ns_add_u32 s{s}, s{s}, s{S_RH}\ns_lshl_b32 s{s}, s{s}, 7\ns_add_u32 s{s}, s{s}, {WS_F1}")
    def f1w(self, s):
        self.f1base(s); self.A(f"s_lshl_b32 s3, s{S_R}, 3\ns_add_u32 s{s}, s{s}, s3")
    def f2w(self, s):
        self.A(f"s_lshl_b32 s{s}, s{S_B}, 4\ns_lshl_b32 s3, s{S_R}, 1\ns_add_u32 s{s}, s{s}, s3\ns_add_u32 s{s}, s{s}, s{S_RH}")
        self.A(f"s_lshl_b32 s{s}, s{s}, 5\ns_add_u32 s{s}, s{s}, s{S_HEAD}\ns_lshl_b32 s{s}, s{s}, 3\ns_add_u32 s{s}, s{s}, {WS_F2}")

    def dma_group(self, kind, i):
        out = []
        if kind == "x":
            base = XS[i % 3]
            for j in range(8):
                if j % 4 == 0: out.append(f"s_add_u32 m0, s{S_MX}, {base + 4096*(j//4)}" if base + j else f"s_mov_b32 m0, s{S_MX}")
                out.append(("vm", ("x", i), f"buffer_load_dwordx4 v{V_XD+j}, {srd(SRD_X)}, s{S_KX} offen offset:{1024*(j%4)}{self.o.get('xpol','')} lds"))
            out.append(f"s_add_u32 s{S_KX}, s{S_KX}, 128")
        else:
            base = 12288 * (i % 5)
            out.append(f"s_add_u32 m0, s{S_MW}, {base}" if base else f"s_mov_b32 m0, s{S_MW}")
            for p in range(3):
                out.append(("vm", ("w", i), f"buffer_load_dwordx4 v{V_WD+p}, {srd(SRD_W)}, s{S_KW} offen offset:{1024*p}{self.o.get('wpol','')} lds"))
            out.append(f"s_add_u32 s{S_KW}, s{S_KW}, {32*6144}")
        return out

    def x_reads(self, gm):
        i, m = divmod(gm, 8)
        slot = i % 3
        off = (32768 if slot >= 1 else 0) + 2048 * m
        return [f"ds_read_b128 {ar(A_X + 8*(gm%4) + 4*s, 4)}, v{V_XA + s + (2 if slot == 2 else 0)} offset:{off}" for s in range(2)]
    def w_reads(self, i):
        out = []
        for n in range(6):
            p, nb = divmod(n, 2)
            for s in range(2):
                pos = (2 * i + s) % 5
                for rd in range(2):
                    out.append(f"ds_read_b64_tr_b16 {ar(A_W + 48*(i&1) + 4*(2*n+s) + 2*rd, 2)}, v{V_WA+nb} offset:{pos*12288 + 1024*p + 256*rd}")
        return out
    def order1(self, m):
        ns = list(range(6)) if m % 2 == 0 else list(range(5, -1, -1))
        return [(n, s) for k, n in enumerate(ns) for s in ((0, 1) if k % 2 == 0 else (1, 0))]
    def mfmas1(self, i, m):
        out = []; seen = set()
        for n, s in self.order1(m):
            p, nb = divmod(n, 2)
            w = ar(A_W + 48 * (i & 1) + 4 * (2 * n + s), 4)
            x = ar(A_X + 8 * ((8 * i + m) % 4) + 4 * s, 4)
            d = vr(ACC[p] + 8 * m + 4 * nb, 4)
            c = "0" if (i == 0 and n not in seen) else d
            seen.add(n)
            a, b = (w, x) if p < 2 else (x, w)
            out.append(f"{MF16} {d}, {a}, {b}, {c}")
        return out
    def pack_ops(self, m):
        out = []; done = []
        for n, s in self.order1(m):
            if n in done: continue
            done.append(n)
            p, nb = divmod(n, 2)
            src = ACC[p] + 8 * m + 4 * nb
            if p < 2: dst = ACC[p] + 8 * (m // 2) + 4 * nb + 2 * (m % 2)
            else: dst = ACC[2] + 4 * m + 2 * nb
            out.append((n, [f"v_cvt_pk_bf16_f32 v{dst}, v{src}, v{src+1}", f"v_cvt_pk_bf16_f32 v{dst+1}, v{src+2}, v{src+3}"]))
        res = []
        parts = []
        for n, _ in out:
            if n // 2 not in parts: parts.append(n // 2)
        d = dict(out)
        for p in parts:
            res += d[2 * p] + d[2 * p + 1]
            if p == 2:
                b = ACC[2] + 4 * m
                res += [f"v_permlane16_swap_b32 v{b}, v{b+2}", f"v_permlane16_swap_b32 v{b+1}, v{b+3}"]
            elif m % 2 == 1:
                b = ACC[p] + 8 * (m // 2)
                for nb in range(2):
                    res += [f"v_permlane16_swap_b32 v{b+4*nb}, v{b+4*nb+2}", f"v_permlane16_swap_b32 v{b+4*nb+1}, v{b+4*nb+3}"]
        cv = [x for x in res if "cvt" in x]; sw = [x for x in res if "swap" in x]
        return cv + sw

    def phase1(self):
        A = self.A; o = self.o; em = self.em
        em(("wait", [("w", 0), ("x", 0), ("w", 1)], "")); A("s_barrier")
        self.stamp("first data")
        for r in self.x_reads(0) + self.w_reads(0)[:16] + self.x_reads(1) + self.x_reads(2) + self.w_reads(0)[16:]: A(r)
        pend = list(self.pend0)
        for i in range(16):
            fill = [[] for _ in range(96)]
            pre = {}
            for m in range(5):
                for k, r in enumerate(self.x_reads(8 * i + m + 3)):
                    fill[12 * m + (9 if m == 0 else 2) + 2 * k].append(r)
            pre[0] = "s_waitcnt lgkmcnt(8)"
            pre[8] = "s_waitcnt lgkmcnt(0)"
            pre[36] = "s_waitcnt lgkmcnt(4)"
            pre[48] = "s_waitcnt lgkmcnt(4)"
            pre[60] = "s_waitcnt lgkmcnt(0)"
            slots = [g for g in range(1, 59) if not fill[g] and g not in pre and g + 1 not in pre]
            if pend:
                step = len(slots) / len(pend)
                for k, x in enumerate(pend): fill[slots[int(k * step)]].append(x)
                pend = []
            need = [("x", i + 1), ("w", 2 * i + 2), ("w", 2 * i + 3)] if i < 15 else ["cnt"]
            if i == 0: need += ["phi"]
            fill[60].append(("wait", need, "")); fill[60].append("s_barrier")
            if i < 15:
                rd = self.x_reads(8 * i + 8) + self.w_reads(i + 1)[:16] + self.x_reads(8 * i + 9) + self.x_reads(8 * i + 10) + self.w_reads(i + 1)[16:]
                for k, r in enumerate(rd): fill[61 + k].append(r)
                if 2 * i + 5 < 32:
                    for k, x in enumerate(self.dma_group("w", 2 * i + 5)): fill[91 + k if o.get("wlate") else 62 + 3 * k].append(x)
                if i + 3 < 16: pend += self.dma_group("x", i + 3)
                if 2 * i + 6 < 32: pend += self.dma_group("w", 2 * i + 6)
            if i == 0:
                fill[93].append(("call", self.phi_reads))
            if i == 14:
                pend += [("vm", "cnt", f"buffer_load_dwordx2 {vr(V_CNT,2)}, off, {srd(SRD_DBG)}, 0 sc1")]
            if i == 15 and not o.get("nopack"):
                q = []
                for g in range(12, 96):
                    if g % 12 == 1: q += self.pack_ops(g // 12 - 1)
                    for _ in range(2 - len(fill[g]) - (1 if g + 1 in pre else 0)):
                        if q: fill[g].append(q.pop(0))
                self.pack_left = q
            g = 0
            for m in range(8):
                for mf in self.mfmas1(i, m):
                    if g in pre: A(pre[g])
                    A(mf)
                    for x in fill[g]: em(x)
                    g += 1
            if i in (0, 7, 14): self.stamp(f"step{i}")
        for x in getattr(self, "pack_left", []): A(x)
        for m in (range(7, 8) if not o.get("nopack") else range(8)):
            for x in self.pack_ops(m): A(x)
        self.stamp("p1end")

    def get_nonce(self):
        A = self.A
        lab, done = self.label("nl"), self.label("nd")
        A(f"s_mov_b32 s{S_SPIN}, 0\n{lab}:")
        A(f"v_readfirstlane_b32 s{S_NON}, v{V_CNT}\nv_readfirstlane_b32 s{S_NON+1}, v{V_CNT+1}")
        A(f"s_add_u32 s{S_SPIN}, s{S_SPIN}, 1\ns_nop 2\ns_cmp_lg_u32 s{S_NON}, 0\ns_cbranch_scc1 {done}")
        A(f"s_cmp_ge_u32 s{S_SPIN}, {SPIN_MAX}\ns_cbranch_scc1 {done}")
        A(f"buffer_load_dwordx2 {vr(V_CNT,2)}, off, {srd(SRD_DBG)}, 0 sc1\ns_waitcnt vmcnt(0)\ns_branch {lab}")
        A(f"{done}:")
    def phi_reads(self):
        A = self.A; L = f"v{V_LANE}"; t0, t1 = f"v{V_T+2}", f"v{V_T+3}"
        A(f"v_lshrrev_b32 {t0}, 5, {L}\nv_lshlrev_b32 {t0}, 9, {t0}")
        A(f"v_bfe_u32 {t1}, {L}, 2, 2\nv_lshl_add_u32 {t0}, {t1}, 6, {t0}")
        A(f"v_bfe_u32 {t1}, {L}, 4, 1\nv_lshl_add_u32 {t0}, {t1}, 5, {t0}")
        A(f"v_and_b32 {t1}, 3, {L}\nv_lshl_add_u32 {t0}, {t1}, 3, {t0}")
        A(f"s_lshl_b32 s3, s{S_HH}, 11\ns_add_u32 s3, s3, {PHI}\nv_add_u32 {t0}, s3, {t0}")
        for j in range(2):
            for rd in range(2):
                A(f"ds_read_b64_tr_b16 {vr(V_PHI + 4*j + 2*rd, 2)}, {t0} offset:{1024*j + 256*rd}")

    def unit_S0(self, frag, P):
        return [f"{MF32} {vr(P,16)}, {vr(V_PHI,4)}, {vr(frag,4)}, 0", f"{MF32} {vr(P,16)}, {vr(V_PHI+4,4)}, {vr(frag+4,4)}, {vr(P,16)}"]
    def unit_S1(self, P):
        a, b = V_ST, V_ST + 1
        out = [f"v_max3_f32 v{a}, v{P}, v{P+1}, v{P+2}", f"v_max3_f32 v{b}, -v{P}, -v{P+1}, -v{P+2}"]
        for k in range(3, 15, 2):
            out += [f"v_max3_f32 v{a}, v{a}, v{P+k}, v{P+k+1}", f"v_max3_f32 v{b}, v{b}, -v{P+k}, -v{P+k+1}"]
        out += [f"v_max_f32 v{a}, v{a}, v{P+15}", f"v_max_f32 v{b}, v{b}, -v{P+15}"]
        out += [f"v_permlane32_swap_b32 v{a}, v{b}", f"v_max_f32 v{a}, v{a}, v{b}", f"v_mul_f32 v{a}, 0xbfb8aa3b, v{a}", f"v_mov_b32 v{b}, v{a}",
                f"v_permlane32_swap_b32 v{a}, v{b}"]
        return out
    def unit_S2(self, P, E):
        st = vr(V_ST, 2); c = f"s[{S_L2E}:{S_L2E+1}]"
        out = [f"v_pk_fma_f32 {vr(E+2*k,2)}, {vr(P+2*k,2)}, {c}, {st} op_sel_hi:[1,1,0]" for k in range(8)]
        out += [f"v_pk_fma_f32 {vr(P+2*k,2)}, {vr(P+2*k,2)}, {c}, {st} op_sel:[0,0,1] op_sel_hi:[1,1,1] neg_lo:[1,0,0] neg_hi:[1,0,0]" for k in range(8)]
        return out
    def unit_S3(self, P, E):
        return [f"v_exp_f32 v{E+k}, v{E+k}" for k in range(16)] + [f"v_exp_f32 v{P+k}, v{P+k}" for k in range(16)]
    def unit_S4(self, P, E):
        ta, tb, tc, td = V_ST + 2, V_ST + 4, V_ST + 6, V_ST + 8
        out = [f"v_pk_add_f32 {vr(ta,2)}, {vr(E,2)}, {vr(E+2,2)}", f"v_pk_add_f32 {vr(tc,2)}, {vr(E+4,2)}, {vr(E+6,2)}"]
        for k in (8, 12): out += [f"v_pk_add_f32 {vr(ta,2)}, {vr(ta,2)}, {vr(E+k,2)}", f"v_pk_add_f32 {vr(tc,2)}, {vr(tc,2)}, {vr(E+k+2,2)}"]
        out += [f"v_pk_add_f32 {vr(ta,2)}, {vr(ta,2)}, {vr(tc,2)}"]
        out += [f"v_pk_add_f32 {vr(tb,2)}, {vr(P,2)}, {vr(P+2,2)}", f"v_pk_add_f32 {vr(td,2)}, {vr(P+4,2)}, {vr(P+6,2)}"]
        for k in (8, 12): out += [f"v_pk_add_f32 {vr(tb,2)}, {vr(tb,2)}, {vr(P+k,2)}", f"v_pk_add_f32 {vr(td,2)}, {vr(td,2)}, {vr(P+k+2,2)}"]
        out += [f"v_pk_add_f32 {vr(tb,2)}, {vr(tb,2)}, {vr(td,2)}"]
        a, b = V_ST, V_ST + 1
        out += [f"v_add_f32 v{a}, v{ta}, v{ta+1}", f"v_add_f32 v{b}, v{tb}, v{tb+1}"]
        out += [f"v_permlane32_swap_b32 v{a}, v{b}", f"v_add_f32 v{a}, v{a}, v{b}", f"v_rcp_f32 v{a}, v{a}", f"v_mov_b32 v{b}, v{a}",
                f"v_permlane32_swap_b32 v{a}, v{b}"]
        return out
    def unit_S5a(self, P, E):
        st = vr(V_ST, 2)
        out = [f"v_pk_mul_f32 {vr(E+2*k,2)}, {vr(E+2*k,2)}, {st} op_sel_hi:[1,0]" for k in range(8)]
        out += [f"v_pk_mul_f32 {vr(P+2*k,2)}, {vr(P+2*k,2)}, {st} op_sel:[0,1] op_sel_hi:[1,1]" for k in range(8)]
        return out
    def unit_S5b(self, P, E, F0, F1):
        return [f"v_cvt_pk_bf16_f32 v{F0+k}, v{E+2*k}, v{E+2*k+1}" for k in range(8)] + [f"v_cvt_pk_bf16_f32 v{F1+k}, v{P+2*k}, v{P+2*k+1}" for k in range(8)]

    def interleave(self, main, extra, start=0, every=1):
        k = 0
        for idx, x in enumerate(main):
            self.em(x)
            if idx >= start and (idx - start) % every == 0 and k < len(extra):
                e = extra[k]; k += 1
                for y in (e if isinstance(e, list) else [e]): self.em(y)
        for e in extra[k:]:
            for y in (e if isinstance(e, list) else [e]): self.em(y)

    def wo_setup(self):
        A = self.A; L = f"v{V_LANE}"; t0, t1 = f"v{V_T}", f"v{V_T+1}"
        V = V_XD
        A(f"s_lshr_b32 s{S_T0}, s{S_J}, 2\ns_lshl_b32 s{S_T0}, s{S_T0}, 8\ns_lshl_b32 s3, s{S_W}, 6\ns_add_u32 s{S_T0}, s{S_T0}, s3")
        A(f"v_lshrrev_b32 {t0}, 2, {L}\nv_lshlrev_b32 {t0}, 11, {t0}\nv_add_u32 {t0}, s{S_T0}, {t0}")
        A(f"v_bfe_u32 {t1}, {L}, 4, 1\nv_lshlrev_b32 {t1}, 1, {t1}\nv_xor_b32 {t1}, {t1}, {L}\nv_and_b32 {t1}, 3, {t1}")
        A(f"v_lshl_add_u32 v{V}, {t1}, 4, {t0}")
        for i in range(1, 4): A(f"v_add_u32 v{V+i}, {32768-1024}, v{V+i-1}")
        A(f"s_add_u32 s{S_MX}, s{S_W}, 1\ns_lshl_b32 s{S_MX}, s{S_MX}, 15\ns_mov_b32 s{S_KX}, 0")
        A(f"v_lshrrev_b32 {t0}, 5, {L}\nv_lshlrev_b32 {t0}, 10, {t0}\nv_add_u32 {t0}, s{S_MX}, {t0}")
        A(f"v_bfe_u32 {t1}, {L}, 4, 1\nv_mul_u32_u24 {t1}, {256+32}, {t1}\nv_add_u32 {t0}, {t0}, {t1}")
        A(f"v_bfe_u32 {t1}, {L}, 2, 2\nv_lshl_add_u32 {t0}, {t1}, 6, {t0}")
        A(f"v_and_b32 {t1}, 3, {L}\nv_lshl_add_u32 v{V+4}, {t1}, 3, {t0}\nv_xor_b32 v{V+5}, 32, v{V+4}")
    def wo_dma(self, rnd):
        out = []
        if self.o.get("nowodma"):
            self.vm_done.append(("wo", rnd))
            return ["s_nop 0"] * 48
        for grp in range(8):
            ops = [f"s_add_u32 m0, s{S_MX}, {4096*grp}" if grp else f"s_mov_b32 m0, s{S_MX}"]
            out.append(ops[0])
            for i in range(4):
                out.append(("vm", ("wo", rnd), f"buffer_load_dwordx4 v{V_XD+i}, {srd(SRD_WO)}, s{S_KX} offen offset:{1024*i} lds"))
            out.append(f"s_add_u32 s{S_KX}, s{S_KX}, {64*2048}")
        return out
    def wo_reads(self, rnd):
        out = []
        for kb in range(16):
            for nb in range(2):
                for rd in range(2):
                    out.append(f"ds_read_b64_tr_b16 {ar(128*rnd + 8*kb + 4*nb + 2*rd, 2)}, v{V_XD+4+nb} offset:{2048*kb + 512*rd}")
        return out

    def e1(self):
        A = self.A; o = self.o; em = self.em
        L = f"v{V_LANE}"; t0, t1 = f"v{V_T}", f"v{V_T+1}"
        V_TW, V_TR = V_WD, V_WD + 1
        KVO, ZO = 160, 176
        WSET = [(32, 48), (96, 112)]
        A(f"s_mul_i32 s3, s{S_RH}, 0x80008000")
        for k in range(8): A(f"v_xor_b32 v{V_PHI+k}, s3, v{V_PHI+k}")
        for x in self.unit_S0(ACC[1], WSET[0][0]): A(x)
        self.wo_setup()
        A(f"s_lshl_b32 s{S_T1}, s{S_W}, 13")
        A(f"v_and_b32 {t0}, 31, {L}\nv_mul_u32_u24 {t0}, {TSTR}, {t0}\nv_lshrrev_b32 {t1}, 5, {L}\nv_lshl_add_u32 {t0}, {t1}, 3, {t0}\nv_add_u32 v{V_TW}, s{S_T1}, {t0}")
        A(f"v_lshlrev_b32 {t0}, 3, {t1}\nv_bfe_u32 {t1}, {L}, 2, 2\nv_add_u32 {t0}, {t0}, {t1}\nv_mul_u32_u24 {t0}, {TSTR}, {t0}")
        A(f"v_bfe_u32 {t1}, {L}, 4, 1\nv_lshl_add_u32 {t0}, {t1}, 5, {t0}\nv_and_b32 {t1}, 3, {L}\nv_lshl_add_u32 {t0}, {t1}, 3, {t0}\nv_add_u32 v{V_TR}, s{S_T1}, {t0}")
        dma = self.wo_dma(0)
        def kv_mfmas(u):
            out = []
            for sg in (1, 0):
                kv = ar(A_KVX, 16) if sg else vr(KVO, 16)
                z = ar(A_ZX, 16) if sg else vr(ZO, 16)
                for j in range(2):
                    T = ar(A_T + 8 * sg + 4 * j, 4)
                    first = (u == 0 and j == 0)
                    out.append(f"{MF32} {kv}, {T}, {vr(ACC[2] + 8*u + 4*j, 4)}, {'0' if first else kv}")
                    out.append(f"{MF32} {z}, {T}, {vr(V_ONE,4)}, {'0' if first else z}")
            return out
        for u in range(4):
            P, E = WSET[u % 2]
            for x in self.unit_S1(P) + self.unit_S2(P, E): A(x)
            ex = []
            prev = kv_mfmas(u - 1) if u else []
            d = dma[12 * u:12 * u + 12]
            s3 = self.unit_S3(P, E)
            if prev: A("s_waitcnt lgkmcnt(0)")
            for k, x in enumerate(s3):
                A(x)
                if k % 4 == 0 and prev: A(prev[k // 4])
                if k % 4 == 2 and d: em(d.pop(0))
                if k % 8 == 3 and d: em(d.pop(0))
            assert not d
            for x in self.unit_S4(P, E) + self.unit_S5a(P, E): A(x)
            s5 = self.unit_S5b(P, E, E, E + 8)
            nxt = self.unit_S0(ACC[1] + 8 * (u + 1), WSET[(u + 1) % 2][0]) if u < 3 else []
            self.interleave(s5, nxt, start=0, every=6)
            for sg in range(2):
                for q in range(4):
                    A(f"ds_write_b64 v{V_TW}, {vr(E + 8*sg + 2*q, 2)} offset:{64*sg + 16*q}")
            for sg in (1, 0):
                for j in range(2):
                    for rd in range(2):
                        A(f"ds_read_b64_tr_b16 {ar(A_T + 8*sg + 4*j + 2*rd, 2)}, v{V_TR} offset:{64*sg + (16*j + 4*rd)*TSTR}")
        self.stamp("e1 units")
        A("s_waitcnt lgkmcnt(0)")
        last = kv_mfmas(3)
        V_XW, V_XR, V_ZW, V_ZR = V_XA, V_XA + 1, V_XA + 2, V_XA + 3
        for x in last[:4]: A(x)
        A(f"v_lshlrev_b32 {t0}, 4, {L}\nv_add_u32 v{V_XW}, s{S_T1}, {t0}\nv_xor_b32 v{V_XR}, 16384, v{V_XW}")
        A(f"v_lshrrev_b32 {t0}, 5, {L}\nv_lshlrev_b32 {t0}, 4, {t0}\nv_add_u32 v{V_ZW}, s{S_T1}, {t0}\nv_xor_b32 v{V_ZR}, 16384, v{V_ZW}")
        for x in last[4:]: A(x)
        for q in range(4): A(f"ds_write_b128 v{V_XW}, {ar(A_KVX + 4*q, 4)} offset:{X1_OFF + 1024*q}")
        A(f"s_mov_b32 exec_lo, 1\ns_mov_b32 exec_hi, 1")
        for q in range(4): A(f"ds_write_b128 v{V_ZW}, {ar(A_ZX + 4*q, 4)} offset:{X1Z_OFF + 32*q}")
        A("s_mov_b64 exec, -1")
        A("s_waitcnt lgkmcnt(0)\ns_barrier")
        R = 96
        for q in range(4): A(f"ds_read_b128 {vr(R + 4*q, 4)}, v{V_XR} offset:{X1_OFF + 1024*q}")
        for q in range(4): A(f"ds_read_b128 {vr(R + 16 + 4*q, 4)}, v{V_ZR} offset:{X1Z_OFF + 32*q}")
        A(f"s_lshl_b32 s{S_T0}, s{S_B}, 5\ns_add_u32 s{S_T0}, s{S_T0}, s{S_HEAD}\ns_lshl_b32 s{S_T0}, s{S_T0}, 3\ns_add_u32 s{S_T0}, s{S_T0}, s{S_R}")
        A(f"s_lshl_b32 s{S_T0}, s{S_T0}, 1\ns_add_u32 s{S_T0}, s{S_T0}, s{S_RH}")
        A(f"s_lshl_b32 s{S_T2}, s{S_T0}, 6\ns_add_u32 s{S_T2}, s{S_T2}, {WS_Z}\ns_lshl_b32 s{S_T0}, s{S_T0}, 11")
        A(f"v_lshlrev_b32 {t1}, 4, {L}")
        A("s_waitcnt lgkmcnt(4)")
        for k in range(8): A(f"v_pk_add_f32 {vr(KVO+2*k,2)}, {vr(KVO+2*k,2)}, {vr(R+2*k,2)}")
        for k in range(8): A(f"v_cvt_pk_bf16_f32 v{KVO+k}, v{KVO+2*k}, v{KVO+2*k+1}")
        for j in range(2): em(("vm", "pub1", f"buffer_store_dwordx4 {vr(KVO+4*j,4)}, {t1}, {srd(SRD_WS)}, s{S_T0} offen offset:{1024*j} sc1"))
        A("s_waitcnt lgkmcnt(0)")
        for k in range(8): A(f"v_pk_add_f32 {vr(ZO+2*k,2)}, {vr(ZO+2*k,2)}, {vr(R+16+2*k,2)}")
        for k in range(8): A(f"v_cvt_pk_bf16_f32 v{ZO+k}, v{ZO+2*k}, v{ZO+2*k+1}")
        A(f"s_mov_b32 exec_lo, 1\ns_mov_b32 exec_hi, 1")
        for j in range(2): em(("vm", "pub1", f"buffer_store_dwordx4 {vr(ZO+4*j,4)}, {t0}, {srd(SRD_WS)}, s{S_T2} offen offset:{32*j} sc1"))
        A("s_mov_b64 exec, -1")
        self.stamp("pub1")

    def flag_store(self, fn, tags):
        A = self.A
        fn(S_T0)
        self.em(("wait", tags, ""))
        A(f"s_mov_b64 exec, 1")
        self.em(("vm", "flag", f"buffer_store_dwordx2 {vr(V_CNT,2)}, off, {srd(SRD_WS)}, s{S_T0} sc1"))
        A("s_mov_b64 exec, -1")

    def poll(self, soff, nlanes):
        A = self.A
        lab, done = self.label("poll"), self.label("pdone")
        A(f"v_lshlrev_b32 v{V_T+6}, 3, v{V_LANE}\ns_mov_b32 s{S_SPIN}, 0")
        A("s_mov_b32 exec_hi, 0")
        if nlanes < 32: A(f"s_mov_b32 exec_lo, {(1 << nlanes) - 1}")
        A(f"{lab}:")
        A(f"buffer_load_dwordx2 {vr(V_T+2,2)}, v{V_T+6}, {srd(SRD_WS)}, {soff} offen sc1")
        A(f"s_add_u32 s{S_SPIN}, s{S_SPIN}, 1")
        A("s_waitcnt vmcnt(0)")
        A(f"v_cmp_ne_u64 vcc, s[{S_NON}:{S_NON+1}], {vr(V_T+2,2)}")
        A(f"s_cmp_ge_u32 s{S_SPIN}, {SPIN_MAX}\ns_cbranch_scc1 {done}")
        A(f"s_nop 4\ns_cbranch_vccnz {lab}")
        A(f"{done}:\ns_mov_b64 exec, -1")
        self.vm_done += self.vm; self.vm = []

    FQ = [64, 80, 128, 144]
    def e2(self):
        A = self.A; o = self.o; em = self.em
        WSET = [(32, 48), (96, 112)]
        self.em(("wait", [("wo", 0)], ""))
        r1 = self.wo_reads(0)
        for x in self.unit_S0(ACC[0], WSET[0][0]): A(x)
        for x in r1: A(x)
        self.stamp("r1")
        dma = self.wo_dma(1)
        for u in range(4):
            P, E = WSET[u % 2]
            for x in self.unit_S1(P) + self.unit_S2(P, E): A(x)
            d = dma[16 * (u - 1):16 * u] if u else []
            if u == 1: A("s_waitcnt lgkmcnt(0)")
            for k, x in enumerate(self.unit_S3(P, E)):
                A(x)
                if k % 2 == 1 and d: em(d.pop(0))
            assert not d
            for x in self.unit_S4(P, E) + self.unit_S5a(P, E): A(x)
            s5 = self.unit_S5b(P, E, self.FQ[u], self.FQ[u] + 8)
            nxt = self.unit_S0(ACC[0] + 8 * (u + 1), WSET[(u + 1) % 2][0]) if u < 3 else []
            self.interleave(s5, nxt, start=0, every=6)
            if u == 0:
                self.get_nonce()
                self.flag_store(self.f1w, ["pub1"])
        self.stamp("e2")

    def e3(self):
        A = self.A; o = self.o; em = self.em
        L = f"v{V_LANE}"; t0, t1 = f"v{V_T}", f"v{V_T+1}"
        V_XW, V_XR = V_XA, V_XA + 1
        A(f"s_lshl_b32 s{S_T1}, s{S_B}, 5\ns_add_u32 s{S_T1}, s{S_T1}, s{S_HEAD}")
        A(f"s_lshl_b32 s{S_T2}, s{S_T1}, 10\ns_add_u32 s{S_T2}, s{S_T2}, {WS_Z}")
        A(f"s_lshl_b32 s{S_T1}, s{S_T1}, 15\ns_lshl_b32 s3, s{S_RH}, 11\ns_add_u32 s{S_T1}, s{S_T1}, s3")
        A(f"v_lshlrev_b32 {t0}, 4, {L}")
        tz = f"v{V_T+4}"; tz2 = f"v{V_T+5}"
        A(f"v_bfe_u32 {t1}, {L}, 3, 1\nv_lshlrev_b32 {t1}, 2, {t1}\nv_and_b32 {tz}, 3, {L}\nv_add_u32 {tz}, {tz}, {t1}\nv_lshlrev_b32 {tz}, 7, {tz}")
        A(f"v_lshrrev_b32 {t1}, 5, {L}\nv_lshl_add_u32 {tz}, {t1}, 4, {tz}\ns_lshl_b32 s3, s{S_RH}, 6\nv_add_u32 {tz}, s3, {tz}\nv_xor_b32 {tz2}, 64, {tz}")
        self.f1base(S_T0)
        self.poll(f"s{S_T0}", 8)
        self.stamp("sync1")
        PL, ZF, S, KVF = 0, 96, 112, 160
        for r in range(8):
            for j in range(2):
                em(("vm", ("pl", r), f"buffer_load_dwordx4 {vr(PL + 8*r + 4*j, 4)}, {t0}, {srd(SRD_WS)}, s{S_T1} offen offset:{1024*j} sc1"))
            if r < 7: A(f"s_add_u32 s{S_T1}, s{S_T1}, 4096")
        for sl in range(2):
            for j in range(2):
                em(("vm", "zl", f"buffer_load_dwordx4 {vr(ZF + 8*sl + 4*j, 4)}, {tz2 if sl else tz}, {srd(SRD_WS)}, s{S_T2} offen offset:{32*j} sc1"))
        for r in range(8):
            em(("wait", [("pl", r)], ""))
            for j in range(2):
                A(f"{MF32} {vr(S,16)}, {vr(V_ID + 4*j, 4)}, {vr(PL + 8*r + 4*j, 4)}, {'0' if r + j == 0 else vr(S,16)}")
        A(f"s_lshl_b32 s{S_T1}, s{S_B}, 4\ns_lshl_b32 s3, s{S_R}, 1\ns_add_u32 s{S_T1}, s{S_T1}, s3\ns_add_u32 s{S_T1}, s{S_T1}, s{S_RH}")
        A(f"s_lshl_b32 s{S_T1}, s{S_T1}, 5\ns_add_u32 s{S_T1}, s{S_T1}, s{S_HEAD}\ns_lshl_b32 s{S_T1}, s{S_T1}, 13\ns_add_u32 s{S_T1}, s{S_T1}, {WS_O}")
        A(f"v_bfe_u32 {t0}, {L}, 4, 1\nv_lshlrev_b32 {t0}, 10, {t0}\nv_lshrrev_b32 {t1}, 5, {L}\nv_lshl_add_u32 {t0}, {t1}, 8, {t0}\nv_and_b32 {t1}, 15, {L}\nv_lshl_add_u32 {t0}, {t1}, 4, {t0}")
        for k in range(8): A(f"v_cvt_pk_bf16_f32 v{KVF+k}, v{S+2*k}, v{S+2*k+1}")
        for j in range(2): A(f"ds_write_b128 v{V_XW}, {vr(KVF + 4*j, 4)} offset:{X2_OFF + 1024*j}")
        A("s_waitcnt lgkmcnt(0)\ns_barrier")
        for j in range(2): A(f"ds_read_b128 {vr(KVF + 8 + 4*j, 4)}, v{V_XR} offset:{X2_OFF + 1024*j}")
        em(("wait", ["zl"], ""))
        self.stamp("kvsum")
        SETS = [(0, 16), (32, 48)]
        def mm(u):
            N, D = SETS[u % 2]; F = self.FQ[u]
            den = [f"{MF32} {vr(D,16)}, {vr(ZF + 4*k, 4)}, {vr(F + 4*k, 4)}, {'0' if k == 0 else vr(D,16)}" for k in range(4)]
            num = [f"{MF32} {vr(N,16)}, {vr(KVF + 4*k, 4)}, {vr(F + 4*k, 4)}, {'0' if k == 0 else vr(N,16)}" for k in range(4)]
            return den, num
        def fin(u):
            N, D = SETS[u % 2]
            a = [f"v_add_f32 v{D}, v{D}, v{D+1}", f"v_add_f32 v{D+2}, v{D+2}, v{D+3}", f"v_add_f32 v{D+4}, v{D+4}, v{D+5}", f"v_add_f32 v{D+6}, v{D+6}, v{D+7}",
                 f"v_add_f32 v{D}, v{D}, v{D+2}", f"v_add_f32 v{D+4}, v{D+4}, v{D+6}", f"v_add_f32 v{D}, v{D}, v{D+4}", f"v_add_f32 v{D}, 0x358637bd, v{D}",
                 f"v_rcp_f32 v{D}, v{D}"]
            b = [f"v_mul_f32 v{N+k}, v{N+k}, v{D}" for k in range(16)]
            b += [f"v_cvt_pk_bf16_f32 v{N+k}, v{N+2*k}, v{N+2*k+1}" for k in range(8)]
            b += [("vm", "pub2", f"buffer_store_dwordx4 {vr(N+4*j,4)}, {t0}, {srd(SRD_WS)}, s{S_T1} offen offset:{2048*(u%2) + 512*j} sc1") for j in range(2)]
            if u == 1: b.append(f"s_add_u32 s{S_T1}, s{S_T1}, 4096")
            return a, b
        d0, n0 = mm(0)
        for x in d0: A(x)
        A("s_waitcnt lgkmcnt(0)")
        for x in n0: A(x)
        for u in range(4):
            a, b = fin(u)
            if u < 3:
                d, n = mm(u + 1)
                self.interleave(a + b[:24], d + n, start=0, every=4)
                for x in b[24:]: em(x)
            else:
                for x in a + b: em(x)
        self.stamp("e3")
        r2 = self.wo_reads(1)
        h = o.get("r2split", 64)
        for x in r2[:h]: A(x)
        self.flag_store(self.f2w, ["pub2"])
        for x in r2[h:]: A(x)
        self.stamp("pub2")

    def gemm2(self):
        A = self.A; o = self.o; em = self.em
        L = f"v{V_LANE}"; t0, t1 = f"v{V_T}", f"v{V_T+1}"
        V_OD, V_OA, V_OUT, OF = V_WD, V_XA, V_WD + 1, 64
        NS = 10
        A(f"s_and_b32 s{S_T2}, s{S_XCD}, 3\ns_lshl_b32 s{S_T2}, s{S_T2}, 2\ns_and_b32 s3, s{S_J}, 3\ns_add_u32 s{S_T2}, s{S_T2}, s3")
        A(f"s_lshl_b32 s{S_T1}, s{S_B}, 4\ns_add_u32 s{S_T1}, s{S_T1}, s{S_T2}")
        A(f"s_lshl_b32 s{S_T0}, s{S_T1}, 8\ns_add_u32 s{S_T0}, s{S_T0}, {WS_F2}")
        A(f"s_lshl_b32 s{S_KX}, s{S_T1}, 18\ns_add_u32 s{S_KX}, s{S_KX}, {WS_O}")
        A(f"s_lshl_b32 s{S_MX}, s{S_W}, 12")
        A(f"v_lshlrev_b32 v{V_OA}, 4, {L}\nv_add_u32 v{V_OD}, s{S_MX}, v{V_OA}")
        A(f"v_add_u32 v{V_OA+1}, 0x10000, v{V_OA}\nv_add_u32 v{V_OA+2}, 0x20000, v{V_OA}")
        A(f"s_lshl_b32 s{S_KW}, s{S_T2}, 19\ns_lshl_b32 s3, s{S_B}, 11\ns_add_u32 s{S_KW}, s{S_KW}, s3")
        A(f"s_lshr_b32 s3, s{S_J}, 2\ns_lshl_b32 s3, s3, 8\ns_add_u32 s{S_KW}, s{S_KW}, s3\ns_lshl_b32 s3, s{S_W}, 6\ns_add_u32 s{S_KW}, s{S_KW}, s3")
        A(f"v_and_b32 {t0}, 15, {L}\nv_lshlrev_b32 {t0}, 12, {t0}\nv_bfe_u32 {t1}, {L}, 4, 1\nv_lshl_add_u32 {t0}, {t1}, 5, {t0}\nv_lshrrev_b32 {t1}, 5, {L}\nv_lshl_add_u32 v{V_OUT}, {t1}, 4, {t0}")
        A("s_waitcnt lgkmcnt(0)\ns_barrier")
        self.poll(f"s{S_T0}", 32)
        self.stamp("sync2")
        def dma(i):
            base = 16384 * (i % NS)
            out = [f"s_add_u32 m0, s{S_MX}, {base}" if base else f"s_mov_b32 m0, s{S_MX}"]
            out += [("vm", ("o", i), f"buffer_load_dwordx4 v{V_OD}, {srd(SRD_WS)}, s{S_KX} offen offset:{1024*k} sc1 lds") for k in range(4)]
            out.append(f"s_add_u32 s{S_KX}, s{S_KX}, 16384")
            return out
        def reads(gm):
            i, m = divmod(gm, 8)
            off = 16384 * (i % NS) + 1024 * m
            return [f"ds_read_b128 {vr(OF + 8*(gm%4) + 4*s, 4)}, v{V_OA + (off + 8192*s) // 65536} offset:{(off + 8192*s) % 65536}" for s in range(2)]
        def mf(i, m):
            out = []
            nbs = (0, 1) if m % 2 == 0 else (1, 0)
            for k, nb in enumerate(nbs):
                for q, s in enumerate((0, 1) if k == 0 else (1, 0)):
                    d = vr(8 * m + 4 * nb, 4)
                    out.append(f"{MF16} {d}, {ar(8*(2*i+s) + 4*nb, 4)}, {vr(OF + 8*((8*i+m)%4) + 4*s, 4)}, {'0' if i == 0 and q == 0 else d}")
            return out
        def fin(m):
            b = 8 * m
            return [f"v_cvt_pk_bf16_f32 v{b}, v{b}, v{b+1}", f"v_cvt_pk_bf16_f32 v{b+1}, v{b+2}, v{b+3}",
                    f"v_cvt_pk_bf16_f32 v{b+2}, v{b+4}, v{b+5}", f"v_cvt_pk_bf16_f32 v{b+3}, v{b+6}, v{b+7}",
                    f"v_permlane16_swap_b32 v{b}, v{b+2}", f"v_permlane16_swap_b32 v{b+1}, v{b+3}",
                    ("vm", "out", f"buffer_store_dwordx4 {vr(b,4)}, v{V_OUT}, {srd(SRD_OUT)}, s{S_KW} offen"), f"s_add_u32 s{S_KW}, s{S_KW}, 0x10000"]
        npre = o.get("g2pre", 3)
        for i in range(npre):
            for x in dma(i): em(x)
        nxt = npre
        em(("wait", [("o", 0)], "")); A("s_barrier")
        self.stamp("o first")
        for gm in range(3):
            for r in reads(gm): A(r)
        rate = o.get("g2rate", 1.5)
        acc = 0.0
        for i in range(16):
            fill = [[] for _ in range(32)]
            pre = {0: "s_waitcnt lgkmcnt(4)", 4: "s_waitcnt lgkmcnt(4)", 8: "s_waitcnt lgkmcnt(4)", 12: "s_waitcnt lgkmcnt(4)", 16: "s_waitcnt lgkmcnt(4)", 20: "s_waitcnt lgkmcnt(0)"}
            for m in range(8):
                gm = 8 * i + m + 3
                if gm < 128:
                    for k, r in enumerate(reads(gm)): fill[4 * m + 1 + k].append(r)
            if i < 15:
                fill[20].insert(0, ("wait", [("o", i + 1)], "")); fill[20].insert(1, "s_barrier")
            acc += rate
            ops = []
            while acc >= 1 and nxt < 16 and (nxt - NS) < i:
                ops += dma(nxt); nxt += 1; acc -= 1
            slots = [g for g in range(0, 20) if len(fill[g]) == 0] + [g for g in range(0, 20) if len(fill[g]) == 1 and g + 1 not in pre]
            slots = sorted(slots[:max(len(ops), 0)])
            assert len(slots) >= len(ops)
            for g, x in zip(slots, ops): fill[g].append(x)
            if i == 15:
                for m in range(6):
                    ops = fin(m)
                    for k, x in enumerate(ops): fill[4 * (m + 2) + k // 2].append(x)
            g = 0
            for m in range(8):
                for x in mf(i, m):
                    if g in pre: A(pre[g])
                    A(x)
                    for y in fill[g]: em(y)
                    g += 1
        assert nxt == 16
        for m in (6, 7):
            for x in fin(m): em(x)
        self.stamp("g2end")

    def diag_out(self):
        if not self.o.get("diag"): return
        A = self.A
        A("s_waitcnt vmcnt(0)")
        self.stamp("end")
        A("s_memrealtime s[68:69]")
        A("s_waitcnt lgkmcnt(0)")
        A(f"s_lshl_b32 s3, s2, 2\ns_add_u32 s3, s3, s{S_W}\ns_lshl_b32 s3, s3, 7\ns_add_u32 s3, s3, {WS_DIAG}")
        vals = ["s66", "s68"] + [f"s{S_STAMP+2*k}" for k in range(self.nstamp)]
        A(f"v_mov_b32 v{V_T+1}, 0")
        for k, s in enumerate(vals):
            A(f"v_mov_b32 v{V_T}, {s}")
            A(f"buffer_store_dword v{V_T}, v{V_T+1}, {srd(SRD_WS)}, s3 offen offset:{4*k}")

    def build(self):
        A = self.A
        self.prologue()
        self.phase1()
        if not self.o.get("p1only"):
            self.e1(); self.e2(); self.e3(); self.gemm2()
        self.diag_out()
        A("L_END:\ns_endpgm")
        body, info = A.finish(verbose=self.o.get("verbose"))
        hdr = open("concat_heads__linear_kernel_hedgehog__linear_kernel_hedgehog__prompt.s.ref").read().split("; Override")[0]
        txt = hdr + f"""; @launch grid=(256,1,1) block=(256,1,1) lds={LDS_BYTES}
.amdgcn_target "amdgcn-amd-amdhsa--gfx950"
.text
.globl {KNAME}
.p2align 8
.type {KNAME},@function
{KNAME}:
{body}
.section .rodata,"a"
.p2align 6
.amdhsa_kernel {KNAME}
  .amdhsa_next_free_vgpr 512
  .amdhsa_next_free_sgpr 102
  .amdhsa_accum_offset 256
  .amdhsa_group_segment_fixed_size 0
  .amdhsa_kernarg_size 88
  .amdhsa_user_sgpr_count 2
  .amdhsa_user_sgpr_kernarg_segment_ptr 1
  .amdhsa_system_sgpr_workgroup_id_x 1
.end_amdhsa_kernel
"""
        return txt, info

if __name__ == "__main__":
    out = sys.argv[1]
    opt = {}
    for a in sys.argv[2:]:
        k, v = a.split("=", 1)
        opt[k] = eval(v)
    g = Gen(opt)
    txt, info = g.build()
    open(out, "w").write(txt)
    json.dump(dict(stamps=g.stamp_names, opt={k: str(v) for k, v in opt.items()}), open(out + ".json", "w"))
    print(out, info, len(g.stamp_names))
```

```python
import re, subprocess, os, tempfile
MC = "llvm-mc"

REG_RE = re.compile(r"(?<![\w.])([vas])(?:(\d+)\b|\[(\d+):(\d+)\])")
TRANS = ("v_exp_", "v_log_", "v_rcp_", "v_rsq_", "v_sqrt_", "v_sin_", "v_cos_")

def regs_of(tok):
    out = set()
    for m in REG_RE.finditer(tok):
        k = m.group(1)
        if m.group(2) is not None:
            out.add((k, int(m.group(2))))
        else:
            for i in range(int(m.group(3)), int(m.group(4)) + 1):
                out.add((k, i))
    for name in ("vcc", "m0", "exec"):
        if re.search(r"(?<![\w])" + name + r"(?![\w])", tok) or re.search(r"(?<![\w])" + name + r"_(lo|hi)", tok):
            out.add((name, 0))
    return out

def split_ops(s):
    ops, depth, cur = [], 0, ""
    for ch in s:
        if ch in "[(": depth += 1
        if ch in "])": depth -= 1
        if ch == "," and depth == 0:
            ops.append(cur.strip()); cur = ""
        else:
            cur += ch
    if cur.strip(): ops.append(cur.strip())
    return ops

class Ins:
    __slots__ = ("text", "op", "kind", "wr", "rd", "srcC", "srcAB", "passes", "trans", "size", "stdata", "nopn", "ldsdma")
    def __init__(self, text):
        self.text = text
        t = text.split(";")[0].strip()
        self.size = None
        if t.endswith(":") or t.startswith(".") or not t:
            self.op = None; self.kind = "meta"; return
        parts = t.split(None, 1)
        op = parts[0]; self.op = op
        ops = split_ops(parts[1]) if len(parts) > 1 else []
        self.wr = set(); self.rd = set(); self.srcC = set(); self.srcAB = set(); self.passes = 0
        self.trans = op.startswith(TRANS); self.stdata = set(); self.nopn = 0; self.ldsdma = False
        R = [regs_of(o) for o in ops]
        if op.startswith("v_mfma"):
            self.kind = "mfma"
            self.wr = R[0]; self.srcAB = R[1] | R[2]; self.srcC = R[3]
            self.rd = self.srcAB | self.srcC
            self.passes = 8 if "32x32" in op else 4
        elif op.startswith("v_cmp"):
            self.kind = "valu"; self.wr = set(R[0]); self.rd = set().union(*R[1:]) if len(R) > 1 else set()
            if op.startswith("v_cmpx"): self.wr.add(("exec", 0))
        elif op.startswith("v_"):
            self.kind = "valu"
            self.wr = set(R[0]); self.rd = set().union(*R[1:]) if len(R) > 1 else set()
            if op.startswith(("v_fmac", "v_dot2c", "v_pk_fmac")): self.rd |= R[0]
            if op.startswith("v_permlane32_swap") or op.startswith("v_permlane16_swap"):
                self.wr |= R[1]; self.rd |= R[0]
            if op.startswith(("v_add_co", "v_sub_co", "v_addc_co", "v_subb_co", "v_subrev_co")):
                self.wr |= R[1]; self.rd = set().union(*R[2:])
            if op.startswith("v_writelane"): self.rd |= R[0]
            if op.startswith("v_cndmask") and len(ops) == 3: self.rd.add(("vcc", 0))
        elif op.startswith("ds_read") or op.startswith("ds_bpermute") or op.startswith("ds_swizzle"):
            self.kind = "ds"; self.wr = R[0]; self.rd = set().union(*R[1:])
        elif op.startswith("ds_"):
            self.kind = "ds"; self.rd = set().union(*R)
        elif op.startswith(("buffer_load", "global_load")):
            self.kind = "vmem"
            if re.search(r"\blds\b", t):
                self.ldsdma = True; self.rd = set().union(*R) | {("m0", 0)}
            else:
                self.wr = R[0]; self.rd = set().union(*R[1:])
        elif op.startswith(("buffer_store", "buffer_atomic")):
            self.kind = "vmem"; self.rd = set().union(*R)
            if "x4" in op or "x3" in op: self.stdata = R[0]
            if op.startswith("buffer_atomic") and re.search(r"\bsc0\b", t): self.wr = R[0]
        elif op.startswith(("global_store", "global_atomic")):
            self.kind = "vmem"; self.rd = set().union(*R)
            if "x4" in op or "x3" in op: self.stdata = R[1]
        elif op.startswith(("buffer_inv", "buffer_wbl2")):
            self.kind = "vmem"
        elif op.startswith(("s_load", "s_buffer_load", "s_memtime", "s_memrealtime")):
            self.kind = "smem"; self.wr = R[0]; self.rd = set().union(*R[1:]) if len(R) > 1 else set()
        elif op == "s_nop":
            self.kind = "salu"; self.nopn = int(ops[0], 0)
        elif op.startswith(("s_cbranch", "s_branch", "s_endpgm", "s_setpc", "s_swappc")):
            self.kind = "branch"; self.rd = set().union(*R) if R else set()
        elif op.startswith(("s_waitcnt", "s_barrier", "s_sleep", "s_setprio", "s_cmp", "s_bitcmp")):
            self.kind = "salu"; self.rd = set().union(*R) if R else set()
        elif op.startswith("s_"):
            self.kind = "salu"; self.wr = set(R[0]) if R else set(); self.rd = set().union(*R[1:]) if len(R) > 1 else set()
            if "saveexec" in op: self.wr.add(("exec", 0)); self.rd.add(("exec", 0))
        else:
            raise ValueError("unknown instr: " + text)

def isv(r): return r[0] in ("v", "a")
def iss(r): return r[0] in ("s", "vcc")

def need_states(p, c):
    n = 0
    if p.kind == "valu":
        wv = {r for r in p.wr if isv(r)}
        ws = {r for r in p.wr if iss(r)}
        if c.kind == "mfma" and wv & c.rd: n = max(n, 2)
        if c.kind == "valu":
            if c.op.startswith("v_permlane") and wv & c.rd: n = max(n, 2)
            if ("dpp" in c.text or "row_" in c.text or "quad_perm" in c.text) and wv & c.rd: n = max(n, 2)
            if c.op.startswith(("v_readlane", "v_readfirstlane")) and wv & c.rd: n = max(n, 1)
            if ws & c.rd: n = max(n, 4 if c.op.startswith(("v_readlane", "v_writelane")) else 2)
            if p.trans and not c.trans and (wv & c.rd): n = max(n, 1)
            if ("exec", 0) in p.wr: n = max(n, 5)
        if c.kind == "mfma" and ("exec", 0) in p.wr: n = max(n, 4)
        if c.kind in ("vmem",) and ws & c.rd: n = max(n, 5)
        if c.kind in ("salu", "branch", "smem") and ws & c.rd: n = max(n, 4)
        if p.trans and c.kind in ("mfma", "vmem", "ds") and wv & c.rd: n = max(n, 2 if c.kind == "mfma" else 1)
    if p.kind == "mfma":
        P = p.passes
        if c.kind == "mfma":
            if p.wr & c.srcAB: n = max(n, {4: 8, 8: 12}[P])
            if p.wr & c.srcC:
                if not (p.wr == c.srcC and p.passes == c.passes): n = max(n, {4: 6, 8: 10}[P])
            elif p.wr & c.wr: n = max(n, {4: 8, 8: 12}[P])
        elif c.kind in ("valu", "vmem", "ds"):
            if p.wr & (c.rd | c.wr): n = max(n, {4: 8, 8: 12}[P])
            if c.kind == "valu" and p.srcC & c.wr: n = max(n, {4: 3, 8: 7}[P])
    if p.kind == "salu" and ("m0", 0) in p.wr and c.kind == "vmem" and c.ldsdma: n = max(n, 1)
    if p.kind == "vmem" and p.stdata:
        if p.stdata & c.wr: n = max(n, 2)
    return n

MAXLOOK = 20
def fix_hazards(ins, verbose=False):
    out = []
    added = 0
    for c in ins:
        if c.kind == "meta":
            out.append(c); continue
        dist = 0; need = 0
        for p in reversed(out):
            if p.kind == "meta": continue
            k = need_states(p, c)
            if k > dist: need = max(need, k - dist)
            dist += 1 + (p.nopn if p.op == "s_nop" else 0)
            if dist >= MAXLOOK: break
        if need:
            added += need
            if verbose: print(f"hazard: +{need} before: {c.text}")
            while need > 0:
                k = min(need, 16)
                out.append(Ins(f"s_nop {k-1}")); need -= k
        out.append(c)
    return out, added

def sizes(ins):
    txt = '.amdgcn_target "amdgcn-amd-amdhsa--gfx950"\n.text\n' + "\n".join(i.text for i in ins) + "\n"
    with tempfile.NamedTemporaryFile("w", suffix=".s", delete=False) as f:
        f.write(txt); name = f.name
    r = subprocess.run([MC, "-triple=amdgcn-amd-amdhsa", "-mcpu=gfx950", "-show-encoding", name], capture_output=True, text=True)
    os.unlink(name)
    if r.returncode != 0:
        print(r.stderr[:4000]); raise SystemExit("assembly failed")
    encs = [l for l in r.stdout.splitlines() if "; encoding:" in l]
    real = [i for i in ins if i.kind != "meta"]
    assert len(encs) == len(real), (len(encs), len(real))
    for i, l in zip(real, encs):
        e = l.split("encoding:")[1]
        i.size = e.count(",") + 1
        i.op_enc = l.split()[0] if False else None

def promotable(i):
    if i.kind != "valu" or i.size != 4: return False
    if i.op.endswith("_e32") or i.op.startswith(("v_readfirstlane", "v_accvgpr", "v_nop", "v_dot2c", "v_cmpx")): return False
    if "dpp" in i.text or "sdwa" in i.text: return False
    return True

def fix_align(ins):
    class X: pass
    sizes_ok(ins)
    out = []; off = 0; pads = 0; promos = 0
    last4 = None
    for i in ins:
        if i.kind == "meta":
            t = i.text.strip()
            m = re.match(r"\.p2align\s+(\d+)", t)
            if m:
                a = 1 << int(m.group(1)); off = (off + a - 1) // a * a; last4 = None
            out.append(i); continue
        if i.size >= 8 and off % 8 == 4:
            if last4 is not None:
                p = out[last4]
                q = Ins(p.op + "_e64" + p.text[p.text.index(p.op) + len(p.op):]); q.size = 8
                out[last4] = q; promos += 1
            else:
                n = Ins("s_nop 0"); n.size = 4; out.append(n); pads += 1
            off += 4; last4 = None
        out.append(i)
        if i.size == 4:
            if off % 8 == 0:
                last4 = len(out) - 1 if promotable(i) else None
            else:
                last4 = None
        else:
            last4 = None
        off += i.size
    return out, pads, promos, off

def sizes_ok(ins):
    txt = '.amdgcn_target "amdgcn-amd-amdhsa--gfx950"\n.text\n' + "\n".join(i.text for i in ins) + "\n"
    with tempfile.NamedTemporaryFile("w", suffix=".s", delete=False) as f:
        f.write(txt); name = f.name
    r = subprocess.run([MC, "-triple=amdgcn-amd-amdhsa", "-mcpu=gfx950", "-show-encoding", name], capture_output=True, text=True)
    os.unlink(name)
    if r.returncode != 0:
        print(r.stderr[:4000]); raise SystemExit("assembly failed")
    encs = [l for l in r.stdout.splitlines() if "; encoding:" in l]
    real = [i for i in ins if i.kind != "meta"]
    assert len(encs) == len(real), (len(encs), len(real))
    for i, l in zip(real, encs):
        e = l.split("encoding:")[1]
        i.size = e.count(",") + 1

def lint_outstanding(ins):
    lg = []; vm = []; errs = []
    for n, i in enumerate(ins):
        if i.kind == "meta": continue
        if i.op == "s_waitcnt":
            m = re.search(r"lgkmcnt\((\d+)\)", i.text)
            if m:
                k = int(m.group(1)); lg = lg[len(lg) - k:] if k < len(lg) and k else ([] if k == 0 else lg)
            m = re.search(r"vmcnt\((\d+)\)", i.text)
            if m:
                k = int(m.group(1)); vm = vm[len(vm) - k:] if k < len(vm) and k else ([] if k == 0 else vm)
            continue
        touched = {r for r in (i.rd | i.wr) if isv(r)}
        for q in (lg, vm):
            for dst, txt in q:
                if dst & touched and "nolint" not in txt: errs.append((i.text, txt))
        if i.kind == "ds": lg.append(({r for r in i.wr if isv(r)}, i.text))
        elif i.kind == "vmem": vm.append(({r for r in i.wr if isv(r)}, i.text))
    return errs

class Asm:
    def __init__(self):
        self.lines = []
    def __call__(self, s):
        for l in s.split("\n"):
            l = l.strip()
            if l: self.lines.append(l)
    def finish(self, verbose=False, align=True):
        ins = [Ins(l) for l in self.lines]
        ins, added = fix_hazards(ins, verbose)
        errs = lint_outstanding(ins)
        for e in errs[:20]: print("LINT:", e)
        assert not errs, len(errs)
        pads = promos = 0; size = None
        if align:
            ins, pads, promos, size = fix_align(ins)
        info = dict(hazard_nops=added, pads=pads, promos=promos, bytes=size)
        txt = "\n".join((i.text if (i.kind == "meta" and i.text.endswith(":")) else "    " + i.text) for i in ins)
        return txt, info
```

```python
import sys, json
from asmlib import Asm
KNAME = "concat_heads__linear_kernel_hedgehog__linear_kernel_hedgehog__prompt_kernel"

WS_KV   = 0x000000
WS_Z    = 0x200000
WS_F1   = 0x220000
WS_F2   = 0x230000
WS_O    = 0x400000
WS_DIAG = 0x1000000
WS_DUMP = 0x2000000
WS_SIZE = 0x10000000

XS = [0, 32768, 65536]
WB = 98304
PHI = 159744
LDS_BYTES = 163840
TSTR = 136
X1_OFF, X1Z_OFF, X2_OFF = 0, 4096, 5120

S_PTR = 4
SRD_X, SRD_W, SRD_WO, SRD_WS, SRD_OUT, SRD_DBG, SRD_T = 12, 16, 20, 24, 28, 32, 36
S_P2 = 40
S_HEAD, S_SPIN = 46, 47
S_XCD, S_J, S_B, S_R, S_C, S_W, S_RH, S_HH = 48, 49, 50, 51, 52, 53, 54, 55
S_KX, S_KW, S_MX, S_MW = 56, 57, 58, 59
S_T0, S_T1, S_T2, S_T3 = 60, 61, 62, 63
S_L2E = 64
S_NON = 44
S_STAMP = 70

ACC = [0, 64, 128]
V_XD, V_WD, V_XA, V_WA, V_LANE = 192, 200, 203, 207, 209
V_CNT = 210
V_PHI, V_ONE, V_ID = 212, 220, 224
V_T = 232
V_PX, V_PW, V_PD = 250, 251, 252
SRD_PX, SRD_PW, S_PFX, S_PFW, S_PHASE = 4, 8, 40, 41, 42
S_KT = 66
V_ST = 240
A_W, A_X = 0, 96
A_T, A_KVX, A_ZX = 128, 160, 176
MF16, MF32 = "v_mfma_f32_16x16x32_bf16", "v_mfma_f32_32x32x16_bf16"
SPIN_MAX = 1 << 16

def srd(i): return f"s[{i}:{i+3}]"
def vr(i, n): return f"v[{i}:{i+n-1}]"
def ar(i, n): return f"a[{i}:{i+n-1}]"

class Gen:
    def __init__(self, opt):
        self.o = opt
        self.A = Asm()
        self.nstamp = 0
        self.stamp_names = []
        self.vm = []
        self.nlab = 0
        self.vm_done = []
    def stamp(self, name):
        if not self.o.get("diag"): return
        if name in self.o.get("nostamp", ("kernarg", "step7", "r1")): return
        s = S_STAMP + 2 * self.nstamp
        assert s + 1 <= 99
        self.A(f"s_memtime s[{s}:{s+1}]")
        self.nstamp += 1; self.stamp_names.append(name)
    def em(self, x):
        if isinstance(x, str): self.A(x)
        elif x[0] == "vm": self.A(x[2]); self.vm.append(x[1])
        elif x[0] == "wait": self.A(f"s_waitcnt vmcnt({0 if self.o.get('vm0') else self.vmn(x[1])}){x[2]}")
        elif x[0] == "call": x[1]()
        else: raise ValueError(x)
    def vmn(self, tags):
        for t in tags: assert t in self.vm or t in self.vm_done, t
        idx = [i for i, t in enumerate(self.vm) if t in tags]
        if not idx: return 63
        n = len(self.vm) - 1 - max(idx)
        assert n <= 63
        return n
    def label(self, p):
        self.nlab += 1
        return f"L_{p}{self.nlab}"

    def prologue(self):
        A = self.A; o = self.o; em = self.em
        A(f"s_cmp_ge_u32 s2, 256\ns_cbranch_scc1 L_END")
        if o.get("diag"): A("s_memrealtime s[100:101]")
        self.stamp("start")
        A(f"s_lshl_b32 s3, s2, 3\ns_and_b32 s3, s3, 32")
        A(f"s_load_dwordx8 s[{S_PTR}:{S_PTR+7}], s[0:1], s3")
        A(f"s_load_dwordx4 s[{S_P2}:{S_P2+3}], s[0:1], 64")
        A(f"s_load_dwordx2 s[{S_P2+4}:{S_P2+5}], s[0:1], 80")
        A(f"s_getpc_b64 s[{SRD_T}:{SRD_T+1}]")
        A("L_PC:")
        A(f"v_lshrrev_b32 v1, 6, v0\nv_and_b32 v{V_LANE}, 63, v0")
        A(f"s_and_b32 s{S_XCD}, s2, 7\ns_lshr_b32 s{S_J}, s2, 3")
        A(f"v_readfirstlane_b32 s{S_W}, v1")
        A(f"s_lshr_b32 s{S_B}, s{S_XCD}, 2\ns_and_b32 s{S_R}, s{S_J}, 7")
        cm = o.get("cmap", "blk")
        if cm == "blk":
            A(f"s_and_b32 s{S_C}, s{S_XCD}, 3\ns_lshl_b32 s{S_C}, s{S_C}, 2\ns_lshr_b32 s3, s{S_J}, 3\ns_add_u32 s{S_C}, s{S_C}, s3")
        elif cm == "il":
            A(f"s_and_b32 s{S_C}, s{S_XCD}, 3\ns_lshr_b32 s3, s{S_J}, 3\ns_lshl_b32 s3, s3, 2\ns_add_u32 s{S_C}, s{S_C}, s3")
        elif cm == "rev":
            A(f"s_and_b32 s{S_C}, s{S_XCD}, 3\ns_lshl_b32 s{S_C}, s{S_C}, 2\ns_lshr_b32 s3, s{S_J}, 3\ns_sub_u32 s{S_C}, s{S_C}, s3\ns_add_u32 s{S_C}, s{S_C}, 3")
        elif cm == "4x8":
            A(f"s_and_b32 s{S_R}, s{S_J}, 3\ns_and_b32 s3, s{S_XCD}, 1\ns_lshl_b32 s3, s3, 2\ns_add_u32 s{S_R}, s{S_R}, s3")
            A(f"s_lshr_b32 s{S_C}, s{S_J}, 2\ns_and_b32 s3, s{S_XCD}, 2\ns_lshl_b32 s3, s3, 2\ns_add_u32 s{S_C}, s{S_C}, s3")
        L = f"v{V_LANE}"; t0, t1, t2 = f"v{V_T}", f"v{V_T+1}", f"v{V_T+2}"
        A(f"s_lshr_b32 s{S_RH}, s{S_W}, 1\ns_and_b32 s{S_HH}, s{S_W}, 1")
        A(f"v_bfe_u32 {t0}, {L}, 2, 3\ns_lshl_b32 s3, s{S_W}, 3\nv_add_u32 {t0}, s3, {t0}")
        A(f"v_mul_u32_u24 {t0}, 6144, {t0}")
        A(f"v_lshrrev_b32 {t1}, 5, {L}\nv_lshl_add_u32 {t0}, {t1}, 6, {t0}")
        A(f"s_lshl_b32 s3, s{S_HH}, 1\nv_and_b32 {t1}, 3, {L}\nv_xor_b32 {t1}, s3, {t1}\nv_lshl_add_u32 v{V_WD}, {t1}, 4, {t0}")
        A(f"v_add_u32 v{V_WD+1}, 1024, v{V_WD}\nv_add_u32 v{V_WD+2}, 2048, v{V_WD}")
        A(f"v_lshrrev_b32 {t0}, 3, {L}\ns_lshl_b32 s3, s{S_W}, 6\nv_add_u32 {t0}, s3, {t0}\nv_lshlrev_b32 {t0}, 11, {t0}")
        A(f"v_lshrrev_b32 {t1}, 4, {L}\nv_and_b32 {t2}, 7, {L}\nv_xor_b32 {t1}, {t1}, {t2}")
        A(f"v_lshl_add_u32 v{V_XD}, {t1}, 4, {t0}")
        A(f"v_xor_b32 v{V_XD+1}, 64, v{V_XD}\nv_add_u32 v{V_XD+1}, {16384-1024}, v{V_XD+1}")
        for j in range(2, 8):
            d = 16384 * 2 - (2048 if j % 4 >= 2 else -2048)
            A(f"v_add_u32 v{V_XD+j}, {d}, v{V_XD+j-2}")
        A(f"s_lshl_b32 s{S_MX}, s{S_W}, 13")
        A(f"s_mul_i32 s{S_MW}, s{S_W}, 3072\ns_add_u32 s{S_MW}, s{S_MW}, {WB}")
        kp = o.get("kperm")
        if kp:
            n = kp["n"]
            win = kp.get("win", [n] * (16 // n)); assert sum(win) == 16
            tabs = []
            for a in range(n):
                order = []; st = 0
                for ln in win:
                    order += [st + (u + a * ln // n if kp.get("spread") else u + a) % ln + st * 0 if False else st + ((u + (a * ln // n if kp.get("spread") else a)) % ln) for u in range(ln)]
                    st += ln
                assert sorted(order) == list(range(16))
                tabs.append(sum(k << (4 * i) for i, k in enumerate(order)))
            A(f"s_add_u32 s{S_T2}, s{S_R}, s{S_C}\ns_and_b32 s{S_T2}, s{S_T2}, {n-1}")
            A(f"s_mov_b32 s{S_KT}, {tabs[0] & 0xffffffff}\ns_mov_b32 s{S_KT+1}, {tabs[0] >> 32}")
            for a in range(1, n):
                A(f"s_cmp_eq_u32 s{S_T2}, {a}\ns_cselect_b32 s{S_KT}, {tabs[a] & 0xffffffff}, s{S_KT}\ns_cselect_b32 s{S_KT+1}, {tabs[a] >> 32}, s{S_KT+1}")
            if kp.get("d"):
                A(kp["d"].format(d=f"s{S_T2}", xcd=f"s{S_XCD}", b=f"s{S_B}"))
                A(f"s_lshl_b32 s{S_T2}, s{S_T2}, 2\ns_lshr_b64 s[{S_T0}:{S_T1}], s[{S_KT}:{S_KT+1}], s{S_T2}")
                A(f"s_sub_u32 s{S_T2}, 63, s{S_T2}\ns_lshl_b64 s[{S_KT}:{S_KT+1}], s[{S_KT}:{S_KT+1}], s{S_T2}\ns_lshl_b64 s[{S_KT}:{S_KT+1}], s[{S_KT}:{S_KT+1}], 1")
                A(f"s_or_b64 s[{S_KT}:{S_KT+1}], s[{S_KT}:{S_KT+1}], s[{S_T0}:{S_T1}]")
            A(self.kx(0)); A(self.kw(0))
        else:
            A(f"s_mov_b32 s{S_KX}, 0\ns_mov_b32 s{S_KW}, 0")
        A(f"s_lshl_b32 s{S_T0}, s{S_R}, 19\ns_lshl_b32 s{S_T1}, s{S_C}, 7")
        A(f"s_mov_b32 s{SRD_X+2}, 0x80000\ns_mov_b32 s{SRD_X+3}, 0x20000")
        A(f"s_sub_u32 s{SRD_W+2}, 0x600000, s{S_T1}\ns_mov_b32 s{SRD_W+3}, 0x20000")
        A("s_waitcnt lgkmcnt(0)")
        A(f"s_add_u32 s{SRD_W}, s{S_PTR+2}, s{S_T1}\ns_addc_u32 s{SRD_W+1}, s{S_PTR+3}, 0")
        A(f"s_add_u32 s{SRD_X}, s{S_PTR}, s{S_T0}\ns_addc_u32 s{SRD_X+1}, s{S_PTR+1}, 0")
        self.stamp("kernarg")
        for g in [("w", 0), ("x", 0), ("w", 1)]:
            for ins in self.dma_group(*g): em(ins)
        if o.get("codepf", 1):
            A(f"s_mov_b32 s{SRD_T+2}, L_END-L_PC\ns_mov_b32 s{SRD_T+3}, 0x20000")
            A(f"v_lshlrev_b32 {t0}, 7, v0")
            n = o.get("codepf_n", 2)
            for i in range(n):
                em(("vm", "pf", f"buffer_load_dword v{V_T+4+i}, {t0}, {srd(SRD_T)}, 0 offen"))
                if i + 1 < n: A(f"v_add_u32 {t0}, 0x8000, {t0}")
        for base, p, n in ((SRD_WS, S_P2 + 4, WS_SIZE), (SRD_OUT, S_P2, 0x800000), (SRD_DBG, S_P2 + 2, 256), (SRD_WO, S_PTR + 6, 0x200000)):
            A(f"s_mov_b32 s{base}, s{p}\ns_mov_b32 s{base+1}, s{p+1}\ns_mov_b32 s{base+2}, {n}\ns_mov_b32 s{base+3}, 0x20000")
        A(f"s_lshl_b32 s{S_HEAD}, s{S_C}, 1\ns_add_u32 s{S_HEAD}, s{S_HEAD}, s{S_HH}")
        lab = self.label("non")
        A(f"s_or_b32 s3, s2, s{S_W}\ns_cmp_lg_u32 s3, 0\ns_cbranch_scc1 {lab}")
        A(f"s_memrealtime s[{S_T2}:{S_T3}]\ns_waitcnt lgkmcnt(0)\ns_or_b32 s{S_T2}, s{S_T2}, 1")
        A(f"v_mov_b32 v{V_CNT}, s{S_T2}\nv_mov_b32 v{V_CNT+1}, s{S_T3}\ns_mov_b64 exec, 1")
        A(f"buffer_store_dwordx2 {vr(V_CNT,2)}, off, {srd(SRD_DBG)}, 0 sc1")
        A(f"s_mov_b64 exec, -1\n{lab}:")
        A(f"s_mov_b32 s{SRD_T}, s{S_PTR+4}\ns_mov_b32 s{SRD_T+1}, s{S_PTR+5}\ns_mov_b32 s{SRD_T+2}, 0x10000\ns_mov_b32 s{SRD_T+3}, 0x20000")
        A(f"s_lshl_b32 s{S_T0}, s{S_C}, 12\nv_lshlrev_b32 {t0}, 4, v0")
        A(f"s_lshl_b32 s3, s{S_W}, 10\ns_add_u32 m0, s3, {PHI}")
        em(("vm", "phi", f"buffer_load_dwordx4 {t0}, {srd(SRD_T)}, s{S_T0} offen lds"))
        if o.get("pft"):
            A(f"s_lshr_b32 s{S_PHASE}, s{S_J}, 3\ns_lshl_b32 s3, s{S_PHASE}, 2\ns_add_u32 s3, s3, s{S_W}\ns_lshl_b32 s3, s3, 15")
            A(f"s_add_u32 s{S_PHASE}, s{S_PHASE}, s{S_R}\ns_and_b32 s{S_PHASE}, s{S_PHASE}, 3")
            A(f"v_lshrrev_b32 {t0}, 2, {L}\nv_lshlrev_b32 {t0}, 11, {t0}\nv_and_b32 {t1}, 3, {L}\nv_lshl_add_u32 {t0}, {t1}, 7, {t0}\nv_add_u32 v{V_PX}, s3, {t0}")
            A(f"s_lshl_b32 s3, s{S_R}, 2\ns_add_u32 s3, s3, s{S_W}\ns_mul_i32 s3, s3, 12288")
            A(f"v_lshlrev_b32 {t1}, 6, {t1}\nv_bfe_u32 {t0}, {L}, 2, 1\nv_add_u32 {t0}, {t0}, {t1}\nv_mul_u32_u24 {t0}, 6144, {t0}")
            A(f"v_lshrrev_b32 {t1}, 3, {L}\nv_lshl_add_u32 {t0}, {t1}, 11, {t0}\nv_add_u32 {t0}, s3, {t0}")
            A(f"v_cmp_gt_u32 vcc, 24, {L}\nv_bfrev_b32 {t1}, 1\nv_cndmask_b32 v{V_PW}, {t1}, {t0}, vcc")
            for d, q in ((SRD_PX, SRD_X), (SRD_PW, SRD_W)):
                A(f"s_mov_b64 s[{d}:{d+1}], s[{q}:{q+1}]\ns_mov_b32 s{d+2}, s{q+2}\ns_mov_b32 s{d+3}, 0x20000")
        pre = o.get("pre", [("x", 1), ("w", 2), ("w", 3)])
        for g in pre:
            for ins in self.dma_group(*g): em(ins)
        for st, t0_, cond in o.get("pft", []):
            if st < 0:
                for x in self.pf_ops(t0_, cond): em(x)
        self.pend0 = []
        for g in [("x", 1), ("w", 2), ("w", 3), ("x", 2), ("w", 4)]:
            if g not in pre: self.pend0 += self.dma_group(*g)
        A(f"v_and_b32 {t0}, 15, {L}\nv_lshlrev_b32 {t0}, 7, {t0}\ns_lshl_b32 s3, s{S_RH}, 14\nv_add_u32 {t0}, s3, {t0}")
        A(f"v_lshrrev_b32 {t1}, 4, {L}\nv_bfe_u32 {t2}, {L}, 1, 3\nv_xor_b32 {t1}, {t1}, {t2}")
        A(f"v_lshl_add_u32 v{V_XA}, {t1}, 4, {t0}")
        A(f"v_xor_b32 v{V_XA+1}, 64, v{V_XA}")
        for t in range(2): A(f"v_add_u32 v{V_XA+2+t}, 32768, v{V_XA+t}")
        A(f"v_lshrrev_b32 {t0}, 4, {L}\nv_mul_u32_u24 {t0}, 3072, {t0}")
        A(f"v_bfe_u32 {t1}, {L}, 2, 2\nv_lshl_add_u32 {t0}, {t1}, 6, {t0}")
        A(f"v_bfe_u32 {t1}, {L}, 4, 1\nv_lshl_add_u32 {t0}, {t1}, 5, {t0}")
        A(f"v_and_b32 {t1}, 3, {L}\nv_lshl_add_u32 {t0}, {t1}, 3, {t0}")
        A(f"s_lshl_b32 s3, s{S_HH}, 9\ns_add_u32 s3, s3, {WB}\nv_add_u32 v{V_WA}, s3, {t0}")
        A(f"v_xor_b32 v{V_WA+1}, 32, v{V_WA}")
        for i in range(4): A(f"v_mov_b32 v{V_ONE+i}, 0x3f803f80")
        A(f"v_and_b32 {t0}, 31, {L}\nv_lshrrev_b32 {t1}, 5, {L}\nv_lshlrev_b32 {t1}, 2, {t1}\nv_sub_u32 {t0}, {t0}, {t1}")
        A(f"v_mov_b32 {t1}, 0x3f80\nv_mov_b32 {t2}, 0x3f800000")
        for j in range(2):
            for u in range(4):
                f0 = 16 * j + 8 * (u // 2) + 2 * (u % 2)
                d = V_ID + 4 * j + u
                A(f"v_cmp_eq_u32 vcc, {f0}, {t0}\nv_cndmask_b32 v{d}, 0, {t1}, vcc")
                A(f"v_cmp_eq_u32 vcc, {f0+1}, {t0}\nv_cndmask_b32 v{d}, v{d}, {t2}, vcc")
        A(f"s_mov_b32 s{S_L2E}, 0x3fb8aa3b\ns_mov_b32 s{S_L2E+1}, 0x3fb8aa3b")

    def f1base(self, s):
        self.A(f"s_lshl_b32 s{s}, s{S_B}, 5\ns_add_u32 s{s}, s{s}, s{S_HEAD}\ns_lshl_b32 s{s}, s{s}, 7\ns_add_u32 s{s}, s{s}, {WS_F1}")
    def f1w(self, s):
        self.f1base(s); self.A(f"s_lshl_b32 s3, s{S_RH}, 3\ns_add_u32 s3, s3, s{S_R}\ns_lshl_b32 s3, s3, 3\ns_add_u32 s{s}, s{s}, s3")
    def f2w(self, s):
        self.A(f"s_lshl_b32 s{s}, s{S_B}, 4\ns_lshl_b32 s3, s{S_R}, 1\ns_add_u32 s{s}, s{s}, s3\ns_add_u32 s{s}, s{s}, s{S_RH}")
        self.A(f"s_lshl_b32 s{s}, s{s}, 5\ns_add_u32 s{s}, s{s}, s{S_HEAD}\ns_lshl_b32 s{s}, s{s}, 3\ns_add_u32 s{s}, s{s}, {WS_F2}")

    def kx(self, i):
        return f"s_bfe_u32 s{S_KX}, s{S_KT + i//8}, {(4 << 16) | (4*(i%8))}\ns_lshl_b32 s{S_KX}, s{S_KX}, 7"
    def kw(self, h):
        if h % 2: return f"s_add_u32 s{S_KW}, s{S_KW}, {32*6144}"
        i = h // 2
        return f"s_bfe_u32 s{S_KW}, s{S_KT + i//8}, {(4 << 16) | (4*(i%8))}\ns_mul_i32 s{S_KW}, s{S_KW}, {64*6144}"
    def dma_group(self, kind, i):
        out = []
        if kind == "x":
            base = XS[i % 3]
            for j in range(8):
                if j % 4 == 0: out.append(f"s_add_u32 m0, s{S_MX}, {base + 4096*(j//4)}" if base + j else f"s_mov_b32 m0, s{S_MX}")
                out.append(("vm", ("x", i), f"buffer_load_dwordx4 v{V_XD+j}, {srd(SRD_X)}, s{S_KX} offen offset:{1024*(j%4)}{self.o.get('xpol','')} lds"))
            if not self.o.get("kperm"): out.append(f"s_add_u32 s{S_KX}, s{S_KX}, 128")
            elif i < 15: out += self.kx(i + 1).split("\n")
        else:
            base = 12288 * (i % 5)
            out.append(f"s_add_u32 m0, s{S_MW}, {base}" if base else f"s_mov_b32 m0, s{S_MW}")
            for p in range(3):
                out.append(("vm", ("w", i), f"buffer_load_dwordx4 v{V_WD+p}, {srd(SRD_W)}, s{S_KW} offen offset:{1024*p}{self.o.get('wpol','')} lds"))
            if not self.o.get("kperm"): out.append(f"s_add_u32 s{S_KW}, s{S_KW}, {32*6144}")
            elif i < 31: out += self.kw(i + 1).split("\n")
        return out

    def pf_ops(self, t, cond):
        o = self.o
        out = []
        if cond:
            out += [f"s_and_b32 s3, s{S_PHASE}, {cond[0]}\ns_cmp_eq_u32 s3, {cond[1]}\ns_cselect_b32 s{SRD_PX+2}, s{SRD_X+2}, 0\ns_cselect_b32 s{SRD_PW+2}, s{SRD_W+2}, 0"]
        out += [f"s_mov_b32 s{S_PFX}, {128*t}", f"s_mov_b32 s{S_PFW}, {64*6144*t}",
                ("vm", "pfw", f"buffer_load_dword v{V_PD+1}, v{V_PW}, {srd(SRD_PW)}, s{S_PFW} offen{o.get('pfpolw','')}"),
                ("vm", "pfx", f"buffer_load_dword v{V_PD}, v{V_PX}, {srd(SRD_PX)}, s{S_PFX} offen{o.get('pfpolx','')}")]
        return out
    def pf_at(self, i):
        out = []
        for st, t0_, cond in self.o.get("pft", []):
            if st == i: out += self.pf_ops(t0_, cond)
        return out
    def x_reads(self, gm):
        i, m = divmod(gm, 8)
        slot = i % 3
        off = (32768 if slot >= 1 else 0) + 2048 * m
        return [f"ds_read_b128 {ar(A_X + 8*(gm%4) + 4*s, 4)}, v{V_XA + s + (2 if slot == 2 else 0)} offset:{off}" for s in range(2)]
    def w_reads(self, i):
        out = []
        for n in range(6):
            p, nb = divmod(n, 2)
            for s in range(2):
                pos = (2 * i + s) % 5
                for rd in range(2):
                    out.append(f"ds_read_b64_tr_b16 {ar(A_W + 48*(i&1) + 4*(2*n+s) + 2*rd, 2)}, v{V_WA+nb} offset:{pos*12288 + 1024*p + 256*rd}")
        return out
    def order1(self, m):
        ns = list(range(6)) if m % 2 == 0 else list(range(5, -1, -1))
        return [(n, s) for k, n in enumerate(ns) for s in ((0, 1) if k % 2 == 0 else (1, 0))]
    def mfmas1(self, i, m):
        out = []; seen = set()
        for n, s in self.order1(m):
            p, nb = divmod(n, 2)
            w = ar(A_W + 48 * (i & 1) + 4 * (2 * n + s), 4)
            x = ar(A_X + 8 * ((8 * i + m) % 4) + 4 * s, 4)
            d = vr(ACC[p] + 8 * m + 4 * nb, 4)
            c = "0" if (i == 0 and n not in seen) else d
            seen.add(n)
            a, b = (w, x) if p < 2 else (x, w)
            out.append(f"{MF16} {d}, {a}, {b}, {c}")
        return out
    def pack_ops(self, m):
        out = []; done = []
        for n, s in self.order1(m):
            if n in done: continue
            done.append(n)
            p, nb = divmod(n, 2)
            src = ACC[p] + 8 * m + 4 * nb
            if p < 2: dst = ACC[p] + 8 * (m // 2) + 4 * nb + 2 * (m % 2)
            else: dst = ACC[2] + 4 * m + 2 * nb
            out.append((n, [f"v_cvt_pk_bf16_f32 v{dst}, v{src}, v{src+1}", f"v_cvt_pk_bf16_f32 v{dst+1}, v{src+2}, v{src+3}"]))
        res = []
        parts = []
        for n, _ in out:
            if n // 2 not in parts: parts.append(n // 2)
        d = dict(out)
        for p in parts:
            res += d[2 * p] + d[2 * p + 1]
            if p == 2:
                b = ACC[2] + 4 * m
                res += [f"v_permlane16_swap_b32 v{b}, v{b+2}", f"v_permlane16_swap_b32 v{b+1}, v{b+3}"]
            elif m % 2 == 1:
                b = ACC[p] + 8 * (m // 2)
                for nb in range(2):
                    res += [f"v_permlane16_swap_b32 v{b+4*nb}, v{b+4*nb+2}", f"v_permlane16_swap_b32 v{b+4*nb+1}, v{b+4*nb+3}"]
        cv = [x for x in res if "cvt" in x]; sw = [x for x in res if "swap" in x]
        return cv + sw

    def phase1(self):
        A = self.A; o = self.o; em = self.em
        em(("wait", [("w", 0), ("x", 0), ("w", 1)], "")); A("s_barrier")
        self.stamp("first data")
        for r in self.x_reads(0) + self.w_reads(0)[:16] + self.x_reads(1) + self.w_reads(0)[16:] + self.x_reads(2): A(r)
        pend = list(self.pend0)
        for i in range(16):
            fill = [[] for _ in range(96)]
            pre = {}
            for m in range(5):
                for k, r in enumerate(self.x_reads(8 * i + m + 3)):
                    fill[12 * m + (9 if m == 0 else 2) + 2 * k].append(r)
            pre[0] = "s_waitcnt lgkmcnt(12)"
            pre[8] = "s_waitcnt lgkmcnt(0)"
            pre[36] = "s_waitcnt lgkmcnt(4)"
            pre[48] = "s_waitcnt lgkmcnt(4)"
            pre[60] = "s_waitcnt lgkmcnt(0)"
            bar2 = o.get("bar2")
            if bar2:
                fill[8].append("s_barrier")
                if 2 * i + 5 < 32: pend += self.dma_group("w", 2 * i + 5)
                if 2 * i + 6 < 32: pend += self.dma_group("w", 2 * i + 6)
                pend += self.pf_at(i)
            slots = [g for g in range(o.get("dma0", 10 if bar2 else 1), o.get("dma1", 59)) if not fill[g] and g not in pre and g + 1 not in pre]
            if pend:
                step = len(slots) / len(pend)
                assert step >= 1
                for k, x in enumerate(pend): fill[slots[int(k * step)]].append(x)
                pend = []
            need = [("x", i + 1), ("w", 2 * i + 2), ("w", 2 * i + 3)] if i < 15 else ["cnt"]
            if i == 0: need += ["phi"]
            fill[60].append(("wait", need, "")); fill[60].append("s_barrier")
            if i < 15:
                rd = self.x_reads(8 * i + 8) + self.w_reads(i + 1)[:16] + self.x_reads(8 * i + 9) + self.w_reads(i + 1)[16:] + self.x_reads(8 * i + 10)
                for k, r in enumerate(rd): fill[61 + k].append(r)
                if bar2:
                    if i + 3 < 16:
                        for k, x in enumerate(self.dma_group("x", i + 3)): fill[62 + (5 * k) // 2].append(x)
                else:
                    if 2 * i + 5 < 32:
                        ops = self.dma_group("w", 2 * i + 5)
                        ops += self.pf_at(i)
                        for k, x in enumerate(ops): fill[62 + 3 * k].append(x)
                    if i + 3 < 16: pend += self.dma_group("x", i + 3)
                    if 2 * i + 6 < 32: pend += self.dma_group("w", 2 * i + 6)
            if i == 0:
                fill[93].append(("call", self.phi_reads))
            if i == 14:
                pend += [("vm", "cnt", f"buffer_load_dwordx2 {vr(V_CNT,2)}, off, {srd(SRD_DBG)}, 0 sc1")]
            if i == 15 and not o.get("nopack"):
                q = []
                for g in range(12, 96):
                    if g % 12 == 1: q += self.pack_ops(g // 12 - 1)
                    for _ in range(2 - len(fill[g]) - (1 if g + 1 in pre else 0)):
                        if q: fill[g].append(q.pop(0))
                self.pack_left = q
            g = 0
            for m in range(8):
                for mf in self.mfmas1(i, m):
                    if g in pre: A(pre[g])
                    A(mf)
                    for x in fill[g]: em(x)
                    g += 1
            if i in (0, 7, 14): self.stamp(f"step{i}")
        for x in getattr(self, "pack_left", []): A(x)
        for m in (range(7, 8) if not o.get("nopack") else range(8)):
            for x in self.pack_ops(m): A(x)
        self.stamp("p1end")

    def get_nonce(self):
        A = self.A
        lab, done = self.label("nl"), self.label("nd")
        A(f"s_mov_b32 s{S_SPIN}, 0\n{lab}:")
        A(f"v_readfirstlane_b32 s{S_NON}, v{V_CNT}\nv_readfirstlane_b32 s{S_NON+1}, v{V_CNT+1}")
        A(f"s_add_u32 s{S_SPIN}, s{S_SPIN}, 1\ns_nop 2\ns_cmp_lg_u32 s{S_NON}, 0\ns_cbranch_scc1 {done}")
        A(f"s_cmp_ge_u32 s{S_SPIN}, {SPIN_MAX}\ns_cbranch_scc1 {done}")
        A(f"buffer_load_dwordx2 {vr(V_CNT,2)}, off, {srd(SRD_DBG)}, 0 sc1\ns_waitcnt vmcnt(0)\ns_branch {lab}")
        A(f"{done}:")
    def phi_reads(self):
        A = self.A; L = f"v{V_LANE}"; t0, t1 = f"v{V_T+2}", f"v{V_T+3}"
        A(f"v_lshrrev_b32 {t0}, 5, {L}\nv_lshlrev_b32 {t0}, 9, {t0}")
        A(f"v_bfe_u32 {t1}, {L}, 2, 2\nv_lshl_add_u32 {t0}, {t1}, 6, {t0}")
        A(f"v_bfe_u32 {t1}, {L}, 4, 1\nv_lshl_add_u32 {t0}, {t1}, 5, {t0}")
        A(f"v_and_b32 {t1}, 3, {L}\nv_lshl_add_u32 {t0}, {t1}, 3, {t0}")
        A(f"s_lshl_b32 s3, s{S_HH}, 11\ns_add_u32 s3, s3, {PHI}\nv_add_u32 {t0}, s3, {t0}")
        for j in range(2):
            for rd in range(2):
                A(f"ds_read_b64_tr_b16 {vr(V_PHI + 4*j + 2*rd, 2)}, {t0} offset:{1024*j + 256*rd}")

    def unit_S0(self, frag, P):
        return [f"{MF32} {vr(P,16)}, {vr(V_PHI,4)}, {vr(frag,4)}, 0", f"{MF32} {vr(P,16)}, {vr(V_PHI+4,4)}, {vr(frag+4,4)}, {vr(P,16)}"]
    def unit_S1(self, P):
        a, b = V_ST, V_ST + 1
        out = [f"v_max3_f32 v{a}, v{P}, v{P+1}, v{P+2}", f"v_max3_f32 v{b}, -v{P}, -v{P+1}, -v{P+2}"]
        for k in range(3, 15, 2):
            out += [f"v_max3_f32 v{a}, v{a}, v{P+k}, v{P+k+1}", f"v_max3_f32 v{b}, v{b}, -v{P+k}, -v{P+k+1}"]
        out += [f"v_max_f32 v{a}, v{a}, v{P+15}", f"v_max_f32 v{b}, v{b}, -v{P+15}"]
        out += [f"v_permlane32_swap_b32 v{a}, v{b}", f"v_max_f32 v{a}, v{a}, v{b}", f"v_mul_f32 v{a}, 0xbfb8aa3b, v{a}", f"v_mov_b32 v{b}, v{a}",
                f"v_permlane32_swap_b32 v{a}, v{b}"]
        return out
    def unit_S2(self, P, E):
        st = vr(V_ST, 2); c = f"s[{S_L2E}:{S_L2E+1}]"
        out = [f"v_pk_fma_f32 {vr(E+2*k,2)}, {vr(P+2*k,2)}, {c}, {st} op_sel_hi:[1,1,0]" for k in range(8)]
        out += [f"v_pk_fma_f32 {vr(P+2*k,2)}, {vr(P+2*k,2)}, {c}, {st} op_sel:[0,0,1] op_sel_hi:[1,1,1] neg_lo:[1,0,0] neg_hi:[1,0,0]" for k in range(8)]
        return out
    def unit_S3(self, P, E):
        return [f"v_exp_f32 v{E+k}, v{E+k}" for k in range(16)] + [f"v_exp_f32 v{P+k}, v{P+k}" for k in range(16)]
    def unit_S4(self, P, E):
        ta, tb, tc, td = V_ST + 2, V_ST + 4, V_ST + 6, V_ST + 8
        out = [f"v_pk_add_f32 {vr(ta,2)}, {vr(E,2)}, {vr(E+2,2)}", f"v_pk_add_f32 {vr(tc,2)}, {vr(E+4,2)}, {vr(E+6,2)}"]
        for k in (8, 12): out += [f"v_pk_add_f32 {vr(ta,2)}, {vr(ta,2)}, {vr(E+k,2)}", f"v_pk_add_f32 {vr(tc,2)}, {vr(tc,2)}, {vr(E+k+2,2)}"]
        out += [f"v_pk_add_f32 {vr(ta,2)}, {vr(ta,2)}, {vr(tc,2)}"]
        out += [f"v_pk_add_f32 {vr(tb,2)}, {vr(P,2)}, {vr(P+2,2)}", f"v_pk_add_f32 {vr(td,2)}, {vr(P+4,2)}, {vr(P+6,2)}"]
        for k in (8, 12): out += [f"v_pk_add_f32 {vr(tb,2)}, {vr(tb,2)}, {vr(P+k,2)}", f"v_pk_add_f32 {vr(td,2)}, {vr(td,2)}, {vr(P+k+2,2)}"]
        out += [f"v_pk_add_f32 {vr(tb,2)}, {vr(tb,2)}, {vr(td,2)}"]
        a, b = V_ST, V_ST + 1
        out += [f"v_add_f32 v{a}, v{ta}, v{ta+1}", f"v_add_f32 v{b}, v{tb}, v{tb+1}"]
        out += [f"v_permlane32_swap_b32 v{a}, v{b}", f"v_add_f32 v{a}, v{a}, v{b}", f"v_rcp_f32 v{a}, v{a}", f"v_mov_b32 v{b}, v{a}",
                f"v_permlane32_swap_b32 v{a}, v{b}"]
        return out
    def unit_S5a(self, P, E):
        st = vr(V_ST, 2)
        out = [f"v_pk_mul_f32 {vr(E+2*k,2)}, {vr(E+2*k,2)}, {st} op_sel_hi:[1,0]" for k in range(8)]
        out += [f"v_pk_mul_f32 {vr(P+2*k,2)}, {vr(P+2*k,2)}, {st} op_sel:[0,1] op_sel_hi:[1,1]" for k in range(8)]
        return out
    def unit_S5b(self, P, E, F0, F1):
        return [f"v_cvt_pk_bf16_f32 v{F0+k}, v{E+2*k}, v{E+2*k+1}" for k in range(8)] + [f"v_cvt_pk_bf16_f32 v{F1+k}, v{P+2*k}, v{P+2*k+1}" for k in range(8)]

    def interleave(self, main, extra, start=0, every=1):
        k = 0
        for idx, x in enumerate(main):
            self.em(x)
            if idx >= start and (idx - start) % every == 0 and k < len(extra):
                e = extra[k]; k += 1
                for y in (e if isinstance(e, list) else [e]): self.em(y)
        for e in extra[k:]:
            for y in (e if isinstance(e, list) else [e]): self.em(y)

    def wo_setup(self):
        A = self.A; L = f"v{V_LANE}"; t0, t1 = f"v{V_T}", f"v{V_T+1}"
        V = V_XD
        A(f"s_lshr_b32 s{S_T0}, s{S_J}, 2\ns_lshl_b32 s{S_T0}, s{S_T0}, 8\ns_lshl_b32 s3, s{S_W}, 6\ns_add_u32 s{S_T0}, s{S_T0}, s3")
        A(f"v_lshrrev_b32 {t0}, 2, {L}\nv_lshlrev_b32 {t0}, 11, {t0}\nv_add_u32 {t0}, s{S_T0}, {t0}")
        A(f"v_bfe_u32 {t1}, {L}, 4, 1\nv_lshlrev_b32 {t1}, 1, {t1}\nv_xor_b32 {t1}, {t1}, {L}\nv_and_b32 {t1}, 3, {t1}")
        A(f"v_lshl_add_u32 v{V}, {t1}, 4, {t0}")
        for i in range(1, 4): A(f"v_add_u32 v{V+i}, {32768-1024}, v{V+i-1}")
        A(f"s_add_u32 s{S_MX}, s{S_W}, 1\ns_lshl_b32 s{S_MX}, s{S_MX}, 15\ns_mov_b32 s{S_KX}, 0")
        A(f"v_lshrrev_b32 {t0}, 5, {L}\nv_lshlrev_b32 {t0}, 10, {t0}\nv_add_u32 {t0}, s{S_MX}, {t0}")
        A(f"v_bfe_u32 {t1}, {L}, 4, 1\nv_mul_u32_u24 {t1}, {256+32}, {t1}\nv_add_u32 {t0}, {t0}, {t1}")
        A(f"v_bfe_u32 {t1}, {L}, 2, 2\nv_lshl_add_u32 {t0}, {t1}, 6, {t0}")
        A(f"v_and_b32 {t1}, 3, {L}\nv_lshl_add_u32 v{V+4}, {t1}, 3, {t0}\nv_xor_b32 v{V+5}, 32, v{V+4}")
    def wo_dma(self, rnd):
        out = []
        if self.o.get("nowodma"):
            self.vm_done.append(("wo", rnd))
            return ["s_nop 0"] * 48
        for grp in range(8):
            ops = [f"s_add_u32 m0, s{S_MX}, {4096*grp}" if grp else f"s_mov_b32 m0, s{S_MX}"]
            out.append(ops[0])
            for i in range(4):
                out.append(("vm", ("wo", rnd), f"buffer_load_dwordx4 v{V_XD+i}, {srd(SRD_WO)}, s{S_KX} offen offset:{1024*i} lds"))
            out.append(f"s_add_u32 s{S_KX}, s{S_KX}, {64*2048}")
        return out
    def wo_reads(self, rnd):
        out = []
        for kb in range(16):
            for nb in range(2):
                for rd in range(2):
                    out.append(f"ds_read_b64_tr_b16 {ar(128*rnd + 8*kb + 4*nb + 2*rd, 2)}, v{V_XD+4+nb} offset:{2048*kb + 512*rd}")
        return out

    def e1(self):
        A = self.A; o = self.o; em = self.em
        L = f"v{V_LANE}"; t0, t1 = f"v{V_T}", f"v{V_T+1}"
        V_TW, V_TR = V_WD, V_WD + 1
        KVO, ZO = 160, 176
        WSET = [(32, 48), (96, 112)]
        A(f"s_mul_i32 s3, s{S_RH}, 0x80008000")
        for k in range(8): A(f"v_xor_b32 v{V_PHI+k}, s3, v{V_PHI+k}")
        for x in self.unit_S0(ACC[1], WSET[0][0]): A(x)
        self.wo_setup()
        A(f"s_lshl_b32 s{S_T1}, s{S_W}, 13")
        A(f"v_and_b32 {t0}, 31, {L}\nv_mul_u32_u24 {t0}, {TSTR}, {t0}\nv_lshrrev_b32 {t1}, 5, {L}\nv_lshl_add_u32 {t0}, {t1}, 3, {t0}\nv_add_u32 v{V_TW}, s{S_T1}, {t0}")
        A(f"v_lshlrev_b32 {t0}, 3, {t1}\nv_bfe_u32 {t1}, {L}, 2, 2\nv_add_u32 {t0}, {t0}, {t1}\nv_mul_u32_u24 {t0}, {TSTR}, {t0}")
        A(f"v_bfe_u32 {t1}, {L}, 4, 1\nv_lshl_add_u32 {t0}, {t1}, 5, {t0}\nv_and_b32 {t1}, 3, {L}\nv_lshl_add_u32 {t0}, {t1}, 3, {t0}\nv_add_u32 v{V_TR}, s{S_T1}, {t0}")
        dma = self.wo_dma(0)
        def kv_mfmas(u):
            out = []
            for sg in (1, 0):
                kv = ar(A_KVX, 16) if sg else vr(KVO, 16)
                z = ar(A_ZX, 16) if sg else vr(ZO, 16)
                for j in range(2):
                    T = ar(A_T + 8 * sg + 4 * j, 4)
                    first = (u == 0 and j == 0)
                    out.append(f"{MF32} {kv}, {T}, {vr(ACC[2] + 8*u + 4*j, 4)}, {'0' if first else kv}")
                    out.append(f"{MF32} {z}, {T}, {vr(V_ONE,4)}, {'0' if first else z}")
            return out
        for u in range(4):
            P, E = WSET[u % 2]
            for x in self.unit_S1(P) + self.unit_S2(P, E): A(x)
            ex = []
            prev = kv_mfmas(u - 1) if u else []
            d = dma[12 * u:12 * u + 12]
            s3 = self.unit_S3(P, E)
            if prev: A("s_waitcnt lgkmcnt(0)")
            for k, x in enumerate(s3):
                A(x)
                if k % 4 == 0 and prev: A(prev[k // 4])
                if k % 4 == 2 and d: em(d.pop(0))
                if k % 8 == 3 and d: em(d.pop(0))
            assert not d
            for x in self.unit_S4(P, E) + self.unit_S5a(P, E): A(x)
            s5 = self.unit_S5b(P, E, E, E + 8)
            nxt = self.unit_S0(ACC[1] + 8 * (u + 1), WSET[(u + 1) % 2][0]) if u < 3 else []
            self.interleave(s5, nxt, start=0, every=6)
            for sg in range(2):
                for q in range(4):
                    A(f"ds_write_b64 v{V_TW}, {vr(E + 8*sg + 2*q, 2)} offset:{64*sg + 16*q}")
            for sg in (1, 0):
                for j in range(2):
                    for rd in range(2):
                        A(f"ds_read_b64_tr_b16 {ar(A_T + 8*sg + 4*j + 2*rd, 2)}, v{V_TR} offset:{64*sg + (16*j + 4*rd)*TSTR}")
        self.stamp("e1 units")
        A("s_waitcnt lgkmcnt(0)")
        last = kv_mfmas(3)
        V_XW, V_XR, V_ZW, V_ZR = V_XA, V_XA + 1, V_XA + 2, V_XA + 3
        for x in last[:4]: A(x)
        A(f"v_lshlrev_b32 {t0}, 4, {L}\nv_add_u32 v{V_XW}, s{S_T1}, {t0}\nv_xor_b32 v{V_XR}, 16384, v{V_XW}")
        A(f"v_lshrrev_b32 {t0}, 5, {L}\nv_lshlrev_b32 {t0}, 4, {t0}\nv_add_u32 v{V_ZW}, s{S_T1}, {t0}\nv_xor_b32 v{V_ZR}, 16384, v{V_ZW}")
        for x in last[4:]: A(x)
        for q in range(4): A(f"ds_write_b128 v{V_XW}, {ar(A_KVX + 4*q, 4)} offset:{X1_OFF + 1024*q}")
        A(f"s_mov_b32 exec_lo, 1\ns_mov_b32 exec_hi, 1")
        for q in range(4): A(f"ds_write_b128 v{V_ZW}, {ar(A_ZX + 4*q, 4)} offset:{X1Z_OFF + 32*q}")
        A("s_mov_b64 exec, -1")
        A("s_waitcnt lgkmcnt(0)\ns_barrier")
        R = 96
        for q in range(4): A(f"ds_read_b128 {vr(R + 4*q, 4)}, v{V_XR} offset:{X1_OFF + 1024*q}")
        for q in range(4): A(f"ds_read_b128 {vr(R + 16 + 4*q, 4)}, v{V_ZR} offset:{X1Z_OFF + 32*q}")
        A(f"s_lshl_b32 s{S_T0}, s{S_B}, 5\ns_add_u32 s{S_T0}, s{S_T0}, s{S_HEAD}\ns_lshl_b32 s{S_T0}, s{S_T0}, 3\ns_add_u32 s{S_T0}, s{S_T0}, s{S_R}")
        A(f"s_lshl_b32 s{S_T0}, s{S_T0}, 1\ns_add_u32 s{S_T0}, s{S_T0}, s{S_RH}")
        A(f"s_lshl_b32 s{S_T2}, s{S_T0}, 6\ns_add_u32 s{S_T2}, s{S_T2}, {WS_Z}\ns_lshl_b32 s{S_T0}, s{S_T0}, 11")
        A(f"v_lshlrev_b32 {t1}, 4, {L}")
        A("s_waitcnt lgkmcnt(4)")
        for k in range(8): A(f"v_pk_add_f32 {vr(KVO+2*k,2)}, {vr(KVO+2*k,2)}, {vr(R+2*k,2)}")
        for k in range(8): A(f"v_cvt_pk_bf16_f32 v{KVO+k}, v{KVO+2*k}, v{KVO+2*k+1}")
        for j in range(2): em(("vm", "pub1", f"buffer_store_dwordx4 {vr(KVO+4*j,4)}, {t1}, {srd(SRD_WS)}, s{S_T0} offen offset:{1024*j} sc1"))
        A("s_waitcnt lgkmcnt(0)")
        for k in range(8): A(f"v_pk_add_f32 {vr(ZO+2*k,2)}, {vr(ZO+2*k,2)}, {vr(R+16+2*k,2)}")
        for k in range(8): A(f"v_cvt_pk_bf16_f32 v{ZO+k}, v{ZO+2*k}, v{ZO+2*k+1}")
        A(f"s_mov_b32 exec_lo, 1\ns_mov_b32 exec_hi, 1")
        for j in range(2): em(("vm", "pub1", f"buffer_store_dwordx4 {vr(ZO+4*j,4)}, {t0}, {srd(SRD_WS)}, s{S_T2} offen offset:{32*j} sc1"))
        A("s_mov_b64 exec, -1")
        self.stamp("pub1")

    def flag_store(self, fn, tags):
        A = self.A
        fn(S_T0)
        self.em(("wait", tags, ""))
        A(f"s_mov_b64 exec, 1")
        self.em(("vm", "flag", f"buffer_store_dwordx2 {vr(V_CNT,2)}, off, {srd(SRD_WS)}, s{S_T0} sc1"))
        A("s_mov_b64 exec, -1")

    def poll(self, soff, nlanes):
        A = self.A
        lab, done = self.label("poll"), self.label("pdone")
        A(f"v_lshlrev_b32 v{V_T+6}, 3, v{V_LANE}\ns_mov_b32 s{S_SPIN}, 0")
        A("s_mov_b32 exec_hi, 0")
        if nlanes < 32: A(f"s_mov_b32 exec_lo, {(1 << nlanes) - 1}")
        A(f"{lab}:")
        A(f"buffer_load_dwordx2 {vr(V_T+2,2)}, v{V_T+6}, {srd(SRD_WS)}, {soff} offen sc1")
        A(f"s_add_u32 s{S_SPIN}, s{S_SPIN}, 1")
        A("s_waitcnt vmcnt(0)")
        A(f"v_cmp_ne_u64 vcc, s[{S_NON}:{S_NON+1}], {vr(V_T+2,2)}")
        A(f"s_cmp_ge_u32 s{S_SPIN}, {SPIN_MAX}\ns_cbranch_scc1 {done}")
        A(f"s_nop 4\ns_cbranch_vccnz {lab}")
        A(f"{done}:\ns_mov_b64 exec, -1")
        self.vm_done += self.vm; self.vm = []

    FQ = [64, 80, 128, 144]
    def e2(self):
        A = self.A; o = self.o; em = self.em
        WSET = [(32, 48), (96, 112)]
        self.em(("wait", [("wo", 0)], ""))
        r1 = self.wo_reads(0)
        for x in self.unit_S0(ACC[0], WSET[0][0]): A(x)
        for x in r1: A(x)
        self.stamp("r1")
        dma = self.wo_dma(1)
        for u in range(4):
            P, E = WSET[u % 2]
            for x in self.unit_S1(P) + self.unit_S2(P, E): A(x)
            d = dma[16 * (u - 1):16 * u] if u else []
            if u == 1: A("s_waitcnt lgkmcnt(0)")
            for k, x in enumerate(self.unit_S3(P, E)):
                A(x)
                if k % 2 == 1 and d: em(d.pop(0))
            assert not d
            for x in self.unit_S4(P, E) + self.unit_S5a(P, E): A(x)
            s5 = self.unit_S5b(P, E, self.FQ[u], self.FQ[u] + 8)
            nxt = self.unit_S0(ACC[0] + 8 * (u + 1), WSET[(u + 1) % 2][0]) if u < 3 else []
            self.interleave(s5, nxt, start=0, every=6)
            if u == 0:
                self.get_nonce()
                self.flag_store(self.f1w, ["pub1"])
        self.stamp("e2")

    def e3(self):
        A = self.A; o = self.o; em = self.em
        L = f"v{V_LANE}"; t0, t1 = f"v{V_T}", f"v{V_T+1}"
        V_XW, V_XR = V_XA, V_XA + 1
        A(f"s_lshl_b32 s{S_T1}, s{S_B}, 5\ns_add_u32 s{S_T1}, s{S_T1}, s{S_HEAD}")
        A(f"s_lshl_b32 s{S_T2}, s{S_T1}, 10\ns_add_u32 s{S_T2}, s{S_T2}, {WS_Z}")
        A(f"s_lshl_b32 s{S_T1}, s{S_T1}, 15\ns_lshl_b32 s3, s{S_RH}, 11\ns_add_u32 s{S_T1}, s{S_T1}, s3")
        A(f"v_lshlrev_b32 {t0}, 4, {L}")
        tz = f"v{V_T+4}"; tz2 = f"v{V_T+5}"
        A(f"v_bfe_u32 {t1}, {L}, 3, 1\nv_lshlrev_b32 {t1}, 2, {t1}\nv_and_b32 {tz}, 3, {L}\nv_add_u32 {tz}, {tz}, {t1}\nv_lshlrev_b32 {tz}, 7, {tz}")
        A(f"v_lshrrev_b32 {t1}, 5, {L}\nv_lshl_add_u32 {tz}, {t1}, 4, {tz}\ns_lshl_b32 s3, s{S_RH}, 6\nv_add_u32 {tz}, s3, {tz}\nv_xor_b32 {tz2}, 64, {tz}")
        self.f1base(S_T0)
        self.poll(f"s{S_T0}", 16)
        self.stamp("sync1")
        PL, ZF, S, KVF = 0, 96, 112, 160
        for r in range(8):
            for j in range(2):
                em(("vm", ("pl", r), f"buffer_load_dwordx4 {vr(PL + 8*r + 4*j, 4)}, {t0}, {srd(SRD_WS)}, s{S_T1} offen offset:{1024*j} sc1"))
            if r < 7: A(f"s_add_u32 s{S_T1}, s{S_T1}, 4096")
        for sl in range(2):
            for j in range(2):
                em(("vm", "zl", f"buffer_load_dwordx4 {vr(ZF + 8*sl + 4*j, 4)}, {tz2 if sl else tz}, {srd(SRD_WS)}, s{S_T2} offen offset:{32*j} sc1"))
        for r in range(8):
            em(("wait", [("pl", r)], ""))
            for j in range(2):
                A(f"{MF32} {vr(S,16)}, {vr(V_ID + 4*j, 4)}, {vr(PL + 8*r + 4*j, 4)}, {'0' if r + j == 0 else vr(S,16)}")
        A(f"s_lshl_b32 s{S_T1}, s{S_B}, 4\ns_lshl_b32 s3, s{S_R}, 1\ns_add_u32 s{S_T1}, s{S_T1}, s3\ns_add_u32 s{S_T1}, s{S_T1}, s{S_RH}")
        A(f"s_lshl_b32 s{S_T1}, s{S_T1}, 5\ns_add_u32 s{S_T1}, s{S_T1}, s{S_HEAD}\ns_lshl_b32 s{S_T1}, s{S_T1}, 13\ns_add_u32 s{S_T1}, s{S_T1}, {WS_O}")
        A(f"v_bfe_u32 {t0}, {L}, 4, 1\nv_lshlrev_b32 {t0}, 10, {t0}\nv_lshrrev_b32 {t1}, 5, {L}\nv_lshl_add_u32 {t0}, {t1}, 8, {t0}\nv_and_b32 {t1}, 15, {L}\nv_lshl_add_u32 {t0}, {t1}, 4, {t0}")
        for k in range(8): A(f"v_cvt_pk_bf16_f32 v{KVF+k}, v{S+2*k}, v{S+2*k+1}")
        for j in range(2): A(f"ds_write_b128 v{V_XW}, {vr(KVF + 4*j, 4)} offset:{X2_OFF + 1024*j}")
        A("s_waitcnt lgkmcnt(0)\ns_barrier")
        for j in range(2): A(f"ds_read_b128 {vr(KVF + 8 + 4*j, 4)}, v{V_XR} offset:{X2_OFF + 1024*j}")
        em(("wait", ["zl"], ""))
        self.stamp("kvsum")
        SETS = [(0, 16), (32, 48)]
        def mm(u):
            N, D = SETS[u % 2]; F = self.FQ[u]
            den = [f"{MF32} {vr(D,16)}, {vr(ZF + 4*k, 4)}, {vr(F + 4*k, 4)}, {'0' if k == 0 else vr(D,16)}" for k in range(4)]
            num = [f"{MF32} {vr(N,16)}, {vr(KVF + 4*k, 4)}, {vr(F + 4*k, 4)}, {'0' if k == 0 else vr(N,16)}" for k in range(4)]
            return den, num
        def fin(u):
            N, D = SETS[u % 2]
            a = [f"v_add_f32 v{D}, v{D}, v{D+1}", f"v_add_f32 v{D+2}, v{D+2}, v{D+3}", f"v_add_f32 v{D+4}, v{D+4}, v{D+5}", f"v_add_f32 v{D+6}, v{D+6}, v{D+7}",
                 f"v_add_f32 v{D}, v{D}, v{D+2}", f"v_add_f32 v{D+4}, v{D+4}, v{D+6}", f"v_add_f32 v{D}, v{D}, v{D+4}", f"v_add_f32 v{D}, 0x358637bd, v{D}",
                 f"v_rcp_f32 v{D}, v{D}"]
            b = [f"v_mul_f32 v{N+k}, v{N+k}, v{D}" for k in range(16)]
            b += [f"v_cvt_pk_bf16_f32 v{N+k}, v{N+2*k}, v{N+2*k+1}" for k in range(8)]
            b += [("vm", "pub2", f"buffer_store_dwordx4 {vr(N+4*j,4)}, {t0}, {srd(SRD_WS)}, s{S_T1} offen offset:{2048*(u%2) + 512*j} sc1") for j in range(2)]
            if u == 1: b.append(f"s_add_u32 s{S_T1}, s{S_T1}, 4096")
            return a, b
        d0, n0 = mm(0)
        for x in d0: A(x)
        A("s_waitcnt lgkmcnt(0)")
        for x in n0: A(x)
        for u in range(4):
            a, b = fin(u)
            if u < 3:
                d, n = mm(u + 1)
                self.interleave(a + b[:24], d + n, start=0, every=4)
                for x in b[24:]: em(x)
            else:
                for x in a + b: em(x)
        self.stamp("e3")
        r2 = self.wo_reads(1)
        h = o.get("r2split", 64)
        for x in r2[:h]: A(x)
        self.flag_store(self.f2w, ["pub2"])
        for x in r2[h:]: A(x)
        self.stamp("pub2")

    def gemm2(self):
        A = self.A; o = self.o; em = self.em
        L = f"v{V_LANE}"; t0, t1 = f"v{V_T}", f"v{V_T+1}"
        V_OD, V_OA, V_OUT, OF = V_WD, V_XA, V_WD + 1, 64
        NS = 10
        A(f"s_and_b32 s{S_T2}, s{S_XCD}, 3\ns_lshl_b32 s{S_T2}, s{S_T2}, 2\ns_and_b32 s3, s{S_J}, 3\ns_add_u32 s{S_T2}, s{S_T2}, s3")
        A(f"s_lshl_b32 s{S_T1}, s{S_B}, 4\ns_add_u32 s{S_T1}, s{S_T1}, s{S_T2}")
        A(f"s_lshl_b32 s{S_T0}, s{S_T1}, 8\ns_add_u32 s{S_T0}, s{S_T0}, {WS_F2}")
        A(f"s_lshl_b32 s{S_KX}, s{S_T1}, 18\ns_add_u32 s{S_KX}, s{S_KX}, {WS_O}")
        A(f"s_lshl_b32 s{S_MX}, s{S_W}, 12")
        A(f"v_lshlrev_b32 v{V_OA}, 4, {L}\nv_add_u32 v{V_OD}, s{S_MX}, v{V_OA}")
        A(f"v_add_u32 v{V_OA+1}, 0x10000, v{V_OA}\nv_add_u32 v{V_OA+2}, 0x20000, v{V_OA}")
        A(f"s_lshl_b32 s{S_KW}, s{S_T2}, 19\ns_lshl_b32 s3, s{S_B}, 11\ns_add_u32 s{S_KW}, s{S_KW}, s3")
        A(f"s_lshr_b32 s3, s{S_J}, 2\ns_lshl_b32 s3, s3, 8\ns_add_u32 s{S_KW}, s{S_KW}, s3\ns_lshl_b32 s3, s{S_W}, 6\ns_add_u32 s{S_KW}, s{S_KW}, s3")
        A(f"v_and_b32 {t0}, 15, {L}\nv_lshlrev_b32 {t0}, 12, {t0}\nv_bfe_u32 {t1}, {L}, 4, 1\nv_lshl_add_u32 {t0}, {t1}, 5, {t0}\nv_lshrrev_b32 {t1}, 5, {L}\nv_lshl_add_u32 v{V_OUT}, {t1}, 4, {t0}")
        A("s_waitcnt lgkmcnt(0)\ns_barrier")
        self.poll(f"s{S_T0}", 32)
        self.stamp("sync2")
        def dma(i):
            base = 16384 * (i % NS)
            out = [f"s_add_u32 m0, s{S_MX}, {base}" if base else f"s_mov_b32 m0, s{S_MX}"]
            out += [("vm", ("o", i), f"buffer_load_dwordx4 v{V_OD}, {srd(SRD_WS)}, s{S_KX} offen offset:{1024*k} sc1 lds") for k in range(4)]
            out.append(f"s_add_u32 s{S_KX}, s{S_KX}, 16384")
            return out
        def reads(gm):
            i, m = divmod(gm, 8)
            off = 16384 * (i % NS) + 1024 * m
            return [f"ds_read_b128 {vr(OF + 8*(gm%4) + 4*s, 4)}, v{V_OA + (off + 8192*s) // 65536} offset:{(off + 8192*s) % 65536}" for s in range(2)]
        def mf(i, m):
            out = []
            nbs = (0, 1) if m % 2 == 0 else (1, 0)
            for k, nb in enumerate(nbs):
                for q, s in enumerate((0, 1) if k == 0 else (1, 0)):
                    d = vr(8 * m + 4 * nb, 4)
                    out.append(f"{MF16} {d}, {ar(8*(2*i+s) + 4*nb, 4)}, {vr(OF + 8*((8*i+m)%4) + 4*s, 4)}, {'0' if i == 0 and q == 0 else d}")
            return out
        def fin(m):
            b = 8 * m
            return [f"v_cvt_pk_bf16_f32 v{b}, v{b}, v{b+1}", f"v_cvt_pk_bf16_f32 v{b+1}, v{b+2}, v{b+3}",
                    f"v_cvt_pk_bf16_f32 v{b+2}, v{b+4}, v{b+5}", f"v_cvt_pk_bf16_f32 v{b+3}, v{b+6}, v{b+7}",
                    f"v_permlane16_swap_b32 v{b}, v{b+2}", f"v_permlane16_swap_b32 v{b+1}, v{b+3}",
                    ("vm", "out", f"buffer_store_dwordx4 {vr(b,4)}, v{V_OUT}, {srd(SRD_OUT)}, s{S_KW} offen"), f"s_add_u32 s{S_KW}, s{S_KW}, 0x10000"]
        npre = o.get("g2pre", 3)
        for i in range(npre):
            for x in dma(i): em(x)
        nxt = npre
        em(("wait", [("o", 0)], "")); A("s_barrier")
        self.stamp("o first")
        for gm in range(3):
            for r in reads(gm): A(r)
        rate = o.get("g2rate", 1.5)
        acc = 0.0
        for i in range(16):
            fill = [[] for _ in range(32)]
            pre = {0: "s_waitcnt lgkmcnt(4)", 4: "s_waitcnt lgkmcnt(4)", 8: "s_waitcnt lgkmcnt(4)", 12: "s_waitcnt lgkmcnt(4)", 16: "s_waitcnt lgkmcnt(4)", 20: "s_waitcnt lgkmcnt(0)"}
            for m in range(8):
                gm = 8 * i + m + 3
                if gm < 128:
                    for k, r in enumerate(reads(gm)): fill[4 * m + 1 + k].append(r)
            if i < 15:
                fill[20].insert(0, ("wait", [("o", i + 1)], "")); fill[20].insert(1, "s_barrier")
            acc += rate
            ops = []
            while acc >= 1 and nxt < 16 and (nxt - NS) < i:
                ops += dma(nxt); nxt += 1; acc -= 1
            slots = [g for g in range(0, 20) if len(fill[g]) == 0] + [g for g in range(0, 20) if len(fill[g]) == 1 and g + 1 not in pre]
            slots = sorted(slots[:max(len(ops), 0)])
            assert len(slots) >= len(ops)
            for g, x in zip(slots, ops): fill[g].append(x)
            if i == 15:
                for m in range(6):
                    ops = fin(m)
                    for k, x in enumerate(ops): fill[4 * (m + 2) + k // 2].append(x)
            g = 0
            for m in range(8):
                for x in mf(i, m):
                    if g in pre: A(pre[g])
                    A(x)
                    for y in fill[g]: em(y)
                    g += 1
        assert nxt == 16
        for m in (6, 7):
            for x in fin(m): em(x)
        self.stamp("g2end")

    def dump_acc(self):
        A = self.A
        A("s_nop 15")
        A(f"s_lshl_b32 s3, s2, 2\ns_add_u32 s3, s3, s{S_W}\ns_mul_i32 s3, s3, {192*256}\ns_add_u32 s3, s3, {WS_DUMP}")
        A(f"v_lshlrev_b32 v{V_T}, 2, v{V_LANE}")
        for r in range(192):
            A(f"buffer_store_dword v{r}, v{V_T}, {srd(SRD_WS)}, s3 offen offset:{(r%16)*256}")
            if r % 16 == 15: A("s_add_u32 s3, s3, 4096")

    def diag_out(self):
        if not self.o.get("diag"): return
        A = self.A
        A("s_waitcnt vmcnt(0)")
        self.stamp("end")
        A("s_memrealtime s[68:69]")
        A("s_waitcnt lgkmcnt(0)")
        A(f"s_lshl_b32 s3, s2, 2\ns_add_u32 s3, s3, s{S_W}\ns_lshl_b32 s3, s3, 7\ns_add_u32 s3, s3, {WS_DIAG}")
        vals = ["s100", "s68"] + [f"s{S_STAMP+2*k}" for k in range(self.nstamp)]
        A(f"v_mov_b32 v{V_T+1}, 0")
        for k, s in enumerate(vals):
            A(f"v_mov_b32 v{V_T}, {s}")
            A(f"buffer_store_dword v{V_T}, v{V_T+1}, {srd(SRD_WS)}, s3 offen offset:{4*k}")

    def build(self):
        A = self.A
        self.prologue()
        self.phase1()
        if not self.o.get("p1only"):
            self.e1(); self.e2(); self.e3(); self.gemm2()
        if self.o.get("dump"): self.dump_acc()
        self.diag_out()
        A("L_END:\ns_endpgm")
        body, info = A.finish(verbose=self.o.get("verbose"))
        hdr = open("concat_heads__linear_kernel_hedgehog__linear_kernel_hedgehog__prompt.s.ref").read().split("; Override")[0]
        txt = hdr + f"""; @launch grid=(256,1,1) block=(256,1,1) lds={LDS_BYTES}
.amdgcn_target "amdgcn-amd-amdhsa--gfx950"
.text
.globl {KNAME}
.p2align 8
.type {KNAME},@function
{KNAME}:
{body}
.section .rodata,"a"
.p2align 6
.amdhsa_kernel {KNAME}
  .amdhsa_next_free_vgpr 512
  .amdhsa_next_free_sgpr 102
  .amdhsa_accum_offset 256
  .amdhsa_group_segment_fixed_size 0
  .amdhsa_kernarg_size 88
  .amdhsa_user_sgpr_count 2
  .amdhsa_user_sgpr_kernarg_segment_ptr 1
  .amdhsa_system_sgpr_workgroup_id_x 1
.end_amdhsa_kernel
"""
        return txt, info

if __name__ == "__main__":
    out = sys.argv[1]
    opt = {}
    for a in sys.argv[2:]:
        k, v = a.split("=", 1)
        opt[k] = eval(v)
    g = Gen(opt)
    txt, info = g.build()
    open(out, "w").write(txt)
    json.dump(dict(stamps=g.stamp_names, opt={k: str(v) for k, v in opt.items()}), open(out + ".json", "w"))
    print(out, info, len(g.stamp_names))
```

```python
import sys, json
from asmlib import Asm
KNAME = "concat_heads__linear_kernel_hedgehog__linear_kernel_hedgehog__prompt_kernel"

WS_KV   = 0x000000
WS_Z    = 0x200000
WS_F1   = 0x220000
WS_F2   = 0x230000
WS_O    = 0x400000
WS_DIAG = 0x1000000
WS_DUMP = 0x2000000
WS_SIZE = 0x10000000

XS = [0, 32768, 65536]
WB = 98304
PHI = 159744
LDS_BYTES = 163840
TSTR = 136
X1_OFF, X1Z_OFF, X2_OFF = 0, 4096, 5120

S_PTR = 4
SRD_X, SRD_W, SRD_WO, SRD_WS, SRD_OUT, SRD_DBG, SRD_T = 12, 16, 20, 24, 28, 32, 36
S_P2 = 40
S_HEAD, S_SPIN = 46, 47
S_XCD, S_J, S_B, S_R, S_C, S_W, S_RH, S_HH = 48, 49, 50, 51, 52, 53, 54, 55
S_KX, S_KW, S_MX, S_MW = 56, 57, 58, 59
S_T0, S_T1, S_T2, S_T3 = 60, 61, 62, 63
S_L2E = 64
S_NON = 44
S_STAMP = 70

ACC = [0, 64, 128]
V_XD, V_WD, V_XA, V_WA, V_LANE = 192, 200, 203, 207, 209
V_CNT = 210
V_PHI, V_ONE, V_ID = 212, 220, 224
V_T = 232
V_PX, V_PW, V_PD = 250, 251, 252
SRD_PX, SRD_PW, S_PFX, S_PFW, S_PHASE = 4, 8, 40, 41, 42
S_KT = 66
V_ST = 240
A_W, A_X = 0, 96
A_T, A_KVX, A_ZX = 128, 160, 176
MF16, MF32 = "v_mfma_f32_16x16x32_bf16", "v_mfma_f32_32x32x16_bf16"
SPIN_MAX = 1 << 16

def srd(i): return f"s[{i}:{i+3}]"
def vr(i, n): return f"v[{i}:{i+n-1}]"
def ar(i, n): return f"a[{i}:{i+n-1}]"

class Gen:
    def __init__(self, opt):
        self.o = opt
        self.A = Asm()
        self.nstamp = 0
        self.stamp_names = []
        self.vm = []
        self.nlab = 0
        self.vm_done = []
    def stamp(self, name):
        if not self.o.get("diag"): return
        if name in self.o.get("nostamp", ("kernarg", "step7", "r1")): return
        s = S_STAMP + 2 * self.nstamp
        assert s + 1 <= 99
        self.A(f"s_memtime s[{s}:{s+1}]")
        self.nstamp += 1; self.stamp_names.append(name)
    def em(self, x):
        if isinstance(x, str): self.A(x)
        elif x[0] == "vm": self.A(x[2]); self.vm.append(x[1])
        elif x[0] == "wait": self.A(f"s_waitcnt vmcnt({0 if self.o.get('vm0') else self.vmn(x[1])}){x[2]}")
        elif x[0] == "call": x[1]()
        else: raise ValueError(x)
    def vmn(self, tags):
        for t in tags: assert t in self.vm or t in self.vm_done, t
        idx = [i for i, t in enumerate(self.vm) if t in tags]
        if not idx: return 63
        n = len(self.vm) - 1 - max(idx)
        assert n <= 63
        return n
    def padspin(self, where):
        p = self.o.get("pad")
        if not p or p[0] != where: return
        A = self.A; lab = self.label("pad")
        A(f"{lab}:\ns_memrealtime s[96:97]\ns_waitcnt lgkmcnt(0)\ns_sub_u32 s96, s96, s98\ns_cmp_lt_u32 s96, {int(p[1]*100)}\ns_cbranch_scc1 {lab}")
    def label(self, p):
        self.nlab += 1
        return f"L_{p}{self.nlab}"

    def prologue(self):
        A = self.A; o = self.o; em = self.em
        A(f"s_cmp_ge_u32 s2, 256\ns_cbranch_scc1 L_END")
        if o.get("diag"): A("s_memrealtime s[100:101]")
        if o.get("pad"): A("s_memrealtime s[98:99]")
        self.stamp("start")
        A(f"s_lshl_b32 s3, s2, 3\ns_and_b32 s3, s3, 32" if not o.get("badmap") else "s_lshr_b32 s3, s2, 2\ns_and_b32 s3, s3, 32")
        A(f"s_load_dwordx8 s[{S_PTR}:{S_PTR+7}], s[0:1], s3")
        A(f"s_load_dwordx4 s[{S_P2}:{S_P2+3}], s[0:1], 64")
        A(f"s_load_dwordx2 s[{S_P2+4}:{S_P2+5}], s[0:1], 80")
        A(f"s_getpc_b64 s[{SRD_T}:{SRD_T+1}]")
        A("L_PC:")
        A(f"v_lshrrev_b32 v1, 6, v0\nv_and_b32 v{V_LANE}, 63, v0")
        A(f"s_and_b32 s{S_XCD}, s2, 7\ns_lshr_b32 s{S_J}, s2, 3")
        if o.get("badmap"): A(f"s_lshr_b32 s{S_XCD}, s2, 5\ns_and_b32 s{S_J}, s2, 31")
        A(f"v_readfirstlane_b32 s{S_W}, v1")
        A(f"s_lshr_b32 s{S_B}, s{S_XCD}, 2\ns_and_b32 s{S_R}, s{S_J}, 7")
        cm = o.get("cmap", "blk")
        if cm == "blk":
            A(f"s_and_b32 s{S_C}, s{S_XCD}, 3\ns_lshl_b32 s{S_C}, s{S_C}, 2\ns_lshr_b32 s3, s{S_J}, 3\ns_add_u32 s{S_C}, s{S_C}, s3")
        elif cm == "il":
            A(f"s_and_b32 s{S_C}, s{S_XCD}, 3\ns_lshr_b32 s3, s{S_J}, 3\ns_lshl_b32 s3, s3, 2\ns_add_u32 s{S_C}, s{S_C}, s3")
        elif cm == "rev":
            A(f"s_and_b32 s{S_C}, s{S_XCD}, 3\ns_lshl_b32 s{S_C}, s{S_C}, 2\ns_lshr_b32 s3, s{S_J}, 3\ns_sub_u32 s{S_C}, s{S_C}, s3\ns_add_u32 s{S_C}, s{S_C}, 3")
        elif cm == "4x8":
            A(f"s_and_b32 s{S_R}, s{S_J}, 3\ns_and_b32 s3, s{S_XCD}, 1\ns_lshl_b32 s3, s3, 2\ns_add_u32 s{S_R}, s{S_R}, s3")
            A(f"s_lshr_b32 s{S_C}, s{S_J}, 2\ns_and_b32 s3, s{S_XCD}, 2\ns_lshl_b32 s3, s3, 2\ns_add_u32 s{S_C}, s{S_C}, s3")
        L = f"v{V_LANE}"; t0, t1, t2 = f"v{V_T}", f"v{V_T+1}", f"v{V_T+2}"
        A(f"s_lshr_b32 s{S_RH}, s{S_W}, 1\ns_and_b32 s{S_HH}, s{S_W}, 1")
        A(f"v_bfe_u32 {t0}, {L}, 2, 3\ns_lshl_b32 s3, s{S_W}, 3\nv_add_u32 {t0}, s3, {t0}")
        A(f"v_mul_u32_u24 {t0}, 6144, {t0}")
        A(f"v_lshrrev_b32 {t1}, 5, {L}\nv_lshl_add_u32 {t0}, {t1}, 6, {t0}")
        A(f"s_lshl_b32 s3, s{S_HH}, 1\nv_and_b32 {t1}, 3, {L}\nv_xor_b32 {t1}, s3, {t1}\nv_lshl_add_u32 v{V_WD}, {t1}, 4, {t0}")
        A(f"v_add_u32 v{V_WD+1}, 1024, v{V_WD}\nv_add_u32 v{V_WD+2}, 2048, v{V_WD}")
        A(f"v_lshrrev_b32 {t0}, 3, {L}\ns_lshl_b32 s3, s{S_W}, 6\nv_add_u32 {t0}, s3, {t0}\nv_lshlrev_b32 {t0}, 11, {t0}")
        A(f"v_lshrrev_b32 {t1}, 4, {L}\nv_and_b32 {t2}, 7, {L}\nv_xor_b32 {t1}, {t1}, {t2}")
        A(f"v_lshl_add_u32 v{V_XD}, {t1}, 4, {t0}")
        A(f"v_xor_b32 v{V_XD+1}, 64, v{V_XD}\nv_add_u32 v{V_XD+1}, {16384-1024}, v{V_XD+1}")
        for j in range(2, 8):
            d = 16384 * 2 - (2048 if j % 4 >= 2 else -2048)
            A(f"v_add_u32 v{V_XD+j}, {d}, v{V_XD+j-2}")
        A(f"s_lshl_b32 s{S_MX}, s{S_W}, 13")
        A(f"s_mul_i32 s{S_MW}, s{S_W}, 3072\ns_add_u32 s{S_MW}, s{S_MW}, {WB}")
        kp = o.get("kperm")
        if kp:
            n = kp["n"]
            win = kp.get("win", [n] * (16 // n)); assert sum(win) == 16
            tabs = []
            for a in range(n):
                order = []; st = 0
                for ln in win:
                    order += [st + (u + a * ln // n if kp.get("spread") else u + a) % ln + st * 0 if False else st + ((u + (a * ln // n if kp.get("spread") else a)) % ln) for u in range(ln)]
                    st += ln
                assert sorted(order) == list(range(16))
                tabs.append(sum(k << (4 * i) for i, k in enumerate(order)))
            A(f"s_add_u32 s{S_T2}, s{S_R}, s{S_C}\ns_and_b32 s{S_T2}, s{S_T2}, {n-1}")
            A(f"s_mov_b32 s{S_KT}, {tabs[0] & 0xffffffff}\ns_mov_b32 s{S_KT+1}, {tabs[0] >> 32}")
            for a in range(1, n):
                A(f"s_cmp_eq_u32 s{S_T2}, {a}\ns_cselect_b32 s{S_KT}, {tabs[a] & 0xffffffff}, s{S_KT}\ns_cselect_b32 s{S_KT+1}, {tabs[a] >> 32}, s{S_KT+1}")
            if kp.get("d"):
                A(kp["d"].format(d=f"s{S_T2}", xcd=f"s{S_XCD}", b=f"s{S_B}"))
                A(f"s_lshl_b32 s{S_T2}, s{S_T2}, 2\ns_lshr_b64 s[{S_T0}:{S_T1}], s[{S_KT}:{S_KT+1}], s{S_T2}")
                A(f"s_sub_u32 s{S_T2}, 63, s{S_T2}\ns_lshl_b64 s[{S_KT}:{S_KT+1}], s[{S_KT}:{S_KT+1}], s{S_T2}\ns_lshl_b64 s[{S_KT}:{S_KT+1}], s[{S_KT}:{S_KT+1}], 1")
                A(f"s_or_b64 s[{S_KT}:{S_KT+1}], s[{S_KT}:{S_KT+1}], s[{S_T0}:{S_T1}]")
            A(self.kx(0)); A(self.kw(0))
        else:
            A(f"s_mov_b32 s{S_KX}, 0\ns_mov_b32 s{S_KW}, 0")
        A(f"s_lshl_b32 s{S_T0}, s{S_R}, 19\ns_lshl_b32 s{S_T1}, s{S_C}, 7")
        A(f"s_mov_b32 s{SRD_X+2}, 0x80000\ns_mov_b32 s{SRD_X+3}, 0x20000")
        A(f"s_sub_u32 s{SRD_W+2}, 0x600000, s{S_T1}\ns_mov_b32 s{SRD_W+3}, 0x20000")
        A("s_waitcnt lgkmcnt(0)")
        A(f"s_add_u32 s{SRD_W}, s{S_PTR+2}, s{S_T1}\ns_addc_u32 s{SRD_W+1}, s{S_PTR+3}, 0")
        A(f"s_add_u32 s{SRD_X}, s{S_PTR}, s{S_T0}\ns_addc_u32 s{SRD_X+1}, s{S_PTR+1}, 0")
        self.stamp("kernarg")
        for g in [("w", 0), ("x", 0), ("w", 1)]:
            for ins in self.dma_group(*g): em(ins)
        if o.get("codepf", 1):
            A(f"s_mov_b32 s{SRD_T+2}, L_END-L_PC\ns_mov_b32 s{SRD_T+3}, 0x20000")
            A(f"v_lshlrev_b32 {t0}, 7, v0")
            n = o.get("codepf_n", 2)
            for i in range(n):
                em(("vm", "pf", f"buffer_load_dword v{V_T+4+i}, {t0}, {srd(SRD_T)}, 0 offen"))
                if i + 1 < n: A(f"v_add_u32 {t0}, 0x8000, {t0}")
        for base, p, n in ((SRD_WS, S_P2 + 4, WS_SIZE), (SRD_OUT, S_P2, 0x800000), (SRD_DBG, S_P2 + 2, 256), (SRD_WO, S_PTR + 6, 0x200000)):
            A(f"s_mov_b32 s{base}, s{p}\ns_mov_b32 s{base+1}, s{p+1}\ns_mov_b32 s{base+2}, {n}\ns_mov_b32 s{base+3}, 0x20000")
        A(f"s_lshl_b32 s{S_HEAD}, s{S_C}, 1\ns_add_u32 s{S_HEAD}, s{S_HEAD}, s{S_HH}")
        lab = self.label("non")
        A(f"s_or_b32 s3, s2, s{S_W}\ns_cmp_lg_u32 s3, 0\ns_cbranch_scc1 {lab}")
        A(f"s_memrealtime s[{S_T2}:{S_T3}]\ns_waitcnt lgkmcnt(0)\ns_or_b32 s{S_T2}, s{S_T2}, 1")
        A(f"v_mov_b32 v{V_CNT}, s{S_T2}\nv_mov_b32 v{V_CNT+1}, s{S_T3}\ns_mov_b64 exec, 1")
        A(f"buffer_store_dwordx2 {vr(V_CNT,2)}, off, {srd(SRD_DBG)}, 0 sc1")
        A(f"s_mov_b64 exec, -1\n{lab}:")
        A(f"s_mov_b32 s{SRD_T}, s{S_PTR+4}\ns_mov_b32 s{SRD_T+1}, s{S_PTR+5}\ns_mov_b32 s{SRD_T+2}, 0x10000\ns_mov_b32 s{SRD_T+3}, 0x20000")
        A(f"s_lshl_b32 s{S_T0}, s{S_C}, 12\nv_lshlrev_b32 {t0}, 4, v0")
        A(f"s_lshl_b32 s3, s{S_W}, 10\ns_add_u32 m0, s3, {PHI}")
        em(("vm", "phi", f"buffer_load_dwordx4 {t0}, {srd(SRD_T)}, s{S_T0} offen lds"))
        if o.get("pft"):
            A(f"s_lshr_b32 s{S_PHASE}, s{S_J}, 3\ns_lshl_b32 s3, s{S_PHASE}, 2\ns_add_u32 s3, s3, s{S_W}\ns_lshl_b32 s3, s3, 15")
            A(f"s_add_u32 s{S_PHASE}, s{S_PHASE}, s{S_R}\ns_and_b32 s{S_PHASE}, s{S_PHASE}, 3")
            A(f"v_lshrrev_b32 {t0}, 2, {L}\nv_lshlrev_b32 {t0}, 11, {t0}\nv_and_b32 {t1}, 3, {L}\nv_lshl_add_u32 {t0}, {t1}, 7, {t0}\nv_add_u32 v{V_PX}, s3, {t0}")
            A(f"s_lshl_b32 s3, s{S_R}, 2\ns_add_u32 s3, s3, s{S_W}\ns_mul_i32 s3, s3, 12288")
            A(f"v_lshlrev_b32 {t1}, 6, {t1}\nv_bfe_u32 {t0}, {L}, 2, 1\nv_add_u32 {t0}, {t0}, {t1}\nv_mul_u32_u24 {t0}, 6144, {t0}")
            A(f"v_lshrrev_b32 {t1}, 3, {L}\nv_lshl_add_u32 {t0}, {t1}, 11, {t0}\nv_add_u32 {t0}, s3, {t0}")
            A(f"v_cmp_gt_u32 vcc, 24, {L}\nv_bfrev_b32 {t1}, 1\nv_cndmask_b32 v{V_PW}, {t1}, {t0}, vcc")
            for d, q in ((SRD_PX, SRD_X), (SRD_PW, SRD_W)):
                A(f"s_mov_b64 s[{d}:{d+1}], s[{q}:{q+1}]\ns_mov_b32 s{d+2}, s{q+2}\ns_mov_b32 s{d+3}, 0x20000")
        pre = o.get("pre", [("x", 1), ("w", 2), ("w", 3)])
        for g in pre:
            for ins in self.dma_group(*g): em(ins)
        for st, t0_, cond in o.get("pft", []):
            if st < 0:
                for x in self.pf_ops(t0_, cond): em(x)
        self.pend0 = []
        for g in [("x", 1), ("w", 2), ("w", 3), ("x", 2), ("w", 4)]:
            if g not in pre: self.pend0 += self.dma_group(*g)
        A(f"v_and_b32 {t0}, 15, {L}\nv_lshlrev_b32 {t0}, 7, {t0}\ns_lshl_b32 s3, s{S_RH}, 14\nv_add_u32 {t0}, s3, {t0}")
        A(f"v_lshrrev_b32 {t1}, 4, {L}\nv_bfe_u32 {t2}, {L}, 1, 3\nv_xor_b32 {t1}, {t1}, {t2}")
        A(f"v_lshl_add_u32 v{V_XA}, {t1}, 4, {t0}")
        A(f"v_xor_b32 v{V_XA+1}, 64, v{V_XA}")
        for t in range(2): A(f"v_add_u32 v{V_XA+2+t}, 32768, v{V_XA+t}")
        A(f"v_lshrrev_b32 {t0}, 4, {L}\nv_mul_u32_u24 {t0}, 3072, {t0}")
        A(f"v_bfe_u32 {t1}, {L}, 2, 2\nv_lshl_add_u32 {t0}, {t1}, 6, {t0}")
        A(f"v_bfe_u32 {t1}, {L}, 4, 1\nv_lshl_add_u32 {t0}, {t1}, 5, {t0}")
        A(f"v_and_b32 {t1}, 3, {L}\nv_lshl_add_u32 {t0}, {t1}, 3, {t0}")
        A(f"s_lshl_b32 s3, s{S_HH}, 9\ns_add_u32 s3, s3, {WB}\nv_add_u32 v{V_WA}, s3, {t0}")
        A(f"v_xor_b32 v{V_WA+1}, 32, v{V_WA}")
        for i in range(4): A(f"v_mov_b32 v{V_ONE+i}, 0x3f803f80")
        A(f"v_and_b32 {t0}, 31, {L}\nv_lshrrev_b32 {t1}, 5, {L}\nv_lshlrev_b32 {t1}, 2, {t1}\nv_sub_u32 {t0}, {t0}, {t1}")
        A(f"v_mov_b32 {t1}, 0x3f80\nv_mov_b32 {t2}, 0x3f800000")
        for j in range(2):
            for u in range(4):
                f0 = 16 * j + 8 * (u // 2) + 2 * (u % 2)
                d = V_ID + 4 * j + u
                A(f"v_cmp_eq_u32 vcc, {f0}, {t0}\nv_cndmask_b32 v{d}, 0, {t1}, vcc")
                A(f"v_cmp_eq_u32 vcc, {f0+1}, {t0}\nv_cndmask_b32 v{d}, v{d}, {t2}, vcc")
        A(f"s_mov_b32 s{S_L2E}, 0x3fb8aa3b\ns_mov_b32 s{S_L2E+1}, 0x3fb8aa3b")

    def f1base(self, s):
        self.A(f"s_lshl_b32 s{s}, s{S_B}, 5\ns_add_u32 s{s}, s{s}, s{S_HEAD}\ns_lshl_b32 s{s}, s{s}, 7\ns_add_u32 s{s}, s{s}, {WS_F1}")
    def f1w(self, s):
        self.f1base(s); self.A(f"s_lshl_b32 s3, s{S_RH}, 3\ns_add_u32 s3, s3, s{S_R}\ns_lshl_b32 s3, s3, 3\ns_add_u32 s{s}, s{s}, s3")
    def f2w(self, s):
        self.A(f"s_lshl_b32 s{s}, s{S_B}, 4\ns_lshl_b32 s3, s{S_R}, 1\ns_add_u32 s{s}, s{s}, s3\ns_add_u32 s{s}, s{s}, s{S_RH}")
        self.A(f"s_lshl_b32 s{s}, s{s}, 5\ns_add_u32 s{s}, s{s}, s{S_HEAD}\ns_lshl_b32 s{s}, s{s}, 3\ns_add_u32 s{s}, s{s}, {WS_F2}")

    def kx(self, i):
        return f"s_bfe_u32 s{S_KX}, s{S_KT + i//8}, {(4 << 16) | (4*(i%8))}\ns_lshl_b32 s{S_KX}, s{S_KX}, 7"
    def kw(self, h):
        if h % 2: return f"s_add_u32 s{S_KW}, s{S_KW}, {32*6144}"
        i = h // 2
        return f"s_bfe_u32 s{S_KW}, s{S_KT + i//8}, {(4 << 16) | (4*(i%8))}\ns_mul_i32 s{S_KW}, s{S_KW}, {64*6144}"
    def dma_group(self, kind, i):
        out = []
        if kind == "x":
            base = XS[i % 3]
            for j in range(8):
                if j % 4 == 0: out.append(f"s_add_u32 m0, s{S_MX}, {base + 4096*(j//4)}" if base + j else f"s_mov_b32 m0, s{S_MX}")
                out.append(("vm", ("x", i), f"buffer_load_dwordx4 v{V_XD+j}, {srd(SRD_X)}, s{S_KX} offen offset:{1024*(j%4)}{self.o.get('xpol','')} lds"))
            if not self.o.get("kperm"): out.append(f"s_add_u32 s{S_KX}, s{S_KX}, 128")
            elif i < 15: out += self.kx(i + 1).split("\n")
        else:
            base = 12288 * (i % 5)
            out.append(f"s_add_u32 m0, s{S_MW}, {base}" if base else f"s_mov_b32 m0, s{S_MW}")
            for p in range(3):
                out.append(("vm", ("w", i), f"buffer_load_dwordx4 v{V_WD+p}, {srd(SRD_W)}, s{S_KW} offen offset:{1024*p}{self.o.get('wpol','')} lds"))
            if not self.o.get("kperm"): out.append(f"s_add_u32 s{S_KW}, s{S_KW}, {32*6144}")
            elif i < 31: out += self.kw(i + 1).split("\n")
        return out

    def pf_ops(self, t, cond):
        o = self.o
        out = []
        if cond:
            out += [f"s_and_b32 s3, s{S_PHASE}, {cond[0]}\ns_cmp_eq_u32 s3, {cond[1]}\ns_cselect_b32 s{SRD_PX+2}, s{SRD_X+2}, 0\ns_cselect_b32 s{SRD_PW+2}, s{SRD_W+2}, 0"]
        out += [f"s_mov_b32 s{S_PFX}, {128*t}", f"s_mov_b32 s{S_PFW}, {64*6144*t}",
                ("vm", "pfw", f"buffer_load_dword v{V_PD+1}, v{V_PW}, {srd(SRD_PW)}, s{S_PFW} offen{o.get('pfpolw','')}"),
                ("vm", "pfx", f"buffer_load_dword v{V_PD}, v{V_PX}, {srd(SRD_PX)}, s{S_PFX} offen{o.get('pfpolx','')}")]
        return out
    def pf_at(self, i):
        out = []
        for st, t0_, cond in self.o.get("pft", []):
            if st == i: out += self.pf_ops(t0_, cond)
        return out
    def x_reads(self, gm):
        i, m = divmod(gm, 8)
        slot = i % 3
        off = (32768 if slot >= 1 else 0) + 2048 * m
        return [f"ds_read_b128 {ar(A_X + 8*(gm%4) + 4*s, 4)}, v{V_XA + s + (2 if slot == 2 else 0)} offset:{off}" for s in range(2)]
    def w_reads(self, i):
        out = []
        for n in range(6):
            p, nb = divmod(n, 2)
            for s in range(2):
                pos = (2 * i + s) % 5
                for rd in range(2):
                    out.append(f"ds_read_b64_tr_b16 {ar(A_W + 48*(i&1) + 4*(2*n+s) + 2*rd, 2)}, v{V_WA+nb} offset:{pos*12288 + 1024*p + 256*rd}")
        return out
    def order1(self, m):
        ns = list(range(6)) if m % 2 == 0 else list(range(5, -1, -1))
        return [(n, s) for k, n in enumerate(ns) for s in ((0, 1) if k % 2 == 0 else (1, 0))]
    def mfmas1(self, i, m):
        out = []; seen = set()
        for n, s in self.order1(m):
            p, nb = divmod(n, 2)
            w = ar(A_W + 48 * (i & 1) + 4 * (2 * n + s), 4)
            x = ar(A_X + 8 * ((8 * i + m) % 4) + 4 * s, 4)
            d = vr(ACC[p] + 8 * m + 4 * nb, 4)
            c = "0" if (i == 0 and n not in seen) else d
            seen.add(n)
            a, b = (w, x) if p < 2 else (x, w)
            out.append(f"{MF16} {d}, {a}, {b}, {c}")
        return out
    def pack_ops(self, m):
        out = []; done = []
        for n, s in self.order1(m):
            if n in done: continue
            done.append(n)
            p, nb = divmod(n, 2)
            src = ACC[p] + 8 * m + 4 * nb
            if p < 2: dst = ACC[p] + 8 * (m // 2) + 4 * nb + 2 * (m % 2)
            else: dst = ACC[2] + 4 * m + 2 * nb
            out.append((n, [f"v_cvt_pk_bf16_f32 v{dst}, v{src}, v{src+1}", f"v_cvt_pk_bf16_f32 v{dst+1}, v{src+2}, v{src+3}"]))
        res = []
        parts = []
        for n, _ in out:
            if n // 2 not in parts: parts.append(n // 2)
        d = dict(out)
        for p in parts:
            res += d[2 * p] + d[2 * p + 1]
            if p == 2:
                b = ACC[2] + 4 * m
                res += [f"v_permlane16_swap_b32 v{b}, v{b+2}", f"v_permlane16_swap_b32 v{b+1}, v{b+3}"]
            elif m % 2 == 1:
                b = ACC[p] + 8 * (m // 2)
                for nb in range(2):
                    res += [f"v_permlane16_swap_b32 v{b+4*nb}, v{b+4*nb+2}", f"v_permlane16_swap_b32 v{b+4*nb+1}, v{b+4*nb+3}"]
        cv = [x for x in res if "cvt" in x]; sw = [x for x in res if "swap" in x]
        return cv + sw

    def phase1(self):
        A = self.A; o = self.o; em = self.em
        em(("wait", [("w", 0), ("x", 0), ("w", 1)], "")); A("s_barrier")
        self.stamp("first data")
        self.padspin("first")
        for r in self.x_reads(0) + self.w_reads(0)[:16] + self.x_reads(1) + self.w_reads(0)[16:] + self.x_reads(2): A(r)
        pend = list(self.pend0)
        for i in range(16):
            fill = [[] for _ in range(96)]
            pre = {}
            for m in range(5):
                for k, r in enumerate(self.x_reads(8 * i + m + 3)):
                    fill[12 * m + (9 if m == 0 else 2) + 2 * k].append(r)
            pre[0] = "s_waitcnt lgkmcnt(12)"
            pre[8] = "s_waitcnt lgkmcnt(0)"
            pre[36] = "s_waitcnt lgkmcnt(4)"
            pre[48] = "s_waitcnt lgkmcnt(4)"
            pre[60] = "s_waitcnt lgkmcnt(0)"
            bar2 = o.get("bar2")
            if bar2:
                fill[8].append("s_barrier")
                if 2 * i + 5 < 32: pend += self.dma_group("w", 2 * i + 5)
                if 2 * i + 6 < 32: pend += self.dma_group("w", 2 * i + 6)
                pend += self.pf_at(i)
            slots = [g for g in range(o.get("dma0", 10 if bar2 else 1), o.get("dma1", 59)) if not fill[g] and g not in pre and g + 1 not in pre]
            if pend:
                step = len(slots) / len(pend)
                assert step >= 1
                for k, x in enumerate(pend): fill[slots[int(k * step)]].append(x)
                pend = []
            need = [("x", i + 1), ("w", 2 * i + 2), ("w", 2 * i + 3)] if i < 15 else ["cnt"]
            if i == 0: need += ["phi"]
            fill[60].append(("wait", need, "")); fill[60].append("s_barrier")
            if i < 15:
                rd = self.x_reads(8 * i + 8) + self.w_reads(i + 1)[:16] + self.x_reads(8 * i + 9) + self.w_reads(i + 1)[16:] + self.x_reads(8 * i + 10)
                for k, r in enumerate(rd): fill[61 + k].append(r)
                if bar2:
                    if i + 3 < 16:
                        for k, x in enumerate(self.dma_group("x", i + 3)): fill[62 + (5 * k) // 2].append(x)
                else:
                    if 2 * i + 5 < 32:
                        ops = self.dma_group("w", 2 * i + 5)
                        ops += self.pf_at(i)
                        for k, x in enumerate(ops): fill[62 + 3 * k].append(x)
                    if i + 3 < 16: pend += self.dma_group("x", i + 3)
                    if 2 * i + 6 < 32: pend += self.dma_group("w", 2 * i + 6)
            if i == 0:
                fill[93].append(("call", self.phi_reads))
            if i == 14:
                pend += [("vm", "cnt", f"buffer_load_dwordx2 {vr(V_CNT,2)}, off, {srd(SRD_DBG)}, 0 sc1")]
            if i == 15 and not o.get("nopack"):
                q = []
                for g in range(12, 96):
                    if g % 12 == 1: q += self.pack_ops(g // 12 - 1)
                    for _ in range(2 - len(fill[g]) - (1 if g + 1 in pre else 0)):
                        if q: fill[g].append(q.pop(0))
                self.pack_left = q
            g = 0
            for m in range(8):
                for mf in self.mfmas1(i, m):
                    if g in pre: A(pre[g])
                    A(mf)
                    for x in fill[g]: em(x)
                    g += 1
            if i in (0, 7, 14): self.stamp(f"step{i}")
        for x in getattr(self, "pack_left", []): A(x)
        for m in (range(7, 8) if not o.get("nopack") else range(8)):
            for x in self.pack_ops(m): A(x)
        self.stamp("p1end")
        self.padspin("p1")

    def get_nonce(self):
        A = self.A
        lab, done = self.label("nl"), self.label("nd")
        A(f"s_mov_b32 s{S_SPIN}, 0\n{lab}:")
        A(f"v_readfirstlane_b32 s{S_NON}, v{V_CNT}\nv_readfirstlane_b32 s{S_NON+1}, v{V_CNT+1}")
        A(f"s_add_u32 s{S_SPIN}, s{S_SPIN}, 1\ns_nop 2\ns_cmp_lg_u32 s{S_NON}, 0\ns_cbranch_scc1 {done}")
        A(f"s_cmp_ge_u32 s{S_SPIN}, {SPIN_MAX}\ns_cbranch_scc1 {done}")
        A(f"buffer_load_dwordx2 {vr(V_CNT,2)}, off, {srd(SRD_DBG)}, 0 sc1\ns_waitcnt vmcnt(0)\ns_branch {lab}")
        A(f"{done}:")
    def phi_reads(self):
        A = self.A; L = f"v{V_LANE}"; t0, t1 = f"v{V_T+2}", f"v{V_T+3}"
        A(f"v_lshrrev_b32 {t0}, 5, {L}\nv_lshlrev_b32 {t0}, 9, {t0}")
        A(f"v_bfe_u32 {t1}, {L}, 2, 2\nv_lshl_add_u32 {t0}, {t1}, 6, {t0}")
        A(f"v_bfe_u32 {t1}, {L}, 4, 1\nv_lshl_add_u32 {t0}, {t1}, 5, {t0}")
        A(f"v_and_b32 {t1}, 3, {L}\nv_lshl_add_u32 {t0}, {t1}, 3, {t0}")
        A(f"s_lshl_b32 s3, s{S_HH}, 11\ns_add_u32 s3, s3, {PHI}\nv_add_u32 {t0}, s3, {t0}")
        for j in range(2):
            for rd in range(2):
                A(f"ds_read_b64_tr_b16 {vr(V_PHI + 4*j + 2*rd, 2)}, {t0} offset:{1024*j + 256*rd}")

    def unit_S0(self, frag, P):
        return [f"{MF32} {vr(P,16)}, {vr(V_PHI,4)}, {vr(frag,4)}, 0", f"{MF32} {vr(P,16)}, {vr(V_PHI+4,4)}, {vr(frag+4,4)}, {vr(P,16)}"]
    def unit_S1(self, P):
        a, b = V_ST, V_ST + 1
        out = [f"v_max3_f32 v{a}, v{P}, v{P+1}, v{P+2}", f"v_max3_f32 v{b}, -v{P}, -v{P+1}, -v{P+2}"]
        for k in range(3, 15, 2):
            out += [f"v_max3_f32 v{a}, v{a}, v{P+k}, v{P+k+1}", f"v_max3_f32 v{b}, v{b}, -v{P+k}, -v{P+k+1}"]
        out += [f"v_max_f32 v{a}, v{a}, v{P+15}", f"v_max_f32 v{b}, v{b}, -v{P+15}"]
        out += [f"v_permlane32_swap_b32 v{a}, v{b}", f"v_max_f32 v{a}, v{a}, v{b}", f"v_mul_f32 v{a}, 0xbfb8aa3b, v{a}", f"v_mov_b32 v{b}, v{a}",
                f"v_permlane32_swap_b32 v{a}, v{b}"]
        return out
    def unit_S2(self, P, E):
        st = vr(V_ST, 2); c = f"s[{S_L2E}:{S_L2E+1}]"
        out = [f"v_pk_fma_f32 {vr(E+2*k,2)}, {vr(P+2*k,2)}, {c}, {st} op_sel_hi:[1,1,0]" for k in range(8)]
        out += [f"v_pk_fma_f32 {vr(P+2*k,2)}, {vr(P+2*k,2)}, {c}, {st} op_sel:[0,0,1] op_sel_hi:[1,1,1] neg_lo:[1,0,0] neg_hi:[1,0,0]" for k in range(8)]
        return out
    def unit_S3(self, P, E):
        return [f"v_exp_f32 v{E+k}, v{E+k}" for k in range(16)] + [f"v_exp_f32 v{P+k}, v{P+k}" for k in range(16)]
    def unit_S4(self, P, E):
        ta, tb, tc, td = V_ST + 2, V_ST + 4, V_ST + 6, V_ST + 8
        out = [f"v_pk_add_f32 {vr(ta,2)}, {vr(E,2)}, {vr(E+2,2)}", f"v_pk_add_f32 {vr(tc,2)}, {vr(E+4,2)}, {vr(E+6,2)}"]
        for k in (8, 12): out += [f"v_pk_add_f32 {vr(ta,2)}, {vr(ta,2)}, {vr(E+k,2)}", f"v_pk_add_f32 {vr(tc,2)}, {vr(tc,2)}, {vr(E+k+2,2)}"]
        out += [f"v_pk_add_f32 {vr(ta,2)}, {vr(ta,2)}, {vr(tc,2)}"]
        out += [f"v_pk_add_f32 {vr(tb,2)}, {vr(P,2)}, {vr(P+2,2)}", f"v_pk_add_f32 {vr(td,2)}, {vr(P+4,2)}, {vr(P+6,2)}"]
        for k in (8, 12): out += [f"v_pk_add_f32 {vr(tb,2)}, {vr(tb,2)}, {vr(P+k,2)}", f"v_pk_add_f32 {vr(td,2)}, {vr(td,2)}, {vr(P+k+2,2)}"]
        out += [f"v_pk_add_f32 {vr(tb,2)}, {vr(tb,2)}, {vr(td,2)}"]
        a, b = V_ST, V_ST + 1
        out += [f"v_add_f32 v{a}, v{ta}, v{ta+1}", f"v_add_f32 v{b}, v{tb}, v{tb+1}"]
        out += [f"v_permlane32_swap_b32 v{a}, v{b}", f"v_add_f32 v{a}, v{a}, v{b}", f"v_rcp_f32 v{a}, v{a}", f"v_mov_b32 v{b}, v{a}",
                f"v_permlane32_swap_b32 v{a}, v{b}"]
        return out
    def unit_S5a(self, P, E):
        st = vr(V_ST, 2)
        out = [f"v_pk_mul_f32 {vr(E+2*k,2)}, {vr(E+2*k,2)}, {st} op_sel_hi:[1,0]" for k in range(8)]
        out += [f"v_pk_mul_f32 {vr(P+2*k,2)}, {vr(P+2*k,2)}, {st} op_sel:[0,1] op_sel_hi:[1,1]" for k in range(8)]
        return out
    def unit_S5b(self, P, E, F0, F1):
        return [f"v_cvt_pk_bf16_f32 v{F0+k}, v{E+2*k}, v{E+2*k+1}" for k in range(8)] + [f"v_cvt_pk_bf16_f32 v{F1+k}, v{P+2*k}, v{P+2*k+1}" for k in range(8)]

    def interleave(self, main, extra, start=0, every=1):
        k = 0
        for idx, x in enumerate(main):
            self.em(x)
            if idx >= start and (idx - start) % every == 0 and k < len(extra):
                e = extra[k]; k += 1
                for y in (e if isinstance(e, list) else [e]): self.em(y)
        for e in extra[k:]:
            for y in (e if isinstance(e, list) else [e]): self.em(y)

    def wo_setup(self):
        A = self.A; L = f"v{V_LANE}"; t0, t1 = f"v{V_T}", f"v{V_T+1}"
        V = V_XD
        A(f"s_lshr_b32 s{S_T0}, s{S_J}, 2\ns_lshl_b32 s{S_T0}, s{S_T0}, 8\ns_lshl_b32 s3, s{S_W}, 6\ns_add_u32 s{S_T0}, s{S_T0}, s3")
        A(f"v_lshrrev_b32 {t0}, 2, {L}\nv_lshlrev_b32 {t0}, 11, {t0}\nv_add_u32 {t0}, s{S_T0}, {t0}")
        A(f"v_bfe_u32 {t1}, {L}, 4, 1\nv_lshlrev_b32 {t1}, 1, {t1}\nv_xor_b32 {t1}, {t1}, {L}\nv_and_b32 {t1}, 3, {t1}")
        A(f"v_lshl_add_u32 v{V}, {t1}, 4, {t0}")
        for i in range(1, 4): A(f"v_add_u32 v{V+i}, {32768-1024}, v{V+i-1}")
        A(f"s_add_u32 s{S_MX}, s{S_W}, 1\ns_lshl_b32 s{S_MX}, s{S_MX}, 15\ns_mov_b32 s{S_KX}, 0")
        A(f"v_lshrrev_b32 {t0}, 5, {L}\nv_lshlrev_b32 {t0}, 10, {t0}\nv_add_u32 {t0}, s{S_MX}, {t0}")
        A(f"v_bfe_u32 {t1}, {L}, 4, 1\nv_mul_u32_u24 {t1}, {256+32}, {t1}\nv_add_u32 {t0}, {t0}, {t1}")
        A(f"v_bfe_u32 {t1}, {L}, 2, 2\nv_lshl_add_u32 {t0}, {t1}, 6, {t0}")
        A(f"v_and_b32 {t1}, 3, {L}\nv_lshl_add_u32 v{V+4}, {t1}, 3, {t0}\nv_xor_b32 v{V+5}, 32, v{V+4}")
    def wo_dma(self, rnd):
        out = []
        if self.o.get("nowodma"):
            self.vm_done.append(("wo", rnd))
            return ["s_nop 0"] * 48
        for grp in range(8):
            ops = [f"s_add_u32 m0, s{S_MX}, {4096*grp}" if grp else f"s_mov_b32 m0, s{S_MX}"]
            out.append(ops[0])
            for i in range(4):
                out.append(("vm", ("wo", rnd), f"buffer_load_dwordx4 v{V_XD+i}, {srd(SRD_WO)}, s{S_KX} offen offset:{1024*i} lds"))
            out.append(f"s_add_u32 s{S_KX}, s{S_KX}, {64*2048}")
        return out
    def wo_reads(self, rnd):
        out = []
        for kb in range(16):
            for nb in range(2):
                for rd in range(2):
                    out.append(f"ds_read_b64_tr_b16 {ar(128*rnd + 8*kb + 4*nb + 2*rd, 2)}, v{V_XD+4+nb} offset:{2048*kb + 512*rd}")
        return out

    def e1(self):
        A = self.A; o = self.o; em = self.em
        L = f"v{V_LANE}"; t0, t1 = f"v{V_T}", f"v{V_T+1}"
        V_TW, V_TR = V_WD, V_WD + 1
        KVO, ZO = 160, 176
        WSET = [(32, 48), (96, 112)]
        A(f"s_mul_i32 s3, s{S_RH}, 0x80008000")
        for k in range(8): A(f"v_xor_b32 v{V_PHI+k}, s3, v{V_PHI+k}")
        for x in self.unit_S0(ACC[1], WSET[0][0]): A(x)
        self.wo_setup()
        A(f"s_lshl_b32 s{S_T1}, s{S_W}, 13")
        A(f"v_and_b32 {t0}, 31, {L}\nv_mul_u32_u24 {t0}, {TSTR}, {t0}\nv_lshrrev_b32 {t1}, 5, {L}\nv_lshl_add_u32 {t0}, {t1}, 3, {t0}\nv_add_u32 v{V_TW}, s{S_T1}, {t0}")
        A(f"v_lshlrev_b32 {t0}, 3, {t1}\nv_bfe_u32 {t1}, {L}, 2, 2\nv_add_u32 {t0}, {t0}, {t1}\nv_mul_u32_u24 {t0}, {TSTR}, {t0}")
        A(f"v_bfe_u32 {t1}, {L}, 4, 1\nv_lshl_add_u32 {t0}, {t1}, 5, {t0}\nv_and_b32 {t1}, 3, {L}\nv_lshl_add_u32 {t0}, {t1}, 3, {t0}\nv_add_u32 v{V_TR}, s{S_T1}, {t0}")
        dma = self.wo_dma(0)
        def kv_mfmas(u):
            out = []
            for sg in (1, 0):
                kv = ar(A_KVX, 16) if sg else vr(KVO, 16)
                z = ar(A_ZX, 16) if sg else vr(ZO, 16)
                for j in range(2):
                    T = ar(A_T + 8 * sg + 4 * j, 4)
                    first = (u == 0 and j == 0)
                    out.append(f"{MF32} {kv}, {T}, {vr(ACC[2] + 8*u + 4*j, 4)}, {'0' if first else kv}")
                    out.append(f"{MF32} {z}, {T}, {vr(V_ONE,4)}, {'0' if first else z}")
            return out
        for u in range(4):
            P, E = WSET[u % 2]
            for x in self.unit_S1(P) + self.unit_S2(P, E): A(x)
            ex = []
            prev = kv_mfmas(u - 1) if u else []
            d = dma[12 * u:12 * u + 12]
            s3 = self.unit_S3(P, E)
            if prev: A("s_waitcnt lgkmcnt(0)")
            for k, x in enumerate(s3):
                A(x)
                if k % 4 == 0 and prev: A(prev[k // 4])
                if k % 4 == 2 and d: em(d.pop(0))
                if k % 8 == 3 and d: em(d.pop(0))
            assert not d
            for x in self.unit_S4(P, E) + self.unit_S5a(P, E): A(x)
            s5 = self.unit_S5b(P, E, E, E + 8)
            nxt = self.unit_S0(ACC[1] + 8 * (u + 1), WSET[(u + 1) % 2][0]) if u < 3 else []
            self.interleave(s5, nxt, start=0, every=6)
            for sg in range(2):
                for q in range(4):
                    A(f"ds_write_b64 v{V_TW}, {vr(E + 8*sg + 2*q, 2)} offset:{64*sg + 16*q}")
            for sg in (1, 0):
                for j in range(2):
                    for rd in range(2):
                        A(f"ds_read_b64_tr_b16 {ar(A_T + 8*sg + 4*j + 2*rd, 2)}, v{V_TR} offset:{64*sg + (16*j + 4*rd)*TSTR}")
        self.stamp("e1 units")
        A("s_waitcnt lgkmcnt(0)")
        last = kv_mfmas(3)
        V_XW, V_XR, V_ZW, V_ZR = V_XA, V_XA + 1, V_XA + 2, V_XA + 3
        for x in last[:4]: A(x)
        A(f"v_lshlrev_b32 {t0}, 4, {L}\nv_add_u32 v{V_XW}, s{S_T1}, {t0}\nv_xor_b32 v{V_XR}, 16384, v{V_XW}")
        A(f"v_lshrrev_b32 {t0}, 5, {L}\nv_lshlrev_b32 {t0}, 4, {t0}\nv_add_u32 v{V_ZW}, s{S_T1}, {t0}\nv_xor_b32 v{V_ZR}, 16384, v{V_ZW}")
        for x in last[4:]: A(x)
        for q in range(4): A(f"ds_write_b128 v{V_XW}, {ar(A_KVX + 4*q, 4)} offset:{X1_OFF + 1024*q}")
        A(f"s_mov_b32 exec_lo, 1\ns_mov_b32 exec_hi, 1")
        for q in range(4): A(f"ds_write_b128 v{V_ZW}, {ar(A_ZX + 4*q, 4)} offset:{X1Z_OFF + 32*q}")
        A("s_mov_b64 exec, -1")
        A("s_waitcnt lgkmcnt(0)\ns_barrier")
        R = 96
        for q in range(4): A(f"ds_read_b128 {vr(R + 4*q, 4)}, v{V_XR} offset:{X1_OFF + 1024*q}")
        for q in range(4): A(f"ds_read_b128 {vr(R + 16 + 4*q, 4)}, v{V_ZR} offset:{X1Z_OFF + 32*q}")
        A(f"s_lshl_b32 s{S_T0}, s{S_B}, 5\ns_add_u32 s{S_T0}, s{S_T0}, s{S_HEAD}\ns_lshl_b32 s{S_T0}, s{S_T0}, 3\ns_add_u32 s{S_T0}, s{S_T0}, s{S_R}")
        A(f"s_lshl_b32 s{S_T0}, s{S_T0}, 1\ns_add_u32 s{S_T0}, s{S_T0}, s{S_RH}")
        A(f"s_lshl_b32 s{S_T2}, s{S_T0}, 6\ns_add_u32 s{S_T2}, s{S_T2}, {WS_Z}\ns_lshl_b32 s{S_T0}, s{S_T0}, 11")
        A(f"v_lshlrev_b32 {t1}, 4, {L}")
        A("s_waitcnt lgkmcnt(4)")
        for k in range(8): A(f"v_pk_add_f32 {vr(KVO+2*k,2)}, {vr(KVO+2*k,2)}, {vr(R+2*k,2)}")
        for k in range(8): A(f"v_cvt_pk_bf16_f32 v{KVO+k}, v{KVO+2*k}, v{KVO+2*k+1}")
        for j in range(2): em(("vm", "pub1", f"buffer_store_dwordx4 {vr(KVO+4*j,4)}, {t1}, {srd(SRD_WS)}, s{S_T0} offen offset:{1024*j} sc1"))
        A("s_waitcnt lgkmcnt(0)")
        for k in range(8): A(f"v_pk_add_f32 {vr(ZO+2*k,2)}, {vr(ZO+2*k,2)}, {vr(R+16+2*k,2)}")
        for k in range(8): A(f"v_cvt_pk_bf16_f32 v{ZO+k}, v{ZO+2*k}, v{ZO+2*k+1}")
        A(f"s_mov_b32 exec_lo, 1\ns_mov_b32 exec_hi, 1")
        for j in range(2): em(("vm", "pub1", f"buffer_store_dwordx4 {vr(ZO+4*j,4)}, {t0}, {srd(SRD_WS)}, s{S_T2} offen offset:{32*j} sc1"))
        A("s_mov_b64 exec, -1")
        self.stamp("pub1")

    def flag_store(self, fn, tags):
        A = self.A
        fn(S_T0)
        self.em(("wait", tags, ""))
        A(f"s_mov_b64 exec, 1")
        self.em(("vm", "flag", f"buffer_store_dwordx2 {vr(V_CNT,2)}, off, {srd(SRD_WS)}, s{S_T0} sc1"))
        A("s_mov_b64 exec, -1")

    def poll(self, soff, nlanes):
        A = self.A
        lab, done = self.label("poll"), self.label("pdone")
        A(f"v_lshlrev_b32 v{V_T+6}, 3, v{V_LANE}\ns_mov_b32 s{S_SPIN}, 0")
        A("s_mov_b32 exec_hi, 0")
        if nlanes < 32: A(f"s_mov_b32 exec_lo, {(1 << nlanes) - 1}")
        A(f"{lab}:")
        A(f"buffer_load_dwordx2 {vr(V_T+2,2)}, v{V_T+6}, {srd(SRD_WS)}, {soff} offen sc1")
        A(f"s_add_u32 s{S_SPIN}, s{S_SPIN}, 1")
        A("s_waitcnt vmcnt(0)")
        A(f"v_cmp_ne_u64 vcc, s[{S_NON}:{S_NON+1}], {vr(V_T+2,2)}")
        A(f"s_cmp_ge_u32 s{S_SPIN}, {SPIN_MAX}\ns_cbranch_scc1 {done}")
        A(f"s_nop 4\ns_cbranch_vccnz {lab}")
        A(f"{done}:\ns_mov_b64 exec, -1")
        self.vm_done += self.vm; self.vm = []

    FQ = [64, 80, 128, 144]
    def e2(self):
        A = self.A; o = self.o; em = self.em
        WSET = [(32, 48), (96, 112)]
        self.em(("wait", [("wo", 0)], ""))
        r1 = self.wo_reads(0)
        for x in self.unit_S0(ACC[0], WSET[0][0]): A(x)
        for x in r1: A(x)
        self.stamp("r1")
        dma = self.wo_dma(1)
        for u in range(4):
            P, E = WSET[u % 2]
            for x in self.unit_S1(P) + self.unit_S2(P, E): A(x)
            d = dma[16 * (u - 1):16 * u] if u else []
            if u == 1: A("s_waitcnt lgkmcnt(0)")
            for k, x in enumerate(self.unit_S3(P, E)):
                A(x)
                if k % 2 == 1 and d: em(d.pop(0))
            assert not d
            for x in self.unit_S4(P, E) + self.unit_S5a(P, E): A(x)
            s5 = self.unit_S5b(P, E, self.FQ[u], self.FQ[u] + 8)
            nxt = self.unit_S0(ACC[0] + 8 * (u + 1), WSET[(u + 1) % 2][0]) if u < 3 else []
            self.interleave(s5, nxt, start=0, every=6)
            if u == 0:
                self.get_nonce()
                self.flag_store(self.f1w, ["pub1"])
        self.stamp("e2")

    def e3(self):
        A = self.A; o = self.o; em = self.em
        L = f"v{V_LANE}"; t0, t1 = f"v{V_T}", f"v{V_T+1}"
        V_XW, V_XR = V_XA, V_XA + 1
        A(f"s_lshl_b32 s{S_T1}, s{S_B}, 5\ns_add_u32 s{S_T1}, s{S_T1}, s{S_HEAD}")
        A(f"s_lshl_b32 s{S_T2}, s{S_T1}, 10\ns_add_u32 s{S_T2}, s{S_T2}, {WS_Z}")
        A(f"s_lshl_b32 s{S_T1}, s{S_T1}, 15\ns_lshl_b32 s3, s{S_RH}, 11\ns_add_u32 s{S_T1}, s{S_T1}, s3")
        A(f"v_lshlrev_b32 {t0}, 4, {L}")
        tz = f"v{V_T+4}"; tz2 = f"v{V_T+5}"
        A(f"v_bfe_u32 {t1}, {L}, 3, 1\nv_lshlrev_b32 {t1}, 2, {t1}\nv_and_b32 {tz}, 3, {L}\nv_add_u32 {tz}, {tz}, {t1}\nv_lshlrev_b32 {tz}, 7, {tz}")
        A(f"v_lshrrev_b32 {t1}, 5, {L}\nv_lshl_add_u32 {tz}, {t1}, 4, {tz}\ns_lshl_b32 s3, s{S_RH}, 6\nv_add_u32 {tz}, s3, {tz}\nv_xor_b32 {tz2}, 64, {tz}")
        self.f1base(S_T0)
        self.poll(f"s{S_T0}", 16)
        self.stamp("sync1")
        PL, ZF, S, KVF = 0, 96, 112, 160
        for r in range(8):
            for j in range(2):
                em(("vm", ("pl", r), f"buffer_load_dwordx4 {vr(PL + 8*r + 4*j, 4)}, {t0}, {srd(SRD_WS)}, s{S_T1} offen offset:{1024*j} sc1"))
            if r < 7: A(f"s_add_u32 s{S_T1}, s{S_T1}, 4096")
        for sl in range(2):
            for j in range(2):
                em(("vm", "zl", f"buffer_load_dwordx4 {vr(ZF + 8*sl + 4*j, 4)}, {tz2 if sl else tz}, {srd(SRD_WS)}, s{S_T2} offen offset:{32*j} sc1"))
        for r in range(8):
            em(("wait", [("pl", r)], ""))
            for j in range(2):
                A(f"{MF32} {vr(S,16)}, {vr(V_ID + 4*j, 4)}, {vr(PL + 8*r + 4*j, 4)}, {'0' if r + j == 0 else vr(S,16)}")
        A(f"s_lshl_b32 s{S_T1}, s{S_B}, 4\ns_lshl_b32 s3, s{S_R}, 1\ns_add_u32 s{S_T1}, s{S_T1}, s3\ns_add_u32 s{S_T1}, s{S_T1}, s{S_RH}")
        A(f"s_lshl_b32 s{S_T1}, s{S_T1}, 5\ns_add_u32 s{S_T1}, s{S_T1}, s{S_HEAD}\ns_lshl_b32 s{S_T1}, s{S_T1}, 13\ns_add_u32 s{S_T1}, s{S_T1}, {WS_O}")
        A(f"v_bfe_u32 {t0}, {L}, 4, 1\nv_lshlrev_b32 {t0}, 10, {t0}\nv_lshrrev_b32 {t1}, 5, {L}\nv_lshl_add_u32 {t0}, {t1}, 8, {t0}\nv_and_b32 {t1}, 15, {L}\nv_lshl_add_u32 {t0}, {t1}, 4, {t0}")
        for k in range(8): A(f"v_cvt_pk_bf16_f32 v{KVF+k}, v{S+2*k}, v{S+2*k+1}")
        for j in range(2): A(f"ds_write_b128 v{V_XW}, {vr(KVF + 4*j, 4)} offset:{X2_OFF + 1024*j}")
        A("s_waitcnt lgkmcnt(0)\ns_barrier")
        for j in range(2): A(f"ds_read_b128 {vr(KVF + 8 + 4*j, 4)}, v{V_XR} offset:{X2_OFF + 1024*j}")
        em(("wait", ["zl"], ""))
        self.stamp("kvsum")
        SETS = [(0, 16), (32, 48)]
        def mm(u):
            N, D = SETS[u % 2]; F = self.FQ[u]
            den = [f"{MF32} {vr(D,16)}, {vr(ZF + 4*k, 4)}, {vr(F + 4*k, 4)}, {'0' if k == 0 else vr(D,16)}" for k in range(4)]
            num = [f"{MF32} {vr(N,16)}, {vr(KVF + 4*k, 4)}, {vr(F + 4*k, 4)}, {'0' if k == 0 else vr(N,16)}" for k in range(4)]
            return den, num
        def fin(u):
            N, D = SETS[u % 2]
            a = [f"v_add_f32 v{D}, v{D}, v{D+1}", f"v_add_f32 v{D+2}, v{D+2}, v{D+3}", f"v_add_f32 v{D+4}, v{D+4}, v{D+5}", f"v_add_f32 v{D+6}, v{D+6}, v{D+7}",
                 f"v_add_f32 v{D}, v{D}, v{D+2}", f"v_add_f32 v{D+4}, v{D+4}, v{D+6}", f"v_add_f32 v{D}, v{D}, v{D+4}", f"v_add_f32 v{D}, 0x358637bd, v{D}",
                 f"v_rcp_f32 v{D}, v{D}"]
            b = [f"v_mul_f32 v{N+k}, v{N+k}, v{D}" for k in range(16)]
            b += [f"v_cvt_pk_bf16_f32 v{N+k}, v{N+2*k}, v{N+2*k+1}" for k in range(8)]
            b += [("vm", "pub2", f"buffer_store_dwordx4 {vr(N+4*j,4)}, {t0}, {srd(SRD_WS)}, s{S_T1} offen offset:{2048*(u%2) + 512*j} sc1") for j in range(2)]
            if u == 1: b.append(f"s_add_u32 s{S_T1}, s{S_T1}, 4096")
            return a, b
        d0, n0 = mm(0)
        for x in d0: A(x)
        A("s_waitcnt lgkmcnt(0)")
        for x in n0: A(x)
        for u in range(4):
            a, b = fin(u)
            if u < 3:
                d, n = mm(u + 1)
                self.interleave(a + b[:24], d + n, start=0, every=4)
                for x in b[24:]: em(x)
            else:
                for x in a + b: em(x)
        self.stamp("e3")
        r2 = self.wo_reads(1)
        h = o.get("r2split", 64)
        for x in r2[:h]: A(x)
        self.flag_store(self.f2w, ["pub2"])
        for x in r2[h:]: A(x)
        self.stamp("pub2")
        self.padspin("pub2")

    def gemm2(self):
        A = self.A; o = self.o; em = self.em
        L = f"v{V_LANE}"; t0, t1 = f"v{V_T}", f"v{V_T+1}"
        V_OD, V_OA, V_OUT, OF = V_WD, V_XA, V_WD + 1, 64
        NS = 10
        A(f"s_and_b32 s{S_T2}, s{S_XCD}, 3\ns_lshl_b32 s{S_T2}, s{S_T2}, 2\ns_and_b32 s3, s{S_J}, 3\ns_add_u32 s{S_T2}, s{S_T2}, s3")
        A(f"s_lshl_b32 s{S_T1}, s{S_B}, 4\ns_add_u32 s{S_T1}, s{S_T1}, s{S_T2}")
        A(f"s_lshl_b32 s{S_T0}, s{S_T1}, 8\ns_add_u32 s{S_T0}, s{S_T0}, {WS_F2}")
        A(f"s_lshl_b32 s{S_KX}, s{S_T1}, 18\ns_add_u32 s{S_KX}, s{S_KX}, {WS_O}")
        A(f"s_lshl_b32 s{S_MX}, s{S_W}, 12")
        A(f"v_lshlrev_b32 v{V_OA}, 4, {L}\nv_add_u32 v{V_OD}, s{S_MX}, v{V_OA}")
        A(f"v_add_u32 v{V_OA+1}, 0x10000, v{V_OA}\nv_add_u32 v{V_OA+2}, 0x20000, v{V_OA}")
        A(f"s_lshl_b32 s{S_KW}, s{S_T2}, 19\ns_lshl_b32 s3, s{S_B}, 11\ns_add_u32 s{S_KW}, s{S_KW}, s3")
        A(f"s_lshr_b32 s3, s{S_J}, 2\ns_lshl_b32 s3, s3, 8\ns_add_u32 s{S_KW}, s{S_KW}, s3\ns_lshl_b32 s3, s{S_W}, 6\ns_add_u32 s{S_KW}, s{S_KW}, s3")
        A(f"v_and_b32 {t0}, 15, {L}\nv_lshlrev_b32 {t0}, 12, {t0}\nv_bfe_u32 {t1}, {L}, 4, 1\nv_lshl_add_u32 {t0}, {t1}, 5, {t0}\nv_lshrrev_b32 {t1}, 5, {L}\nv_lshl_add_u32 v{V_OUT}, {t1}, 4, {t0}")
        A("s_waitcnt lgkmcnt(0)\ns_barrier")
        self.poll(f"s{S_T0}", 32)
        self.stamp("sync2")
        def dma(i):
            base = 16384 * (i % NS)
            out = [f"s_add_u32 m0, s{S_MX}, {base}" if base else f"s_mov_b32 m0, s{S_MX}"]
            out += [("vm", ("o", i), f"buffer_load_dwordx4 v{V_OD}, {srd(SRD_WS)}, s{S_KX} offen offset:{1024*k} sc1 lds") for k in range(4)]
            out.append(f"s_add_u32 s{S_KX}, s{S_KX}, 16384")
            return out
        def reads(gm):
            i, m = divmod(gm, 8)
            off = 16384 * (i % NS) + 1024 * m
            return [f"ds_read_b128 {vr(OF + 8*(gm%4) + 4*s, 4)}, v{V_OA + (off + 8192*s) // 65536} offset:{(off + 8192*s) % 65536}" for s in range(2)]
        def mf(i, m):
            out = []
            nbs = (0, 1) if m % 2 == 0 else (1, 0)
            for k, nb in enumerate(nbs):
                for q, s in enumerate((0, 1) if k == 0 else (1, 0)):
                    d = vr(8 * m + 4 * nb, 4)
                    out.append(f"{MF16} {d}, {ar(8*(2*i+s) + 4*nb, 4)}, {vr(OF + 8*((8*i+m)%4) + 4*s, 4)}, {'0' if i == 0 and q == 0 else d}")
            return out
        def fin(m):
            b = 8 * m
            return [f"v_cvt_pk_bf16_f32 v{b}, v{b}, v{b+1}", f"v_cvt_pk_bf16_f32 v{b+1}, v{b+2}, v{b+3}",
                    f"v_cvt_pk_bf16_f32 v{b+2}, v{b+4}, v{b+5}", f"v_cvt_pk_bf16_f32 v{b+3}, v{b+6}, v{b+7}",
                    f"v_permlane16_swap_b32 v{b}, v{b+2}", f"v_permlane16_swap_b32 v{b+1}, v{b+3}",
                    ("vm", "out", f"buffer_store_dwordx4 {vr(b,4)}, v{V_OUT}, {srd(SRD_OUT)}, s{S_KW} offen{o.get('outpol','')}"), f"s_add_u32 s{S_KW}, s{S_KW}, 0x10000"]
        npre = o.get("g2pre", 3)
        for i in range(npre):
            for x in dma(i): em(x)
        nxt = npre
        em(("wait", [("o", 0)], "")); A("s_barrier")
        self.stamp("o first")
        for gm in range(3):
            for r in reads(gm): A(r)
        rate = o.get("g2rate", 1.5)
        acc = 0.0
        for i in range(16):
            fill = [[] for _ in range(32)]
            pre = {0: "s_waitcnt lgkmcnt(4)", 4: "s_waitcnt lgkmcnt(4)", 8: "s_waitcnt lgkmcnt(4)", 12: "s_waitcnt lgkmcnt(4)", 16: "s_waitcnt lgkmcnt(4)", 20: "s_waitcnt lgkmcnt(0)"}
            for m in range(8):
                gm = 8 * i + m + 3
                if gm < 128:
                    for k, r in enumerate(reads(gm)): fill[4 * m + 1 + k].append(r)
            if i < 15:
                fill[20].insert(0, ("wait", [("o", i + 1)], "")); fill[20].insert(1, "s_barrier")
            acc += rate
            ops = []
            while acc >= 1 and nxt < 16 and (nxt - NS) < i:
                ops += dma(nxt); nxt += 1; acc -= 1
            slots = [g for g in range(0, 20) if len(fill[g]) == 0] + [g for g in range(0, 20) if len(fill[g]) == 1 and g + 1 not in pre]
            slots = sorted(slots[:max(len(ops), 0)])
            assert len(slots) >= len(ops)
            for g, x in zip(slots, ops): fill[g].append(x)
            if i == 15:
                for m in range(6):
                    ops = fin(m)
                    for k, x in enumerate(ops): fill[4 * (m + 2) + k // 2].append(x)
            g = 0
            for m in range(8):
                for x in mf(i, m):
                    if g in pre: A(pre[g])
                    A(x)
                    for y in fill[g]: em(y)
                    g += 1
        assert nxt == 16
        for m in (6, 7):
            for x in fin(m): em(x)
        self.stamp("g2end")
        self.padspin("end")

    def dump_acc(self):
        A = self.A
        A("s_nop 15")
        A(f"s_lshl_b32 s3, s2, 2\ns_add_u32 s3, s3, s{S_W}\ns_mul_i32 s3, s3, {192*256}\ns_add_u32 s3, s3, {WS_DUMP}")
        A(f"v_lshlrev_b32 v{V_T}, 2, v{V_LANE}")
        for r in range(192):
            A(f"buffer_store_dword v{r}, v{V_T}, {srd(SRD_WS)}, s3 offen offset:{(r%16)*256}")
            if r % 16 == 15: A("s_add_u32 s3, s3, 4096")

    def diag_out(self):
        if not self.o.get("diag"): return
        A = self.A
        A("s_waitcnt vmcnt(0)")
        self.stamp("end")
        A("s_memrealtime s[68:69]")
        A("s_waitcnt lgkmcnt(0)")
        A(f"s_lshl_b32 s3, s2, 2\ns_add_u32 s3, s3, s{S_W}\ns_lshl_b32 s3, s3, 7\ns_add_u32 s3, s3, {WS_DIAG}")
        vals = ["s100", "s68"] + [f"s{S_STAMP+2*k}" for k in range(self.nstamp)]
        A(f"v_mov_b32 v{V_T+1}, 0")
        for k, s in enumerate(vals):
            A(f"v_mov_b32 v{V_T}, {s}")
            A(f"buffer_store_dword v{V_T}, v{V_T+1}, {srd(SRD_WS)}, s3 offen offset:{4*k}")

    def build(self):
        A = self.A
        self.prologue()
        self.phase1()
        if not self.o.get("p1only"):
            self.e1(); self.e2(); self.e3(); self.gemm2()
        if self.o.get("dump"): self.dump_acc()
        self.diag_out()
        A("L_END:\ns_endpgm")
        body, info = A.finish(verbose=self.o.get("verbose"))
        hdr = open("concat_heads__linear_kernel_hedgehog__linear_kernel_hedgehog__prompt.s.ref").read().split("; Override")[0]
        txt = hdr + f"""; @launch grid=(256,1,1) block=(256,1,1) lds={LDS_BYTES}
.amdgcn_target "amdgcn-amd-amdhsa--gfx950"
.text
.globl {KNAME}
.p2align 8
.type {KNAME},@function
{KNAME}:
{body}
.section .rodata,"a"
.p2align 6
.amdhsa_kernel {KNAME}
  .amdhsa_next_free_vgpr 512
  .amdhsa_next_free_sgpr 102
  .amdhsa_accum_offset 256
  .amdhsa_group_segment_fixed_size 0
  .amdhsa_kernarg_size 88
  .amdhsa_user_sgpr_count 2
  .amdhsa_user_sgpr_kernarg_segment_ptr 1
  .amdhsa_system_sgpr_workgroup_id_x 1
.end_amdhsa_kernel
"""
        return txt, info

if __name__ == "__main__":
    out = sys.argv[1]
    opt = {}
    for a in sys.argv[2:]:
        k, v = a.split("=", 1)
        opt[k] = eval(v)
    g = Gen(opt)
    txt, info = g.build()
    open(out, "w").write(txt)
    json.dump(dict(stamps=g.stamp_names, opt={k: str(v) for k, v in opt.items()}), open(out + ".json", "w"))
    print(out, info, len(g.stamp_names))
```

```python
import sys, json
from asmlib import Asm
KNAME = "concat_heads__linear_kernel_hedgehog__linear_kernel_hedgehog__prompt_kernel"

WS_KV   = 0x000000
WS_Z    = 0x200000
WS_F1   = 0x220000
WS_F2   = 0x230000
WS_O    = 0x400000
WS_DIAG = 0x1000000
WS_DUMP = 0x2000000
WS_SIZE = 0x10000000

XS = [0, 32768, 65536]
WB = 98304
PHI = 159744
LDS_BYTES = 163840
TSTR = 136
X1_OFF, X1Z_OFF, X2_OFF = 0, 4096, 5120

S_PTR = 4
SRD_X, SRD_W, SRD_WO, SRD_WS, SRD_OUT, SRD_DBG, SRD_T = 12, 16, 20, 24, 28, 32, 36
S_P2 = 40
S_HEAD, S_SPIN = 46, 47
S_XCD, S_J, S_B, S_R, S_C, S_W, S_RH, S_HH = 48, 49, 50, 51, 52, 53, 54, 55
S_KX, S_KW, S_MX, S_MW = 56, 57, 58, 59
S_T0, S_T1, S_T2, S_T3 = 60, 61, 62, 63
S_L2E = 64
S_NON = 44
S_STAMP = 70

ACC = [0, 64, 128]
V_XD, V_WD, V_XA, V_WA, V_LANE = 192, 200, 203, 207, 209
V_CNT = 210
V_PHI, V_ONE, V_ID = 212, 220, 224
V_T = 232
V_PX, V_PW, V_PD = 250, 251, 252
SRD_PX, SRD_PW, S_PFX, S_PFW, S_PHASE = 4, 8, 40, 41, 42
S_KT = 66
V_ST = 240
A_W, A_X = 0, 96
A_T, A_KVX, A_ZX = 128, 160, 176
MF16, MF32 = "v_mfma_f32_16x16x32_bf16", "v_mfma_f32_32x32x16_bf16"
SPIN_MAX = 1 << 16

def srd(i): return f"s[{i}:{i+3}]"
def vr(i, n): return f"v[{i}:{i+n-1}]"
def ar(i, n): return f"a[{i}:{i+n-1}]"

class Gen:
    def __init__(self, opt):
        self.o = opt
        self.A = Asm()
        self.nstamp = 0
        self.stamp_names = []
        self.vm = []
        self.nlab = 0
        self.vm_done = []
    def stamp(self, name):
        if self.o.get("pad") and self.o["pad"][0] == "@" + name: self.padspin("@" + name)
        if name[0] == "u" and name[1].isdigit() and "stamps" not in self.o: return
        if not self.o.get("diag"): return
        if "stamps" in self.o:
            if name not in self.o["stamps"] and name not in ("start", "end"): return
        elif name in self.o.get("nostamp", ("kernarg", "step7", "r1")): return
        s = S_STAMP + 2 * self.nstamp
        assert s + 1 <= 99
        self.A(f"s_memrealtime s[{s}:{s+1}]" if self.o.get("rt") else f"s_memtime s[{s}:{s+1}]")
        self.nstamp += 1; self.stamp_names.append(name)
    def em(self, x):
        if isinstance(x, str): self.A(x)
        elif x[0] == "vm": self.A(x[2]); self.vm.append(x[1])
        elif x[0] == "wait": self.A(f"s_waitcnt vmcnt({0 if self.o.get('vm0') else self.vmn(x[1])}){x[2]}")
        elif x[0] == "call": x[1]()
        else: raise ValueError(x)
    def vmn(self, tags):
        for t in tags: assert t in self.vm or t in self.vm_done, t
        idx = [i for i, t in enumerate(self.vm) if t in tags]
        if not idx: return 63
        n = len(self.vm) - 1 - max(idx)
        assert n <= 63
        return n
    def padspin(self, where):
        p = self.o.get("pad")
        if not p or p[0] != where: return
        A = self.A; lab = self.label("pad")
        A(f"{lab}:\ns_memrealtime s[96:97]\ns_waitcnt lgkmcnt(0)\ns_sub_u32 s96, s96, s98\ns_cmp_lt_u32 s96, {int(p[1]*100)}\ns_cbranch_scc1 {lab}")
    def label(self, p):
        self.nlab += 1
        return f"L_{p}{self.nlab}"

    def prologue(self):
        A = self.A; o = self.o; em = self.em
        A(f"s_cmp_ge_u32 s2, 256\ns_cbranch_scc1 L_END")
        if o.get("diag"): A("s_memrealtime s[100:101]")
        if o.get("pad"): A("s_memrealtime s[98:99]")
        self.stamp("start")
        A(f"s_lshl_b32 s3, s2, 3\ns_and_b32 s3, s3, 32" if not o.get("badmap") else "s_lshr_b32 s3, s2, 2\ns_and_b32 s3, s3, 32")
        A(f"s_load_dwordx8 s[{S_PTR}:{S_PTR+7}], s[0:1], s3")
        A(f"s_load_dwordx4 s[{S_P2}:{S_P2+3}], s[0:1], 64")
        A(f"s_load_dwordx2 s[{S_P2+4}:{S_P2+5}], s[0:1], 80")
        A(f"s_getpc_b64 s[{SRD_T}:{SRD_T+1}]")
        A("L_PC:")
        A(f"v_lshrrev_b32 v1, 6, v0\nv_and_b32 v{V_LANE}, 63, v0")
        A(f"s_and_b32 s{S_XCD}, s2, 7\ns_lshr_b32 s{S_J}, s2, 3")
        if o.get("badmap"): A(f"s_lshr_b32 s{S_XCD}, s2, 5\ns_and_b32 s{S_J}, s2, 31")
        A(f"v_readfirstlane_b32 s{S_W}, v1")
        A(f"s_lshr_b32 s{S_B}, s{S_XCD}, 2\ns_and_b32 s{S_R}, s{S_J}, 7")
        cm = o.get("cmap", "blk")
        if cm == "blk":
            A(f"s_and_b32 s{S_C}, s{S_XCD}, 3\ns_lshl_b32 s{S_C}, s{S_C}, 2\ns_lshr_b32 s3, s{S_J}, 3\ns_add_u32 s{S_C}, s{S_C}, s3")
        elif cm == "il":
            A(f"s_and_b32 s{S_C}, s{S_XCD}, 3\ns_lshr_b32 s3, s{S_J}, 3\ns_lshl_b32 s3, s3, 2\ns_add_u32 s{S_C}, s{S_C}, s3")
        elif cm == "rev":
            A(f"s_and_b32 s{S_C}, s{S_XCD}, 3\ns_lshl_b32 s{S_C}, s{S_C}, 2\ns_lshr_b32 s3, s{S_J}, 3\ns_sub_u32 s{S_C}, s{S_C}, s3\ns_add_u32 s{S_C}, s{S_C}, 3")
        elif cm == "4x8":
            A(f"s_and_b32 s{S_R}, s{S_J}, 3\ns_and_b32 s3, s{S_XCD}, 1\ns_lshl_b32 s3, s3, 2\ns_add_u32 s{S_R}, s{S_R}, s3")
            A(f"s_lshr_b32 s{S_C}, s{S_J}, 2\ns_and_b32 s3, s{S_XCD}, 2\ns_lshl_b32 s3, s3, 2\ns_add_u32 s{S_C}, s{S_C}, s3")
        L = f"v{V_LANE}"; t0, t1, t2 = f"v{V_T}", f"v{V_T+1}", f"v{V_T+2}"
        A(f"s_lshr_b32 s{S_RH}, s{S_W}, 1\ns_and_b32 s{S_HH}, s{S_W}, 1")
        A(f"v_bfe_u32 {t0}, {L}, 2, 3\ns_lshl_b32 s3, s{S_W}, 3\nv_add_u32 {t0}, s3, {t0}")
        A(f"v_mul_u32_u24 {t0}, 6144, {t0}")
        A(f"v_lshrrev_b32 {t1}, 5, {L}\nv_lshl_add_u32 {t0}, {t1}, 6, {t0}")
        A(f"s_lshl_b32 s3, s{S_HH}, 1\nv_and_b32 {t1}, 3, {L}\nv_xor_b32 {t1}, s3, {t1}\nv_lshl_add_u32 v{V_WD}, {t1}, 4, {t0}")
        A(f"v_add_u32 v{V_WD+1}, 1024, v{V_WD}\nv_add_u32 v{V_WD+2}, 2048, v{V_WD}")
        A(f"v_lshrrev_b32 {t0}, 3, {L}\ns_lshl_b32 s3, s{S_W}, 6\nv_add_u32 {t0}, s3, {t0}\nv_lshlrev_b32 {t0}, 11, {t0}")
        A(f"v_lshrrev_b32 {t1}, 4, {L}\nv_and_b32 {t2}, 7, {L}\nv_xor_b32 {t1}, {t1}, {t2}")
        A(f"v_lshl_add_u32 v{V_XD}, {t1}, 4, {t0}")
        A(f"v_xor_b32 v{V_XD+1}, 64, v{V_XD}\nv_add_u32 v{V_XD+1}, {16384-1024}, v{V_XD+1}")
        for j in range(2, 8):
            d = 16384 * 2 - (2048 if j % 4 >= 2 else -2048)
            A(f"v_add_u32 v{V_XD+j}, {d}, v{V_XD+j-2}")
        A(f"s_lshl_b32 s{S_MX}, s{S_W}, 13")
        A(f"s_mul_i32 s{S_MW}, s{S_W}, 3072\ns_add_u32 s{S_MW}, s{S_MW}, {WB}")
        kp = o.get("kperm")
        if kp:
            n = kp["n"]
            win = kp.get("win", [n] * (16 // n)); assert sum(win) == 16
            tabs = []
            for a in range(n):
                order = []; st = 0
                for ln in win:
                    order += [st + (u + a * ln // n if kp.get("spread") else u + a) % ln + st * 0 if False else st + ((u + (a * ln // n if kp.get("spread") else a)) % ln) for u in range(ln)]
                    st += ln
                assert sorted(order) == list(range(16))
                tabs.append(sum(k << (4 * i) for i, k in enumerate(order)))
            A(f"s_add_u32 s{S_T2}, s{S_R}, s{S_C}\ns_and_b32 s{S_T2}, s{S_T2}, {n-1}")
            A(f"s_mov_b32 s{S_KT}, {tabs[0] & 0xffffffff}\ns_mov_b32 s{S_KT+1}, {tabs[0] >> 32}")
            for a in range(1, n):
                A(f"s_cmp_eq_u32 s{S_T2}, {a}\ns_cselect_b32 s{S_KT}, {tabs[a] & 0xffffffff}, s{S_KT}\ns_cselect_b32 s{S_KT+1}, {tabs[a] >> 32}, s{S_KT+1}")
            if kp.get("d"):
                A(kp["d"].format(d=f"s{S_T2}", xcd=f"s{S_XCD}", b=f"s{S_B}"))
                A(f"s_lshl_b32 s{S_T2}, s{S_T2}, 2\ns_lshr_b64 s[{S_T0}:{S_T1}], s[{S_KT}:{S_KT+1}], s{S_T2}")
                A(f"s_sub_u32 s{S_T2}, 63, s{S_T2}\ns_lshl_b64 s[{S_KT}:{S_KT+1}], s[{S_KT}:{S_KT+1}], s{S_T2}\ns_lshl_b64 s[{S_KT}:{S_KT+1}], s[{S_KT}:{S_KT+1}], 1")
                A(f"s_or_b64 s[{S_KT}:{S_KT+1}], s[{S_KT}:{S_KT+1}], s[{S_T0}:{S_T1}]")
            A(self.kx(0)); A(self.kw(0))
        else:
            A(f"s_mov_b32 s{S_KX}, 0\ns_mov_b32 s{S_KW}, 0")
        A(f"s_lshl_b32 s{S_T0}, s{S_R}, 19\ns_lshl_b32 s{S_T1}, s{S_C}, 7")
        A(f"s_mov_b32 s{SRD_X+2}, 0x80000\ns_mov_b32 s{SRD_X+3}, 0x20000")
        A(f"s_sub_u32 s{SRD_W+2}, 0x600000, s{S_T1}\ns_mov_b32 s{SRD_W+3}, 0x20000")
        A("s_waitcnt lgkmcnt(0)")
        A(f"s_add_u32 s{SRD_W}, s{S_PTR+2}, s{S_T1}\ns_addc_u32 s{SRD_W+1}, s{S_PTR+3}, 0")
        A(f"s_add_u32 s{SRD_X}, s{S_PTR}, s{S_T0}\ns_addc_u32 s{SRD_X+1}, s{S_PTR+1}, 0")
        self.stamp("kernarg")
        for g in [("w", 0), ("x", 0), ("w", 1)]:
            for ins in self.dma_group(*g): em(ins)
        if o.get("codepf", 1):
            A(f"s_mov_b32 s{SRD_T+2}, L_END-L_PC\ns_mov_b32 s{SRD_T+3}, 0x20000")
            A(f"v_lshlrev_b32 {t0}, 7, v0")
            n = o.get("codepf_n", 2)
            for i in range(n):
                em(("vm", "pf", f"buffer_load_dword v{V_T+4+i}, {t0}, {srd(SRD_T)}, 0 offen"))
                if i + 1 < n: A(f"v_add_u32 {t0}, 0x8000, {t0}")
        for base, p, n in ((SRD_WS, S_P2 + 4, WS_SIZE), (SRD_OUT, S_P2, 0x800000), (SRD_DBG, S_P2 + 2, 256), (SRD_WO, S_PTR + 6, 0x200000)):
            A(f"s_mov_b32 s{base}, s{p}\ns_mov_b32 s{base+1}, s{p+1}\ns_mov_b32 s{base+2}, {n}\ns_mov_b32 s{base+3}, 0x20000")
        A(f"s_lshl_b32 s{S_HEAD}, s{S_C}, 1\ns_add_u32 s{S_HEAD}, s{S_HEAD}, s{S_HH}")
        lab = self.label("non")
        A(f"s_or_b32 s3, s2, s{S_W}\ns_cmp_lg_u32 s3, 0\ns_cbranch_scc1 {lab}")
        A(f"s_memrealtime s[{S_T2}:{S_T3}]\ns_waitcnt lgkmcnt(0)\ns_lshl_b64 s[{S_T2}:{S_T3}], s[{S_T2}:{S_T3}], 2\ns_or_b32 s{S_T2}, s{S_T2}, 1")
        A(f"v_mov_b32 v{V_CNT}, s{S_T2}\nv_mov_b32 v{V_CNT+1}, s{S_T3}\ns_mov_b64 exec, 1")
        A(f"buffer_store_dwordx2 {vr(V_CNT,2)}, off, {srd(SRD_DBG)}, 0 sc1")
        A(f"s_mov_b64 exec, -1\n{lab}:")
        A(f"s_mov_b32 s{SRD_T}, s{S_PTR+4}\ns_mov_b32 s{SRD_T+1}, s{S_PTR+5}\ns_mov_b32 s{SRD_T+2}, 0x10000\ns_mov_b32 s{SRD_T+3}, 0x20000")
        A(f"s_lshl_b32 s{S_T0}, s{S_C}, 12\nv_lshlrev_b32 {t0}, 4, v0")
        A(f"s_lshl_b32 s3, s{S_W}, 10\ns_add_u32 m0, s3, {PHI}")
        em(("vm", "phi", f"buffer_load_dwordx4 {t0}, {srd(SRD_T)}, s{S_T0} offen lds"))
        if o.get("pft"):
            A(f"s_lshr_b32 s{S_PHASE}, s{S_J}, 3\ns_lshl_b32 s3, s{S_PHASE}, 2\ns_add_u32 s3, s3, s{S_W}\ns_lshl_b32 s3, s3, 15")
            A(f"s_add_u32 s{S_PHASE}, s{S_PHASE}, s{S_R}\ns_and_b32 s{S_PHASE}, s{S_PHASE}, 3")
            A(f"v_lshrrev_b32 {t0}, 2, {L}\nv_lshlrev_b32 {t0}, 11, {t0}\nv_and_b32 {t1}, 3, {L}\nv_lshl_add_u32 {t0}, {t1}, 7, {t0}\nv_add_u32 v{V_PX}, s3, {t0}")
            A(f"s_lshl_b32 s3, s{S_R}, 2\ns_add_u32 s3, s3, s{S_W}\ns_mul_i32 s3, s3, 12288")
            A(f"v_lshlrev_b32 {t1}, 6, {t1}\nv_bfe_u32 {t0}, {L}, 2, 1\nv_add_u32 {t0}, {t0}, {t1}\nv_mul_u32_u24 {t0}, 6144, {t0}")
            A(f"v_lshrrev_b32 {t1}, 3, {L}\nv_lshl_add_u32 {t0}, {t1}, 11, {t0}\nv_add_u32 {t0}, s3, {t0}")
            A(f"v_cmp_gt_u32 vcc, 24, {L}\nv_bfrev_b32 {t1}, 1\nv_cndmask_b32 v{V_PW}, {t1}, {t0}, vcc")
            for d, q in ((SRD_PX, SRD_X), (SRD_PW, SRD_W)):
                A(f"s_mov_b64 s[{d}:{d+1}], s[{q}:{q+1}]\ns_mov_b32 s{d+2}, s{q+2}\ns_mov_b32 s{d+3}, 0x20000")
        pre = o.get("pre", [("x", 1), ("w", 2), ("w", 3)])
        for g in pre:
            for ins in self.dma_group(*g): em(ins)
        for st, t0_, cond in o.get("pft", []):
            if st < 0:
                for x in self.pf_ops(t0_, cond): em(x)
        self.pend0 = []
        for g in [("x", 1), ("w", 2), ("w", 3), ("x", 2), ("w", 4)]:
            if g not in pre: self.pend0 += self.dma_group(*g)
        A(f"v_and_b32 {t0}, 15, {L}\nv_lshlrev_b32 {t0}, 7, {t0}\ns_lshl_b32 s3, s{S_RH}, 14\nv_add_u32 {t0}, s3, {t0}")
        A(f"v_lshrrev_b32 {t1}, 4, {L}\nv_bfe_u32 {t2}, {L}, 1, 3\nv_xor_b32 {t1}, {t1}, {t2}")
        A(f"v_lshl_add_u32 v{V_XA}, {t1}, 4, {t0}")
        A(f"v_xor_b32 v{V_XA+1}, 64, v{V_XA}")
        for t in range(2): A(f"v_add_u32 v{V_XA+2+t}, 32768, v{V_XA+t}")
        A(f"v_lshrrev_b32 {t0}, 4, {L}\nv_mul_u32_u24 {t0}, 3072, {t0}")
        A(f"v_bfe_u32 {t1}, {L}, 2, 2\nv_lshl_add_u32 {t0}, {t1}, 6, {t0}")
        A(f"v_bfe_u32 {t1}, {L}, 4, 1\nv_lshl_add_u32 {t0}, {t1}, 5, {t0}")
        A(f"v_and_b32 {t1}, 3, {L}\nv_lshl_add_u32 {t0}, {t1}, 3, {t0}")
        A(f"s_lshl_b32 s3, s{S_HH}, 9\ns_add_u32 s3, s3, {WB}\nv_add_u32 v{V_WA}, s3, {t0}")
        A(f"v_xor_b32 v{V_WA+1}, 32, v{V_WA}")
        for i in range(4): A(f"v_mov_b32 v{V_ONE+i}, 0x3f803f80")
        A(f"v_and_b32 {t0}, 31, {L}\nv_lshrrev_b32 {t1}, 5, {L}\nv_lshlrev_b32 {t1}, 2, {t1}\nv_sub_u32 {t0}, {t0}, {t1}")
        A(f"v_mov_b32 {t1}, 0x3f80\nv_mov_b32 {t2}, 0x3f800000")
        for j in range(2):
            for u in range(4):
                f0 = 16 * j + 8 * (u // 2) + 2 * (u % 2)
                d = V_ID + 4 * j + u
                A(f"v_cmp_eq_u32 vcc, {f0}, {t0}\nv_cndmask_b32 v{d}, 0, {t1}, vcc")
                A(f"v_cmp_eq_u32 vcc, {f0+1}, {t0}\nv_cndmask_b32 v{d}, v{d}, {t2}, vcc")
        A(f"s_mov_b32 s{S_L2E}, 0x3fb8aa3b\ns_mov_b32 s{S_L2E+1}, 0x3fb8aa3b")

    def f1base(self, s):
        self.A(f"s_lshl_b32 s{s}, s{S_B}, 5\ns_add_u32 s{s}, s{s}, s{S_HEAD}\ns_lshl_b32 s{s}, s{s}, 7\ns_add_u32 s{s}, s{s}, {WS_F1}")
    def f1w(self, s):
        self.f1base(s); self.A(f"s_lshl_b32 s3, s{S_RH}, 3\ns_add_u32 s3, s3, s{S_R}\ns_lshl_b32 s3, s3, 3\ns_add_u32 s{s}, s{s}, s3")
    def f2w(self, s):
        self.A(f"s_lshl_b32 s{s}, s{S_B}, 4\ns_lshl_b32 s3, s{S_R}, 1\ns_add_u32 s{s}, s{s}, s3\ns_add_u32 s{s}, s{s}, s{S_RH}")
        self.A(f"s_lshl_b32 s{s}, s{s}, 5\ns_add_u32 s{s}, s{s}, s{S_HEAD}\ns_lshl_b32 s{s}, s{s}, 3\ns_add_u32 s{s}, s{s}, {WS_F2}")

    def kx(self, i):
        return f"s_bfe_u32 s{S_KX}, s{S_KT + i//8}, {(4 << 16) | (4*(i%8))}\ns_lshl_b32 s{S_KX}, s{S_KX}, 7"
    def kw(self, h):
        if h % 2: return f"s_add_u32 s{S_KW}, s{S_KW}, {32*6144}"
        i = h // 2
        return f"s_bfe_u32 s{S_KW}, s{S_KT + i//8}, {(4 << 16) | (4*(i%8))}\ns_mul_i32 s{S_KW}, s{S_KW}, {64*6144}"
    def dma_group(self, kind, i):
        out = []
        if kind == "x":
            base = XS[i % 3]
            for j in range(8):
                if j % 4 == 0: out.append(f"s_add_u32 m0, s{S_MX}, {base + 4096*(j//4)}" if base + j else f"s_mov_b32 m0, s{S_MX}")
                out.append(("vm", ("x", i), f"buffer_load_dwordx4 v{V_XD+j}, {srd(SRD_X)}, s{S_KX} offen offset:{1024*(j%4)}{self.o.get('xpol','')} lds"))
            if not self.o.get("kperm"): out.append(f"s_add_u32 s{S_KX}, s{S_KX}, 128")
            elif i < 15: out += self.kx(i + 1).split("\n")
        else:
            base = 12288 * (i % 5)
            out.append(f"s_add_u32 m0, s{S_MW}, {base}" if base else f"s_mov_b32 m0, s{S_MW}")
            for p in range(3):
                out.append(("vm", ("w", i), f"buffer_load_dwordx4 v{V_WD+p}, {srd(SRD_W)}, s{S_KW} offen offset:{1024*p}{self.o.get('wpol','')} lds"))
            if not self.o.get("kperm"): out.append(f"s_add_u32 s{S_KW}, s{S_KW}, {32*6144}")
            elif i < 31: out += self.kw(i + 1).split("\n")
        return out

    def pf_ops(self, t, cond):
        o = self.o
        out = []
        if cond:
            out += [f"s_and_b32 s3, s{S_PHASE}, {cond[0]}\ns_cmp_eq_u32 s3, {cond[1]}\ns_cselect_b32 s{SRD_PX+2}, s{SRD_X+2}, 0\ns_cselect_b32 s{SRD_PW+2}, s{SRD_W+2}, 0"]
        out += [f"s_mov_b32 s{S_PFX}, {128*t}", f"s_mov_b32 s{S_PFW}, {64*6144*t}",
                ("vm", "pfw", f"buffer_load_dword v{V_PD+1}, v{V_PW}, {srd(SRD_PW)}, s{S_PFW} offen{o.get('pfpolw','')}"),
                ("vm", "pfx", f"buffer_load_dword v{V_PD}, v{V_PX}, {srd(SRD_PX)}, s{S_PFX} offen{o.get('pfpolx','')}")]
        return out
    def pf_at(self, i):
        out = []
        for st, t0_, cond in self.o.get("pft", []):
            if st == i: out += self.pf_ops(t0_, cond)
        return out
    def x_reads(self, gm):
        i, m = divmod(gm, 8)
        slot = i % 3
        off = (32768 if slot >= 1 else 0) + 2048 * m
        return [f"ds_read_b128 {ar(A_X + 8*(gm%4) + 4*s, 4)}, v{V_XA + s + (2 if slot == 2 else 0)} offset:{off}" for s in range(2)]
    def w_reads(self, i):
        out = []
        for n in range(6):
            p, nb = divmod(n, 2)
            for s in range(2):
                pos = (2 * i + s) % 5
                for rd in range(2):
                    out.append(f"ds_read_b64_tr_b16 {ar(A_W + 48*(i&1) + 4*(2*n+s) + 2*rd, 2)}, v{V_WA+nb} offset:{pos*12288 + 1024*p + 256*rd}")
        return out
    def order1(self, m):
        ns = list(range(6)) if m % 2 == 0 else list(range(5, -1, -1))
        return [(n, s) for k, n in enumerate(ns) for s in ((0, 1) if k % 2 == 0 else (1, 0))]
    def mfmas1(self, i, m):
        out = []; seen = set()
        for n, s in self.order1(m):
            p, nb = divmod(n, 2)
            w = ar(A_W + 48 * (i & 1) + 4 * (2 * n + s), 4)
            x = ar(A_X + 8 * ((8 * i + m) % 4) + 4 * s, 4)
            d = vr(ACC[p] + 8 * m + 4 * nb, 4)
            c = "0" if (i == 0 and n not in seen) else d
            seen.add(n)
            a, b = (w, x) if p < 2 else (x, w)
            out.append(f"{MF16} {d}, {a}, {b}, {c}")
        return out
    def pack_ops(self, m):
        out = []; done = []
        for n, s in self.order1(m):
            if n in done: continue
            done.append(n)
            p, nb = divmod(n, 2)
            src = ACC[p] + 8 * m + 4 * nb
            if p < 2: dst = ACC[p] + 8 * (m // 2) + 4 * nb + 2 * (m % 2)
            else: dst = ACC[2] + 4 * m + 2 * nb
            out.append((n, [f"v_cvt_pk_bf16_f32 v{dst}, v{src}, v{src+1}", f"v_cvt_pk_bf16_f32 v{dst+1}, v{src+2}, v{src+3}"]))
        res = []
        parts = []
        for n, _ in out:
            if n // 2 not in parts: parts.append(n // 2)
        d = dict(out)
        for p in parts:
            res += d[2 * p] + d[2 * p + 1]
            if p == 2:
                b = ACC[2] + 4 * m
                res += [f"v_permlane16_swap_b32 v{b}, v{b+2}", f"v_permlane16_swap_b32 v{b+1}, v{b+3}"]
            elif m % 2 == 1:
                b = ACC[p] + 8 * (m // 2)
                for nb in range(2):
                    res += [f"v_permlane16_swap_b32 v{b+4*nb}, v{b+4*nb+2}", f"v_permlane16_swap_b32 v{b+4*nb+1}, v{b+4*nb+3}"]
        cv = [x for x in res if "cvt" in x]; sw = [x for x in res if "swap" in x]
        return cv + sw

    def phase1(self):
        A = self.A; o = self.o; em = self.em
        em(("wait", [("w", 0), ("x", 0), ("w", 1)], "")); A("s_barrier")
        self.stamp("first data")
        self.padspin("first")
        for r in self.x_reads(0) + self.w_reads(0)[:16] + self.x_reads(1) + self.w_reads(0)[16:] + self.x_reads(2): A(r)
        pend = list(self.pend0)
        for i in range(16):
            fill = [[] for _ in range(96)]
            pre = {}
            for m in range(5):
                for k, r in enumerate(self.x_reads(8 * i + m + 3)):
                    fill[12 * m + (9 if m == 0 else 2) + 2 * k].append(r)
            pre[0] = "s_waitcnt lgkmcnt(12)"
            pre[8] = "s_waitcnt lgkmcnt(0)"
            pre[36] = "s_waitcnt lgkmcnt(4)"
            pre[48] = "s_waitcnt lgkmcnt(4)"
            pre[60] = "s_waitcnt lgkmcnt(0)"
            bar2 = o.get("bar2")
            if bar2:
                fill[8].append("s_barrier")
                if 2 * i + 5 < 32: pend += self.dma_group("w", 2 * i + 5)
                if 2 * i + 6 < 32: pend += self.dma_group("w", 2 * i + 6)
                pend += self.pf_at(i)
            slots = [g for g in range(o.get("dma0", 10 if bar2 else 1), o.get("dma1", 59)) if not fill[g] and g not in pre and g + 1 not in pre]
            if pend:
                step = len(slots) / len(pend)
                assert step >= 1
                for k, x in enumerate(pend): fill[slots[int(k * step)]].append(x)
                pend = []
            need = [("x", i + 1), ("w", 2 * i + 2), ("w", 2 * i + 3)] if i < 15 else ["cnt"]
            if i == 0: need += ["phi"]
            need += self.extra_need(i)
            for k, r in enumerate(self.extra_tail(i)): fill[61 + k].append(r)
            fill[60].append(("wait", need, "")); fill[60].append("s_barrier")
            if i < 15:
                rd = self.x_reads(8 * i + 8) + self.w_reads(i + 1)[:16] + self.x_reads(8 * i + 9) + self.w_reads(i + 1)[16:] + self.x_reads(8 * i + 10)
                for k, r in enumerate(rd): fill[61 + k].append(r)
                if bar2:
                    if i + 3 < 16:
                        for k, x in enumerate(self.dma_group("x", i + 3)): fill[62 + (5 * k) // 2].append(x)
                else:
                    if 2 * i + 5 < 32:
                        ops = self.dma_group("w", 2 * i + 5)
                        ops += self.pf_at(i) + self.extra_after_w(i)
                        for k, x in enumerate(ops): fill[62 + 3 * k].append(x)
                    if i + 3 < 16: pend += self.dma_group("x", i + 3)
                    if 2 * i + 6 < 32: pend += self.dma_group("w", 2 * i + 6)
            if i == 0:
                fill[93].append(("call", self.phi_reads))
            pend += self.extra_pend(i)
            if i == 11 and not getattr(self, "own_cnt", False):
                pend += [("vm", "cnt", f"buffer_load_dwordx2 {vr(V_CNT,2)}, off, {srd(SRD_DBG)}, 0 sc1")]
            if i == 15 and not o.get("nopack"):
                qc = []; qs = []; placed = {}
                cost = lambda x: 8 if isinstance(x, str) and "permlane" in x else 4
                import re as _re
                regs = lambda x: [int(t) for t in _re.findall(r"v(\d+)", x.split(None, 1)[1])]
                for g in range(12, 96):
                    if g % 12 == 1:
                        ops = self.pack_ops(g // 12 - 1)
                        qc += [x for x in ops if "cvt" in x]; qs += [x for x in ops if "cvt" not in x]
                    room = 8 - sum(cost(x) for x in fill[g]) - (8 if g + 1 in pre else 0)
                    pend_dst = {regs(x)[0] for x in qc}
                    qs.sort(key=lambda x: 0 if 64 <= regs(x)[0] < 72 else 1)
                    if room >= 8 and qs and (not qc or 64 <= regs(qs[0])[0] < 72) and not (set(regs(qs[0])) & pend_dst) and all(placed.get(r, -9) <= g - 2 for r in regs(qs[0])):
                        x = qs.pop(0); fill[g].append(x)
                        for r in regs(x): placed[r] = g
                        continue
                    while qc and room >= 4:
                        x = qc.pop(0); room -= 4; fill[g].append(x); placed[regs(x)[0]] = g
                self.pack_left = qc + qs
            g = 0
            for m in range(8):
                for mf in self.mfmas1(i, m):
                    if g in pre: A(pre[g])
                    A(mf)
                    for x in fill[g]: em(x)
                    g += 1
            if i in (0, 7, 14) or "stamps" in o: self.stamp(f"step{i}")
        left = list(getattr(self, "pack_left", []))
        for m in (range(7, 8) if not o.get("nopack") else range(8)): left += self.pack_ops(m)
        self.finish_pack([x for x in left if "cvt" in x] + [x for x in left if "cvt" not in x])
        self.stamp("p1end")
        self.padspin("p1")

    def get_nonce(self):
        A = self.A
        lab, done = self.label("nl"), self.label("nd")
        A(f"s_mov_b32 s{S_SPIN}, 0\n{lab}:")
        A(f"v_readfirstlane_b32 s{S_NON}, v{V_CNT}\nv_readfirstlane_b32 s{S_NON+1}, v{V_CNT+1}")
        A(f"s_add_u32 s{S_SPIN}, s{S_SPIN}, 1\ns_nop 2\ns_cmp_lg_u32 s{S_NON}, 0\ns_cbranch_scc1 {done}")
        A(f"s_cmp_ge_u32 s{S_SPIN}, {SPIN_MAX}\ns_cbranch_scc1 {done}")
        A(f"buffer_load_dwordx2 {vr(V_CNT,2)}, off, {srd(SRD_DBG)}, 0 sc1\ns_waitcnt vmcnt(0)\ns_branch {lab}")
        A(f"{done}:")
    def phi_reads(self):
        A = self.A; L = f"v{V_LANE}"; t0, t1 = f"v{V_T+2}", f"v{V_T+3}"
        A(f"v_lshrrev_b32 {t0}, 5, {L}\nv_lshlrev_b32 {t0}, 9, {t0}")
        A(f"v_bfe_u32 {t1}, {L}, 2, 2\nv_lshl_add_u32 {t0}, {t1}, 6, {t0}")
        A(f"v_bfe_u32 {t1}, {L}, 4, 1\nv_lshl_add_u32 {t0}, {t1}, 5, {t0}")
        A(f"v_and_b32 {t1}, 3, {L}\nv_lshl_add_u32 {t0}, {t1}, 3, {t0}")
        A(f"s_lshl_b32 s3, s{S_HH}, 11\ns_add_u32 s3, s3, {PHI}\nv_add_u32 {t0}, s3, {t0}")
        for j in range(2):
            for rd in range(2):
                A(f"ds_read_b64_tr_b16 {vr(V_PHI + 4*j + 2*rd, 2)}, {t0} offset:{1024*j + 256*rd}")

    def unit_S0(self, frag, P):
        return [f"{MF32} {vr(P,16)}, {vr(V_PHI,4)}, {vr(frag,4)}, 0", f"{MF32} {vr(P,16)}, {vr(V_PHI+4,4)}, {vr(frag+4,4)}, {vr(P,16)}"]
    def unit_S1(self, P):
        a, b = V_ST, V_ST + 1
        out = [f"v_max3_f32 v{a}, v{P}, v{P+1}, v{P+2}", f"v_max3_f32 v{b}, -v{P}, -v{P+1}, -v{P+2}"]
        for k in range(3, 15, 2):
            out += [f"v_max3_f32 v{a}, v{a}, v{P+k}, v{P+k+1}", f"v_max3_f32 v{b}, v{b}, -v{P+k}, -v{P+k+1}"]
        out += [f"v_max_f32 v{a}, v{a}, v{P+15}", f"v_max_f32 v{b}, v{b}, -v{P+15}"]
        out += [f"v_permlane32_swap_b32 v{a}, v{b}", f"v_max_f32 v{a}, v{a}, v{b}", f"v_mul_f32 v{a}, 0xbfb8aa3b, v{a}", f"v_mov_b32 v{b}, v{a}",
                f"v_permlane32_swap_b32 v{a}, v{b}"]
        return out
    def unit_S2(self, P, E):
        st = vr(V_ST, 2); c = f"s[{S_L2E}:{S_L2E+1}]"
        out = [f"v_pk_fma_f32 {vr(E+2*k,2)}, {vr(P+2*k,2)}, {c}, {st} op_sel_hi:[1,1,0]" for k in range(8)]
        out += [f"v_pk_fma_f32 {vr(P+2*k,2)}, {vr(P+2*k,2)}, {c}, {st} op_sel:[0,0,1] op_sel_hi:[1,1,1] neg_lo:[1,0,0] neg_hi:[1,0,0]" for k in range(8)]
        return out
    def unit_S3(self, P, E):
        return [f"v_exp_f32 v{E+k}, v{E+k}" for k in range(16)] + [f"v_exp_f32 v{P+k}, v{P+k}" for k in range(16)]
    def unit_S4(self, P, E):
        ta, tb, tc, td = V_ST + 2, V_ST + 4, V_ST + 6, V_ST + 8
        out = [f"v_pk_add_f32 {vr(ta,2)}, {vr(E,2)}, {vr(E+2,2)}", f"v_pk_add_f32 {vr(tc,2)}, {vr(E+4,2)}, {vr(E+6,2)}"]
        for k in (8, 12): out += [f"v_pk_add_f32 {vr(ta,2)}, {vr(ta,2)}, {vr(E+k,2)}", f"v_pk_add_f32 {vr(tc,2)}, {vr(tc,2)}, {vr(E+k+2,2)}"]
        out += [f"v_pk_add_f32 {vr(ta,2)}, {vr(ta,2)}, {vr(tc,2)}"]
        out += [f"v_pk_add_f32 {vr(tb,2)}, {vr(P,2)}, {vr(P+2,2)}", f"v_pk_add_f32 {vr(td,2)}, {vr(P+4,2)}, {vr(P+6,2)}"]
        for k in (8, 12): out += [f"v_pk_add_f32 {vr(tb,2)}, {vr(tb,2)}, {vr(P+k,2)}", f"v_pk_add_f32 {vr(td,2)}, {vr(td,2)}, {vr(P+k+2,2)}"]
        out += [f"v_pk_add_f32 {vr(tb,2)}, {vr(tb,2)}, {vr(td,2)}"]
        a, b = V_ST, V_ST + 1
        out += [f"v_add_f32 v{a}, v{ta}, v{ta+1}", f"v_add_f32 v{b}, v{tb}, v{tb+1}"]
        out += [f"v_permlane32_swap_b32 v{a}, v{b}", f"v_add_f32 v{a}, v{a}, v{b}", f"v_rcp_f32 v{a}, v{a}", f"v_mov_b32 v{b}, v{a}",
                f"v_permlane32_swap_b32 v{a}, v{b}"]
        return out
    def unit_S5a(self, P, E):
        st = vr(V_ST, 2)
        out = [f"v_pk_mul_f32 {vr(E+2*k,2)}, {vr(E+2*k,2)}, {st} op_sel_hi:[1,0]" for k in range(8)]
        out += [f"v_pk_mul_f32 {vr(P+2*k,2)}, {vr(P+2*k,2)}, {st} op_sel:[0,1] op_sel_hi:[1,1]" for k in range(8)]
        return out
    def unit_S5b(self, P, E, F0, F1):
        return [f"v_cvt_pk_bf16_f32 v{F0+k}, v{E+2*k}, v{E+2*k+1}" for k in range(8)] + [f"v_cvt_pk_bf16_f32 v{F1+k}, v{P+2*k}, v{P+2*k+1}" for k in range(8)]

    def interleave(self, main, extra, start=0, every=1):
        k = 0
        for idx, x in enumerate(main):
            self.em(x)
            if idx >= start and (idx - start) % every == 0 and k < len(extra):
                e = extra[k]; k += 1
                for y in (e if isinstance(e, list) else [e]): self.em(y)
        for e in extra[k:]:
            for y in (e if isinstance(e, list) else [e]): self.em(y)

    def wo_setup(self):
        A = self.A; L = f"v{V_LANE}"; t0, t1 = f"v{V_T}", f"v{V_T+1}"
        V = V_XD
        A(f"s_lshr_b32 s{S_T0}, s{S_J}, 2\ns_lshl_b32 s{S_T0}, s{S_T0}, 8\ns_lshl_b32 s3, s{S_W}, 6\ns_add_u32 s{S_T0}, s{S_T0}, s3")
        A(f"v_lshrrev_b32 {t0}, 2, {L}\nv_lshlrev_b32 {t0}, 11, {t0}\nv_add_u32 {t0}, s{S_T0}, {t0}")
        A(f"v_bfe_u32 {t1}, {L}, 4, 1\nv_lshlrev_b32 {t1}, 1, {t1}\nv_xor_b32 {t1}, {t1}, {L}\nv_and_b32 {t1}, 3, {t1}")
        A(f"v_lshl_add_u32 v{V}, {t1}, 4, {t0}")
        for i in range(1, 4): A(f"v_add_u32 v{V+i}, {32768-1024}, v{V+i-1}")
        A(f"s_add_u32 s{S_MX}, s{S_W}, 1\ns_lshl_b32 s{S_MX}, s{S_MX}, 15\ns_mov_b32 s{S_KX}, 0")
        A(f"v_lshrrev_b32 {t0}, 5, {L}\nv_lshlrev_b32 {t0}, 10, {t0}\nv_add_u32 {t0}, s{S_MX}, {t0}")
        A(f"v_bfe_u32 {t1}, {L}, 4, 1\nv_mul_u32_u24 {t1}, {256+32}, {t1}\nv_add_u32 {t0}, {t0}, {t1}")
        A(f"v_bfe_u32 {t1}, {L}, 2, 2\nv_lshl_add_u32 {t0}, {t1}, 6, {t0}")
        A(f"v_and_b32 {t1}, 3, {L}\nv_lshl_add_u32 v{V+4}, {t1}, 3, {t0}\nv_xor_b32 v{V+5}, 32, v{V+4}")
    def wo_dma(self, rnd):
        out = []
        if self.o.get("nowodma"):
            self.vm_done.append(("wo", rnd))
            return ["s_nop 0"] * 48
        for grp in range(8):
            ops = [f"s_add_u32 m0, s{S_MX}, {4096*grp}" if grp else f"s_mov_b32 m0, s{S_MX}"]
            out.append(ops[0])
            for i in range(4):
                out.append(("vm", ("wo", rnd), f"buffer_load_dwordx4 v{V_XD+i}, {srd(SRD_WO)}, s{S_KX} offen offset:{1024*i} lds"))
            out.append(f"s_add_u32 s{S_KX}, s{S_KX}, {64*2048}")
        return out
    def wo_reads(self, rnd):
        out = []
        for kb in range(16):
            for nb in range(2):
                for rd in range(2):
                    out.append(f"ds_read_b64_tr_b16 {ar(128*rnd + 8*kb + 4*nb + 2*rd, 2)}, v{V_XD+4+nb} offset:{2048*kb + 512*rd}")
        return out

    def e1(self):
        A = self.A; o = self.o; em = self.em
        L = f"v{V_LANE}"; t0, t1 = f"v{V_T}", f"v{V_T+1}"
        V_TW, V_TR = V_WD, V_WD + 1
        KVO, ZO = 160, 176
        WSET = [(32, 48), (96, 112)]
        A(f"s_mul_i32 s3, s{S_RH}, 0x80008000")
        for k in range(8): A(f"v_xor_b32 v{V_PHI+k}, s3, v{V_PHI+k}")
        for x in self.unit_S0(ACC[1], WSET[0][0]): A(x)
        self.wo_setup()
        A(f"s_lshl_b32 s{S_T1}, s{S_W}, 13")
        A(f"v_and_b32 {t0}, 31, {L}\nv_mul_u32_u24 {t0}, {TSTR}, {t0}\nv_lshrrev_b32 {t1}, 5, {L}\nv_lshl_add_u32 {t0}, {t1}, 3, {t0}\nv_add_u32 v{V_TW}, s{S_T1}, {t0}")
        A(f"v_lshlrev_b32 {t0}, 3, {t1}\nv_bfe_u32 {t1}, {L}, 2, 2\nv_add_u32 {t0}, {t0}, {t1}\nv_mul_u32_u24 {t0}, {TSTR}, {t0}")
        A(f"v_bfe_u32 {t1}, {L}, 4, 1\nv_lshl_add_u32 {t0}, {t1}, 5, {t0}\nv_and_b32 {t1}, 3, {L}\nv_lshl_add_u32 {t0}, {t1}, 3, {t0}\nv_add_u32 v{V_TR}, s{S_T1}, {t0}")
        dma = self.wo_dma(0)
        def kv_mfmas(u):
            out = []
            for sg in (1, 0):
                kv = ar(A_KVX, 16) if sg else vr(KVO, 16)
                z = ar(A_ZX, 16) if sg else vr(ZO, 16)
                for j in range(2):
                    T = ar(A_T + 8 * sg + 4 * j, 4)
                    first = (u == 0 and j == 0)
                    out.append(f"{MF32} {kv}, {T}, {vr(ACC[2] + 8*u + 4*j, 4)}, {'0' if first else kv}")
                    out.append(f"{MF32} {z}, {T}, {vr(V_ONE,4)}, {'0' if first else z}")
            return out
        for u in range(4):
            P, E = WSET[u % 2]
            for x in self.unit_S1(P) + self.unit_S2(P, E): A(x)
            ex = []
            prev = kv_mfmas(u - 1) if u else []
            d = dma[12 * u:12 * u + 12]
            s3 = self.unit_S3(P, E)
            if prev: A("s_waitcnt lgkmcnt(0)")
            for k, x in enumerate(s3):
                A(x)
                if k % 4 == 0 and prev: A(prev[k // 4])
                if k % 4 == 2 and d: em(d.pop(0))
                if k % 8 == 3 and d: em(d.pop(0))
            assert not d
            for x in self.unit_S4(P, E) + self.unit_S5a(P, E): A(x)
            s5 = self.unit_S5b(P, E, E, E + 8)
            nxt = self.unit_S0(ACC[1] + 8 * (u + 1), WSET[(u + 1) % 2][0]) if u < 3 else []
            self.interleave(s5, nxt, start=0, every=6)
            for sg in range(2):
                for q in range(4):
                    A(f"ds_write_b64 v{V_TW}, {vr(E + 8*sg + 2*q, 2)} offset:{64*sg + 16*q}")
            for sg in (1, 0):
                for j in range(2):
                    for rd in range(2):
                        A(f"ds_read_b64_tr_b16 {ar(A_T + 8*sg + 4*j + 2*rd, 2)}, v{V_TR} offset:{64*sg + (16*j + 4*rd)*TSTR}")
        self.stamp("e1 units")
        A("s_waitcnt lgkmcnt(0)")
        last = kv_mfmas(3)
        V_XW, V_XR, V_ZW, V_ZR = V_XA, V_XA + 1, V_XA + 2, V_XA + 3
        for x in last[:4]: A(x)
        A(f"v_lshlrev_b32 {t0}, 4, {L}\nv_add_u32 v{V_XW}, s{S_T1}, {t0}\nv_xor_b32 v{V_XR}, 16384, v{V_XW}")
        A(f"v_lshrrev_b32 {t0}, 5, {L}\nv_lshlrev_b32 {t0}, 4, {t0}\nv_add_u32 v{V_ZW}, s{S_T1}, {t0}\nv_xor_b32 v{V_ZR}, 16384, v{V_ZW}")
        for x in last[4:]: A(x)
        for q in range(4): A(f"ds_write_b128 v{V_XW}, {ar(A_KVX + 4*q, 4)} offset:{X1_OFF + 1024*q}")
        A(f"s_mov_b32 exec_lo, 1\ns_mov_b32 exec_hi, 1")
        for q in range(4): A(f"ds_write_b128 v{V_ZW}, {ar(A_ZX + 4*q, 4)} offset:{X1Z_OFF + 32*q}")
        A("s_mov_b64 exec, -1")
        A("s_waitcnt lgkmcnt(0)\ns_barrier")
        R = 96
        for q in range(4): A(f"ds_read_b128 {vr(R + 4*q, 4)}, v{V_XR} offset:{X1_OFF + 1024*q}")
        for q in range(4): A(f"ds_read_b128 {vr(R + 16 + 4*q, 4)}, v{V_ZR} offset:{X1Z_OFF + 32*q}")
        A(f"s_lshl_b32 s{S_T0}, s{S_B}, 5\ns_add_u32 s{S_T0}, s{S_T0}, s{S_HEAD}\ns_lshl_b32 s{S_T0}, s{S_T0}, 3\ns_add_u32 s{S_T0}, s{S_T0}, s{S_R}")
        A(f"s_lshl_b32 s{S_T0}, s{S_T0}, 1\ns_add_u32 s{S_T0}, s{S_T0}, s{S_RH}")
        A(f"s_lshl_b32 s{S_T2}, s{S_T0}, 6\ns_add_u32 s{S_T2}, s{S_T2}, {WS_Z}\ns_lshl_b32 s{S_T0}, s{S_T0}, 11")
        A(f"v_lshlrev_b32 {t1}, 4, {L}")
        A("s_waitcnt lgkmcnt(4)")
        for k in range(8): A(f"v_pk_add_f32 {vr(KVO+2*k,2)}, {vr(KVO+2*k,2)}, {vr(R+2*k,2)}")
        for k in range(8): A(f"v_cvt_pk_bf16_f32 v{KVO+k}, v{KVO+2*k}, v{KVO+2*k+1}")
        for j in range(2): em(("vm", "pub1", f"buffer_store_dwordx4 {vr(KVO+4*j,4)}, {t1}, {srd(SRD_WS)}, s{S_T0} offen offset:{1024*j} sc1"))
        A("s_waitcnt lgkmcnt(0)")
        for k in range(8): A(f"v_pk_add_f32 {vr(ZO+2*k,2)}, {vr(ZO+2*k,2)}, {vr(R+16+2*k,2)}")
        for k in range(8): A(f"v_cvt_pk_bf16_f32 v{ZO+k}, v{ZO+2*k}, v{ZO+2*k+1}")
        A(f"s_mov_b32 exec_lo, 1\ns_mov_b32 exec_hi, 1")
        for j in range(2): em(("vm", "pub1", f"buffer_store_dwordx4 {vr(ZO+4*j,4)}, {t0}, {srd(SRD_WS)}, s{S_T2} offen offset:{32*j} sc1"))
        A("s_mov_b64 exec, -1")
        self.stamp("pub1")

    def flag_store(self, fn, tags):
        A = self.A
        fn(S_T0)
        self.em(("wait", tags, ""))
        A(f"s_mov_b64 exec, 1")
        self.em(("vm", "flag", f"buffer_store_dwordx2 {vr(V_CNT,2)}, off, {srd(SRD_WS)}, s{S_T0} sc1"))
        A("s_mov_b64 exec, -1")

    def poll(self, soff, nlanes):
        A = self.A
        lab, done = self.label("poll"), self.label("pdone")
        A(f"v_lshlrev_b32 v{V_T+6}, 3, v{V_LANE}\ns_mov_b32 s{S_SPIN}, 0")
        A("s_mov_b32 exec_hi, 0")
        if nlanes < 32: A(f"s_mov_b32 exec_lo, {(1 << nlanes) - 1}")
        A(f"{lab}:")
        A(f"buffer_load_dwordx2 {vr(V_T+2,2)}, v{V_T+6}, {srd(SRD_WS)}, {soff} offen sc1")
        A(f"s_add_u32 s{S_SPIN}, s{S_SPIN}, 1")
        A("s_waitcnt vmcnt(0)")
        A(f"v_cmp_ne_u64 vcc, s[{S_NON}:{S_NON+1}], {vr(V_T+2,2)}")
        A(f"s_cmp_ge_u32 s{S_SPIN}, {SPIN_MAX}\ns_cbranch_scc1 {done}")
        A(f"s_nop 4\ns_cbranch_vccnz {lab}")
        A(f"{done}:\ns_mov_b64 exec, -1")
        self.vm_done += self.vm; self.vm = []

    FQ = [64, 80, 128, 144]
    def e2(self):
        A = self.A; o = self.o; em = self.em
        WSET = [(32, 48), (96, 112)]
        self.em(("wait", [("wo", 0)], ""))
        r1 = self.wo_reads(0)
        for x in self.unit_S0(ACC[0], WSET[0][0]): A(x)
        for x in r1: A(x)
        self.stamp("r1")
        dma = self.wo_dma(1)
        for u in range(4):
            P, E = WSET[u % 2]
            for x in self.unit_S1(P) + self.unit_S2(P, E): A(x)
            d = dma[16 * (u - 1):16 * u] if u else []
            if u == 1: A("s_waitcnt lgkmcnt(0)")
            for k, x in enumerate(self.unit_S3(P, E)):
                A(x)
                if k % 2 == 1 and d: em(d.pop(0))
            assert not d
            for x in self.unit_S4(P, E) + self.unit_S5a(P, E): A(x)
            s5 = self.unit_S5b(P, E, self.FQ[u], self.FQ[u] + 8)
            nxt = self.unit_S0(ACC[0] + 8 * (u + 1), WSET[(u + 1) % 2][0]) if u < 3 else []
            self.interleave(s5, nxt, start=0, every=6)
            if u == 0:
                self.get_nonce()
                self.flag_store(self.f1w, ["pub1"])
        self.stamp("e2")

    def e3(self):
        A = self.A; o = self.o; em = self.em
        L = f"v{V_LANE}"; t0, t1 = f"v{V_T}", f"v{V_T+1}"
        V_XW, V_XR = V_XA, V_XA + 1
        A(f"s_lshl_b32 s{S_T1}, s{S_B}, 5\ns_add_u32 s{S_T1}, s{S_T1}, s{S_HEAD}")
        A(f"s_lshl_b32 s{S_T2}, s{S_T1}, 10\ns_add_u32 s{S_T2}, s{S_T2}, {WS_Z}")
        A(f"s_lshl_b32 s{S_T1}, s{S_T1}, 15\ns_lshl_b32 s3, s{S_RH}, 11\ns_add_u32 s{S_T1}, s{S_T1}, s3")
        A(f"v_lshlrev_b32 {t0}, 4, {L}")
        tz = f"v{V_T+4}"; tz2 = f"v{V_T+5}"
        A(f"v_bfe_u32 {t1}, {L}, 3, 1\nv_lshlrev_b32 {t1}, 2, {t1}\nv_and_b32 {tz}, 3, {L}\nv_add_u32 {tz}, {tz}, {t1}\nv_lshlrev_b32 {tz}, 7, {tz}")
        A(f"v_lshrrev_b32 {t1}, 5, {L}\nv_lshl_add_u32 {tz}, {t1}, 4, {tz}\ns_lshl_b32 s3, s{S_RH}, 6\nv_add_u32 {tz}, s3, {tz}\nv_xor_b32 {tz2}, 64, {tz}")
        self.f1base(S_T0)
        self.poll(f"s{S_T0}", 16)
        self.stamp("sync1")
        PL, ZF, S, KVF = 0, 96, 112, 160
        for r in range(8):
            for j in range(2):
                em(("vm", ("pl", r), f"buffer_load_dwordx4 {vr(PL + 8*r + 4*j, 4)}, {t0}, {srd(SRD_WS)}, s{S_T1} offen offset:{1024*j} sc1"))
            if r < 7: A(f"s_add_u32 s{S_T1}, s{S_T1}, 4096")
        for sl in range(2):
            for j in range(2):
                em(("vm", "zl", f"buffer_load_dwordx4 {vr(ZF + 8*sl + 4*j, 4)}, {tz2 if sl else tz}, {srd(SRD_WS)}, s{S_T2} offen offset:{32*j} sc1"))
        for r in range(8):
            em(("wait", [("pl", r)], ""))
            for j in range(2):
                A(f"{MF32} {vr(S,16)}, {vr(V_ID + 4*j, 4)}, {vr(PL + 8*r + 4*j, 4)}, {'0' if r + j == 0 else vr(S,16)}")
        A(f"s_lshl_b32 s{S_T1}, s{S_B}, 4\ns_lshl_b32 s3, s{S_R}, 1\ns_add_u32 s{S_T1}, s{S_T1}, s3\ns_add_u32 s{S_T1}, s{S_T1}, s{S_RH}")
        A(f"s_lshl_b32 s{S_T1}, s{S_T1}, 5\ns_add_u32 s{S_T1}, s{S_T1}, s{S_HEAD}\ns_lshl_b32 s{S_T1}, s{S_T1}, 13\ns_add_u32 s{S_T1}, s{S_T1}, {WS_O}")
        A(f"v_bfe_u32 {t0}, {L}, 4, 1\nv_lshlrev_b32 {t0}, 10, {t0}\nv_lshrrev_b32 {t1}, 5, {L}\nv_lshl_add_u32 {t0}, {t1}, 8, {t0}\nv_and_b32 {t1}, 15, {L}\nv_lshl_add_u32 {t0}, {t1}, 4, {t0}")
        for k in range(8): A(f"v_cvt_pk_bf16_f32 v{KVF+k}, v{S+2*k}, v{S+2*k+1}")
        for j in range(2): A(f"ds_write_b128 v{V_XW}, {vr(KVF + 4*j, 4)} offset:{X2_OFF + 1024*j}")
        A("s_waitcnt lgkmcnt(0)\ns_barrier")
        for j in range(2): A(f"ds_read_b128 {vr(KVF + 8 + 4*j, 4)}, v{V_XR} offset:{X2_OFF + 1024*j}")
        em(("wait", ["zl"], ""))
        self.stamp("kvsum")
        SETS = [(0, 16), (32, 48)]
        def mm(u):
            N, D = SETS[u % 2]; F = self.FQ[u]
            den = [f"{MF32} {vr(D,16)}, {vr(ZF + 4*k, 4)}, {vr(F + 4*k, 4)}, {'0' if k == 0 else vr(D,16)}" for k in range(4)]
            num = [f"{MF32} {vr(N,16)}, {vr(KVF + 4*k, 4)}, {vr(F + 4*k, 4)}, {'0' if k == 0 else vr(N,16)}" for k in range(4)]
            return den, num
        def fin(u):
            N, D = SETS[u % 2]
            a = [f"v_add_f32 v{D}, v{D}, v{D+1}", f"v_add_f32 v{D+2}, v{D+2}, v{D+3}", f"v_add_f32 v{D+4}, v{D+4}, v{D+5}", f"v_add_f32 v{D+6}, v{D+6}, v{D+7}",
                 f"v_add_f32 v{D}, v{D}, v{D+2}", f"v_add_f32 v{D+4}, v{D+4}, v{D+6}", f"v_add_f32 v{D}, v{D}, v{D+4}", f"v_add_f32 v{D}, 0x358637bd, v{D}",
                 f"v_rcp_f32 v{D}, v{D}"]
            b = [f"v_mul_f32 v{N+k}, v{N+k}, v{D}" for k in range(16)]
            b += [f"v_cvt_pk_bf16_f32 v{N+k}, v{N+2*k}, v{N+2*k+1}" for k in range(8)]
            b += [("vm", "pub2", f"buffer_store_dwordx4 {vr(N+4*j,4)}, {t0}, {srd(SRD_WS)}, s{S_T1} offen offset:{2048*(u%2) + 512*j} sc1") for j in range(2)]
            if u == 1: b.append(f"s_add_u32 s{S_T1}, s{S_T1}, 4096")
            return a, b
        d0, n0 = mm(0)
        for x in d0: A(x)
        A("s_waitcnt lgkmcnt(0)")
        for x in n0: A(x)
        for u in range(4):
            a, b = fin(u)
            if u < 3:
                d, n = mm(u + 1)
                self.interleave(a + b[:24], d + n, start=0, every=4)
                for x in b[24:]: em(x)
            else:
                for x in a + b: em(x)
        self.stamp("e3")
        r2 = self.wo_reads(1)
        h = o.get("r2split", 64)
        for x in r2[:h]: A(x)
        self.flag_store(self.f2w, ["pub2"])
        for x in r2[h:]: A(x)
        self.stamp("pub2")
        self.padspin("pub2")

    def gemm2(self):
        A = self.A; o = self.o; em = self.em
        L = f"v{V_LANE}"; t0, t1 = f"v{V_T}", f"v{V_T+1}"
        V_OD, V_OA, V_OUT, OF = V_WD, V_XA, V_WD + 1, 64
        NS = 10
        A(f"s_and_b32 s{S_T2}, s{S_XCD}, 3\ns_lshl_b32 s{S_T2}, s{S_T2}, 2\ns_and_b32 s3, s{S_J}, 3\ns_add_u32 s{S_T2}, s{S_T2}, s3")
        A(f"s_lshl_b32 s{S_T1}, s{S_B}, 4\ns_add_u32 s{S_T1}, s{S_T1}, s{S_T2}")
        A(f"s_lshl_b32 s{S_T0}, s{S_T1}, 8\ns_add_u32 s{S_T0}, s{S_T0}, {WS_F2}")
        A(f"s_lshl_b32 s{S_KX}, s{S_T1}, 18\ns_add_u32 s{S_KX}, s{S_KX}, {WS_O}")
        A(f"s_lshl_b32 s{S_MX}, s{S_W}, 12")
        A(f"v_lshlrev_b32 v{V_OA}, 4, {L}\nv_add_u32 v{V_OD}, s{S_MX}, v{V_OA}")
        A(f"v_add_u32 v{V_OA+1}, 0x10000, v{V_OA}\nv_add_u32 v{V_OA+2}, 0x20000, v{V_OA}")
        A(f"s_lshl_b32 s{S_KW}, s{S_T2}, 19\ns_lshl_b32 s3, s{S_B}, 11\ns_add_u32 s{S_KW}, s{S_KW}, s3")
        A(f"s_lshr_b32 s3, s{S_J}, 2\ns_lshl_b32 s3, s3, 8\ns_add_u32 s{S_KW}, s{S_KW}, s3\ns_lshl_b32 s3, s{S_W}, 6\ns_add_u32 s{S_KW}, s{S_KW}, s3")
        A(f"v_and_b32 {t0}, 15, {L}\nv_lshlrev_b32 {t0}, 12, {t0}\nv_bfe_u32 {t1}, {L}, 4, 1\nv_lshl_add_u32 {t0}, {t1}, 5, {t0}\nv_lshrrev_b32 {t1}, 5, {L}\nv_lshl_add_u32 v{V_OUT}, {t1}, 4, {t0}")
        A("s_waitcnt lgkmcnt(0)\ns_barrier")
        self.poll(f"s{S_T0}", 32)
        self.stamp("sync2")
        def dma(i):
            base = 16384 * (i % NS)
            out = [f"s_add_u32 m0, s{S_MX}, {base}" if base else f"s_mov_b32 m0, s{S_MX}"]
            out += [("vm", ("o", i), f"buffer_load_dwordx4 v{V_OD}, {srd(SRD_WS)}, s{S_KX} offen offset:{1024*k} sc1 lds") for k in range(4)]
            out.append(f"s_add_u32 s{S_KX}, s{S_KX}, 16384")
            return out
        def reads(gm):
            i, m = divmod(gm, 8)
            off = 16384 * (i % NS) + 1024 * m
            return [f"ds_read_b128 {vr(OF + 8*(gm%4) + 4*s, 4)}, v{V_OA + (off + 8192*s) // 65536} offset:{(off + 8192*s) % 65536}" for s in range(2)]
        def mf(i, m):
            out = []
            nbs = (0, 1) if m % 2 == 0 else (1, 0)
            for k, nb in enumerate(nbs):
                for q, s in enumerate((0, 1) if k == 0 else (1, 0)):
                    d = vr(8 * m + 4 * nb, 4)
                    out.append(f"{MF16} {d}, {ar(8*(2*i+s) + 4*nb, 4)}, {vr(OF + 8*((8*i+m)%4) + 4*s, 4)}, {'0' if i == 0 and q == 0 else d}")
            return out
        def fin(m):
            b = 8 * m
            return [f"v_cvt_pk_bf16_f32 v{b}, v{b}, v{b+1}", f"v_cvt_pk_bf16_f32 v{b+1}, v{b+2}, v{b+3}",
                    f"v_cvt_pk_bf16_f32 v{b+2}, v{b+4}, v{b+5}", f"v_cvt_pk_bf16_f32 v{b+3}, v{b+6}, v{b+7}",
                    f"v_permlane16_swap_b32 v{b}, v{b+2}", f"v_permlane16_swap_b32 v{b+1}, v{b+3}",
                    ("vm", "out", f"buffer_store_dwordx4 {vr(b,4)}, v{V_OUT}, {srd(SRD_OUT)}, s{S_KW} offen{o.get('outpol','')}"), f"s_add_u32 s{S_KW}, s{S_KW}, 0x10000"]
        npre = o.get("g2pre", 3)
        for i in range(npre):
            for x in dma(i): em(x)
        nxt = npre
        em(("wait", [("o", 0)], "")); A("s_barrier")
        self.stamp("o first")
        for gm in range(3):
            for r in reads(gm): A(r)
        rate = o.get("g2rate", 1.5)
        acc = 0.0
        for i in range(16):
            fill = [[] for _ in range(32)]
            pre = {0: "s_waitcnt lgkmcnt(4)", 4: "s_waitcnt lgkmcnt(4)", 8: "s_waitcnt lgkmcnt(4)", 12: "s_waitcnt lgkmcnt(4)", 16: "s_waitcnt lgkmcnt(4)", 20: "s_waitcnt lgkmcnt(0)"}
            for m in range(8):
                gm = 8 * i + m + 3
                if gm < 128:
                    for k, r in enumerate(reads(gm)): fill[4 * m + 1 + k].append(r)
            if i < 15:
                fill[20].insert(0, ("wait", [("o", i + 1)], "")); fill[20].insert(1, "s_barrier")
            acc += rate
            ops = []
            while acc >= 1 and nxt < 16 and (nxt - NS) < i:
                ops += dma(nxt); nxt += 1; acc -= 1
            slots = [g for g in range(0, 20) if len(fill[g]) == 0] + [g for g in range(0, 20) if len(fill[g]) == 1 and g + 1 not in pre]
            slots = sorted(slots[:max(len(ops), 0)])
            assert len(slots) >= len(ops)
            for g, x in zip(slots, ops): fill[g].append(x)
            if i == 15:
                for m in range(6):
                    ops = fin(m)
                    for k, x in enumerate(ops): fill[4 * (m + 2) + k // 2].append(x)
            g = 0
            for m in range(8):
                for x in mf(i, m):
                    if g in pre: A(pre[g])
                    A(x)
                    for y in fill[g]: em(y)
                    g += 1
        assert nxt == 16
        for m in (6, 7):
            for x in fin(m): em(x)
        self.stamp("g2end")
        self.padspin("end")

    def dump_acc(self):
        A = self.A
        A("s_nop 15")
        A(f"s_lshl_b32 s3, s2, 2\ns_add_u32 s3, s3, s{S_W}\ns_mul_i32 s3, s3, {192*256}\ns_add_u32 s3, s3, {WS_DUMP}")
        A(f"v_lshlrev_b32 v{V_T}, 2, v{V_LANE}")
        for r in range(192):
            A(f"buffer_store_dword v{r}, v{V_T}, {srd(SRD_WS)}, s3 offen offset:{(r%16)*256}")
            if r % 16 == 15: A("s_add_u32 s3, s3, 4096")

    def diag_out(self):
        if not self.o.get("diag"): return
        A = self.A
        A("s_waitcnt vmcnt(0)")
        self.stamp("end")
        A("s_memrealtime s[68:69]")
        A("s_waitcnt lgkmcnt(0)")
        A(f"s_lshl_b32 s3, s2, 2\ns_add_u32 s3, s3, s{S_W}\ns_lshl_b32 s3, s3, 7\ns_add_u32 s3, s3, {WS_DIAG}")
        vals = ["s100", "s68"] + [f"s{S_STAMP+2*k}" for k in range(self.nstamp)]
        A(f"v_mov_b32 v{V_T+1}, 0")
        for k, s in enumerate(vals):
            A(f"v_mov_b32 v{V_T}, {s}")
            A(f"buffer_store_dword v{V_T}, v{V_T+1}, {srd(SRD_WS)}, s3 offen offset:{4*k}")

    def body(self):
        self.e1(); self.e2(); self.e3(); self.gemm2()
    def cold_code(self): pass
    def extra_after_w(self, i): return []
    def finish_pack(self, ops):
        for x in ops: self.A(x)
    def extra_pend(self, i): return []
    def extra_need(self, i): return []
    def extra_tail(self, i): return []
    def build(self):
        A = self.A
        self.prologue()
        self.phase1()
        if not self.o.get("p1only"):
            self.body()
        if self.o.get("dump"): self.dump_acc()
        self.diag_out()
        A("L_END:\ns_endpgm")
        self.cold_code()
        body, info = A.finish(verbose=self.o.get("verbose"))
        hdr = open("concat_heads__linear_kernel_hedgehog__linear_kernel_hedgehog__prompt.s.ref").read().split("; Override")[0]
        txt = hdr + f"""; @launch grid=(256,1,1) block=(256,1,1) lds={LDS_BYTES}
.amdgcn_target "amdgcn-amd-amdhsa--gfx950"
.text
.globl {KNAME}
.p2align 8
.type {KNAME},@function
{KNAME}:
{body}
.section .rodata,"a"
.p2align 6
.amdhsa_kernel {KNAME}
  .amdhsa_next_free_vgpr 512
  .amdhsa_next_free_sgpr 102
  .amdhsa_accum_offset 256
  .amdhsa_group_segment_fixed_size 0
  .amdhsa_kernarg_size 88
  .amdhsa_user_sgpr_count 2
  .amdhsa_user_sgpr_kernarg_segment_ptr 1
  .amdhsa_system_sgpr_workgroup_id_x 1
.end_amdhsa_kernel
"""
        return txt, info

def main(cls):
    out = sys.argv[1]
    opt = {}
    for a in sys.argv[2:]:
        k, v = a.split("=", 1)
        opt[k] = eval(v)
    g = cls(opt)
    txt, info = g.build()
    open(out, "w").write(txt)
    json.dump(dict(stamps=g.stamp_names, opt={k: str(v) for k, v in opt.items()}), open(out + ".json", "w"))
    print(out, info, len(g.stamp_names))

if __name__ == "__main__":
    main(Gen)
```

```python
import sys, json
import gen2
from gen2 import *

V_WOD = 252
V_WOR, V_WORB = 250, 192
S_MWO, S_KWO = 40, 41
QB = [32768, 65536, 98304, 131072]

class Gen3(Gen):
    def prologue(self):
        super().prologue()
        A = self.A; L = f"v{V_LANE}"; t0, t1 = f"v{V_T}", f"v{V_T+1}"
        A(f"s_lshr_b32 s{S_T0}, s{S_J}, 2\ns_lshl_b32 s{S_T0}, s{S_T0}, 8\ns_lshl_b32 s3, s{S_W}, 16\ns_add_u32 s{S_T0}, s{S_T0}, s3")
        A(f"v_bfe_u32 {t0}, {L}, 2, 2\nv_lshlrev_b32 {t0}, 11, {t0}\nv_add_u32 {t0}, s{S_T0}, {t0}")
        A(f"v_lshrrev_b32 {t1}, 4, {L}\nv_lshl_add_u32 {t0}, {t1}, 6, {t0}\nv_and_b32 {t1}, 3, {L}\nv_lshl_add_u32 v{V_WOD}, {t1}, 4, {t0}")
        A(f"v_xor_b32 v{V_WOD+1}, 32, v{V_WOD}\nv_add_u32 v{V_WOD+1}, {8192-1024}, v{V_WOD+1}")
        A(f"v_add_u32 v{V_WOD+2}, {2*(8192-1024)}, v{V_WOD}\nv_add_u32 v{V_WOD+3}, {2*(8192-1024)}, v{V_WOD+1}")
        A(f"s_lshl_b32 s{S_MWO}, s{S_W}, 13\ns_mov_b32 s{S_KWO}, 0")
        for x in self.wo_rsetup(): A(x)
    def wo_q(self, Q):
        out = []
        for hf in range(2):
            out.append(f"s_add_u32 m0, s{S_MWO}, {QB[Q & 3] + 4096*hf}")
            for i in range(4):
                out.append(("vm", ("wo", Q), f"buffer_load_dwordx4 v{V_WOD+i}, {srd(SRD_WO)}, s{S_KWO} offen offset:{1024*i} lds"))
            out.append(f"s_add_u32 s{S_KWO}, s{S_KWO}, {32768 if hf == 0 else 128*2048 - 32768}")
        return out
    def wo_rsetup(self):
        L = f"v{V_LANE}"; t0, t1 = f"v{V_T}", f"v{V_T+1}"
        return [f"v_lshrrev_b32 {t0}, 5, {L}", f"v_lshlrev_b32 {t0}, 12, {t0}", f"v_bfe_u32 {t1}, {L}, 4, 1", f"v_mul_u32_u24 {t1}, {1024+32}, {t1}",
                f"v_add_u32 {t0}, {t0}, {t1}", f"v_bfe_u32 {t1}, {L}, 2, 2", f"v_lshl_add_u32 {t0}, {t1}, 6, {t0}", f"v_and_b32 {t1}, 3, {L}",
                f"v_lshl_add_u32 {t0}, {t1}, 3, {t0}", f"s_lshl_b32 s3, s{S_W}, 8", f"s_add_u32 s3, s3, 32768", f"v_add_u32 v{V_WOR}, s3, {t0}",
                f"v_xor_b32 v{V_WOR+1}, 32, v{V_WOR}"]
    def wo_reads(self, Qs):
        out = []
        for Q in Qs:
            q = Q & 3
            for kb in range(4):
                for nb in range(2):
                    for rd in range(2):
                        out.append(f"ds_read_b64_tr_b16 {ar(32*Q + 8*kb + 4*nb + 2*rd, 2)}, v{(V_WORB if q//2 else V_WOR) + nb} offset:{32768*(q%2) + 8192*kb + 2048*rd}")
        return out
    def extra_need(self, i):
        return [("wo", 0)] if i == 15 else []
    def extra_tail(self, i):
        return self.wo_reads([0]) if i == 15 else []
    def extra_pend(self, i):
        if i == 1: return [f"s_mul_i32 s3, s{S_RH}, 0x80008000"] + [f"v_xor_b32 v{V_PHI+k}, s3, v{V_PHI+k}" for k in range(8)]
        if i == 13: return self.wo_q(0)
        if i == 14: return self.wo_q(1)
        return []
    def pack_ops(self, m):
        ops = super().pack_ops(m)
        b = ACC[2] + 4 * m
        qs = [x for x in ops if "permlane" in x and int(x.split()[1][1:-1]) < 32]
        self.q_swaps = getattr(self, "q_swaps", []) + qs
        ops = [x for x in ops if x not in qs]
        return ops + [f"v_permlane32_swap_b32 v{b}, v{b+2}", f"v_permlane32_swap_b32 v{b+1}, v{b+3}"]
    def finish_pack(self, ops):
        assert not [x for x in ops if "cvt" in x and 32 <= int(x.split(", v")[1]) < 48]
        for x in self.unit_S0(ACC[1], 32): self.A(x)
        for x in ops: self.A(x)
    def slotfill(self, ops, pool):
        out = []
        for x in ops:
            if x.startswith("v_permlane32_swap") and pool: out.append(pool.pop(0))
            out.append(x)
        return out

    def mix(self, main, extra, pos):
        k = 0
        for idx, x in enumerate(main):
            while k < len(extra) and pos[k] <= idx:
                self.em(extra[k]); k += 1
            self.em(x)
        for x in extra[k:]: self.em(x)

    def e12(self):
        A = self.A; o = self.o; em = self.em
        L = f"v{V_LANE}"; t0, t1 = f"v{V_T}", f"v{V_T+1}"
        KVO, ZO, TD = 160, 176, 64
        WSET = [(32, 48), (96, 112)]
        FQ = self.FQ
        frag = lambda n: ACC[1] + 8 * n if n < 4 else ACC[0] + 8 * (n - 4)
        def tmf(n, sg):
            P, E = WSET[n % 2]; D = P if sg else TD
            return [f"{MF32} {vr(D,16)}, {vr(E + 8*sg + 4*j, 4)}, {vr(V_ID + 4*j, 4)}, {'0' if j == 0 else vr(D,16)}" for j in range(2)]
        def tcv(n, sg):
            P, E = WSET[n % 2]; D = P if sg else TD
            return [f"v_cvt_pk_bf16_f32 v{D+k}, v{D+2*k}, v{D+2*k+1}" for k in range(8)]
        def kvm(n, sg):
            P, E = WSET[n % 2]; D = P if sg else TD
            kv = ar(A_KVX, 16) if sg else vr(KVO, 16); z = ar(A_ZX, 16) if sg else vr(ZO, 16)
            out = []
            for j in range(2):
                first = (n == 0 and j == 0)
                out.append(f"{MF32} {kv}, {vr(D + 4*j, 4)}, {vr(ACC[2] + 8*n + 4*j, 4)}, {'0' if first else kv}")
                out.append(f"{MF32} {z}, {vr(D + 4*j, 4)}, {vr(V_ONE,4)}, {'0' if first else z}")
            return out
        A("s_waitcnt lgkmcnt(0)\ns_barrier")
        A(f"v_add_u32 v{V_WORB}, 0x10000, v{V_WOR}\nv_add_u32 v{V_WORB+1}, 0x10000, v{V_WOR+1}")
        V_XW, V_XR, V_ZW, V_ZR = V_XA, V_XA + 1, V_XA + 2, V_XA + 3
        tz = f"v{V_WD}"
        A(f"s_lshl_b32 s{S_T1}, s{S_W}, 13")
        A(f"v_lshlrev_b32 {t1}, 4, {L}\nv_add_u32 v{V_XW}, s{S_T1}, {t1}\nv_xor_b32 v{V_XR}, 16384, v{V_XW}")
        A(f"v_lshrrev_b32 {tz}, 5, {L}\nv_lshlrev_b32 {tz}, 4, {tz}\nv_add_u32 v{V_ZW}, s{S_T1}, {tz}\nv_xor_b32 v{V_ZR}, 16384, v{V_ZW}")
        dq = self.wo_q(2) + self.wo_q(3) + self.wo_q(4)
        bg = {"q": dq, "every": o.get("bg1", 14), "cnt": 0}
        plain_em = self.em
        def em_bg(x):
            plain_em(x)
            if bg["q"] and isinstance(x, str) and x.startswith("v_") and not x.startswith("v_mfma"):
                bg["cnt"] += 1
                if bg["cnt"] >= bg["every"]:
                    bg["cnt"] = 0
                    y = bg["q"].pop(0); plain_em(y)
                    if isinstance(y, str) and bg["q"] and not isinstance(bg["q"][0], str): bg["cnt"] = bg["every"] - 1
                    elif isinstance(y, str): bg["cnt"] = bg["every"] - 1
        self.em = em = em_bg
        for n in range(8):
            P, E = WSET[n % 2]
            pk = n - 1 if 1 <= n <= 4 else None
            self.mix(self.slotfill(self.unit_S1(P), self.q_swaps), tmf(pk, 1) if pk is not None else [], [0, 6])
            if n == 7:
                self.poll_check()
                self.stamp("sync1")
                bg["q"] = self.partial_loads(); bg["every"] = o.get("bg3", 4); bg["cnt"] = 99
            self.stamp(f"u{n}s1")
            for x in self.unit_S2(P, E): em(x)
            self.stamp(f"u{n}s2")
            s3 = self.unit_S3(P, E)
            if pk is not None:
                for x in tcv(pk, 1): em(x)
                self.mix(s3[:16], kvm(pk, 1), [1, 4, 8, 12])
                for x in tcv(pk, 0): em(x)
                self.mix(s3[16:], kvm(pk, 0), [1, 4, 8, 12])
            else:
                for x in s3: em(x)
            self.stamp(f"u{n}s3")
            for x in self.slotfill(self.unit_S4(P, E), self.q_swaps): em(x)
            self.stamp(f"u{n}s4")
            if n == 6:
                assert not bg["q"], len(bg["q"])
                self.poll_issue()
            if n == 3: assert not self.q_swaps
            if n == 4:
                self.stamp("e1")
                assert not bg["q"]
                for q in range(4): A(f"ds_write_b128 v{V_XW}, {ar(A_KVX + 4*q, 4)} offset:{X1_OFF + 1024*q}")
                A(f"s_mov_b32 exec_lo, 1\ns_mov_b32 exec_hi, 1")
                for q in range(4): A(f"ds_write_b128 v{V_ZW}, {ar(A_ZX + 4*q, 4)} offset:{X1Z_OFF + 32*q}")
                A("s_mov_b64 exec, -1")
                plain_em(("wait", [("wo", q) for q in range(5)], " lgkmcnt(0)")); A("s_barrier")
                R = 96
                for q in range(4): A(f"ds_read_b128 {vr(R + 4*q, 4)}, v{V_XR} offset:{X1_OFF + 1024*q}")
                for q in range(4): A(f"ds_read_b128 {vr(R + 16 + 4*q, 4)}, v{V_ZR} offset:{X1Z_OFF + 32*q}")
                A(f"s_lshl_b32 s{S_T0}, s{S_B}, 5\ns_add_u32 s{S_T0}, s{S_T0}, s{S_HEAD}\ns_lshl_b32 s{S_T0}, s{S_T0}, 3\ns_add_u32 s{S_T0}, s{S_T0}, s{S_R}")
                A(f"s_lshl_b32 s{S_T0}, s{S_T0}, 1\ns_add_u32 s{S_T0}, s{S_T0}, s{S_RH}")
                A(f"s_lshl_b32 s{S_T2}, s{S_T0}, 6\ns_add_u32 s{S_T2}, s{S_T2}, {WS_Z}\ns_lshl_b32 s{S_T0}, s{S_T0}, 11")
                A("s_waitcnt lgkmcnt(4)")
                for k in range(8): A(f"v_pk_add_f32 {vr(KVO+2*k,2)}, {vr(KVO+2*k,2)}, {vr(R+2*k,2)}")
                for k in range(8): A(f"v_cvt_pk_bf16_f32 v{KVO+k}, v{KVO+2*k}, v{KVO+2*k+1}")
                for j in range(2): plain_em(("vm", "pub1", f"buffer_store_dwordx4 {vr(KVO+4*j,4)}, {t1}, {srd(SRD_WS)}, s{S_T0} offen offset:{1024*j} sc1"))
                A("s_waitcnt lgkmcnt(0)")
                for k in range(8): A(f"v_pk_add_f32 {vr(ZO+2*k,2)}, {vr(ZO+2*k,2)}, {vr(R+16+2*k,2)}")
                for k in range(8): A(f"v_cvt_pk_bf16_f32 v{ZO+k}, v{ZO+2*k}, v{ZO+2*k+1}")
                A(f"s_mov_b32 exec_lo, 1\ns_mov_b32 exec_hi, 1")
                for j in range(2): plain_em(("vm", "pub1", f"buffer_store_dwordx4 {vr(ZO+4*j,4)}, {tz}, {srd(SRD_WS)}, s{S_T2} offen offset:{32*j} sc1"))
                A("s_mov_b64 exec, -1")
                self.stamp("pub1")
                r1 = self.wo_reads([1, 2])
                for x in r1: A(x)
                self.get_nonce()
                self.stamp("r1")
            for x in self.unit_S5a(P, E): em(x)
            self.stamp(f"u{n}s5a")
            F0, F1 = (E, E + 8) if n < 4 else (FQ[n - 4], FQ[n - 4] + 8)
            s5 = self.unit_S5b(P, E, F0, F1)
            ex = self.unit_S0(frag(n + 1), WSET[(n + 1) % 2][0]) if n < 7 else []
            self.mix(s5, ex + (tmf(n, 0) if n < 4 else []), [1, 5, 10, 14])
            self.stamp(f"u{n}s5b")
            if n == 4:
                A("s_waitcnt lgkmcnt(0)\ns_barrier")
                bg["q"] = self.wo_q(5) + self.wo_q(6); bg["every"] = o.get("bg2", 11); bg["cnt"] = 0
            if n == o.get("flag1_at", 5): self.flag_store(self.f1w, ["pub1"])
        assert not bg["q"]
        self.em = plain_em
        self.stamp("e2")

    def poll_issue(self):
        A = self.A; L = f"v{V_LANE}"; t0, t1 = f"v{V_T}", f"v{V_T+1}"
        self.f1base(S_T0)
        A(f"v_lshlrev_b32 v{V_T+6}, 3, v{V_LANE}\ns_mov_b32 exec_hi, 0\ns_mov_b32 exec_lo, 0xffff")
        Gen.em(self, ("vm", "f1", f"buffer_load_dwordx2 {vr(V_T+2,2)}, v{V_T+6}, {srd(SRD_WS)}, s{S_T0} offen sc1"))
        A("s_mov_b64 exec, -1")
        A(f"s_lshl_b32 s{S_T1}, s{S_B}, 5\ns_add_u32 s{S_T1}, s{S_T1}, s{S_HEAD}")
        A(f"s_lshl_b32 s{S_T2}, s{S_T1}, 10\ns_add_u32 s{S_T2}, s{S_T2}, {WS_Z}")
        A(f"s_lshl_b32 s{S_T1}, s{S_T1}, 15\ns_lshl_b32 s3, s{S_RH}, 11\ns_add_u32 s{S_T1}, s{S_T1}, s3")
        tz = f"v{V_T+4}"; tz2 = f"v{V_T+5}"
        A(f"v_bfe_u32 {t0}, {L}, 3, 1\nv_lshlrev_b32 {t0}, 2, {t0}\nv_and_b32 {tz}, 3, {L}\nv_add_u32 {tz}, {tz}, {t0}\nv_lshlrev_b32 {tz}, 7, {tz}")
        A(f"v_lshrrev_b32 {t0}, 5, {L}\nv_lshl_add_u32 {tz}, {t0}, 4, {tz}\ns_lshl_b32 s3, s{S_RH}, 6\nv_add_u32 {tz}, s3, {tz}\nv_xor_b32 {tz2}, 64, {tz}")
    def poll_check(self):
        A = self.A
        lab, done = self.label("pc"), self.label("pcd")
        Gen.em(self, ("wait", ["f1"], ""))
        A(f"s_mov_b32 s{S_SPIN}, 0\ns_mov_b32 exec_hi, 0\ns_mov_b32 exec_lo, 0xffff")
        A(f"{lab}:")
        A(f"v_cmp_ne_u64 vcc, s[{S_NON}:{S_NON+1}], {vr(V_T+2,2)}")
        A(f"s_add_u32 s{S_SPIN}, s{S_SPIN}, 1\ns_nop 3\ns_cbranch_vccz {done}")
        A(f"s_cmp_ge_u32 s{S_SPIN}, {SPIN_MAX}\ns_cbranch_scc1 {done}")
        A(f"buffer_load_dwordx2 {vr(V_T+2,2)}, v{V_T+6}, {srd(SRD_WS)}, s{S_T0} offen sc1\ns_waitcnt vmcnt(0)\ns_branch {lab}")
        A(f"{done}:\ns_mov_b64 exec, -1")
    PL, ZF, SUM = 0, 176, 160
    def partial_loads(self):
        t1 = f"v{V_T+1}"; out = []
        for r in range(8):
            for j in range(2):
                out.append(("vm", ("pl", r), f"buffer_load_dwordx4 {vr(self.PL + 8*r + 4*j, 4)}, {t1}, {srd(SRD_WS)}, s{S_T1} offen offset:{1024*j} sc1"))
            if r < 7: out.append(f"s_add_u32 s{S_T1}, s{S_T1}, 4096")
        for sl in range(2):
            for j in range(2):
                out.append(("vm", "zl", f"buffer_load_dwordx4 {vr(self.ZF + 8*sl + 4*j, 4)}, v{V_T+4+sl}, {srd(SRD_WS)}, s{S_T2} offen offset:{32*j} sc1"))
        return out

    def e3(self):
        A = self.A; o = self.o; em = self.em
        L = f"v{V_LANE}"; t0, t1 = f"v{V_T}", f"v{V_T+1}"
        V_XW, V_XR = V_XA, V_XA + 1
        PL, ZF, S = self.PL, self.ZF, self.SUM
        KVF = S
        for r in range(8):
            em(("wait", [("pl", r)], ""))
            for j in range(2):
                A(f"{MF32} {vr(S,16)}, {vr(V_ID + 4*j, 4)}, {vr(PL + 8*r + 4*j, 4)}, {'0' if r + j == 0 else vr(S,16)}")
        SETS = [(96, 112), (32, 48)]
        def mm(u):
            N, D = SETS[u % 2]; F = self.FQ[u]
            den = [f"{MF32} {vr(D,16)}, {vr(ZF + 4*k, 4)}, {vr(F + 4*k, 4)}, {'0' if k == 0 else vr(D,16)}" for k in range(4)]
            num = [f"{MF32} {vr(N,16)}, {vr(KVF + 4*k, 4)}, {vr(F + 4*k, 4)}, {'0' if k == 0 else vr(N,16)}" for k in range(4)]
            return den, num
        d0, n0 = mm(0)
        em(("wait", ["zl"], ""))
        A(d0[0])
        A(f"s_lshl_b32 s{S_T1}, s{S_B}, 4\ns_lshl_b32 s3, s{S_R}, 1\ns_add_u32 s{S_T1}, s{S_T1}, s3\ns_add_u32 s{S_T1}, s{S_T1}, s{S_RH}")
        A(d0[1])
        A(f"s_lshl_b32 s{S_T1}, s{S_T1}, 8\ns_add_u32 s{S_T1}, s{S_T1}, s{S_HEAD}\ns_lshl_b32 s{S_T1}, s{S_T1}, 10\ns_add_u32 s{S_T1}, s{S_T1}, {WS_O}")
        A(f"v_bfe_u32 {t0}, {L}, 4, 1\nv_lshlrev_b32 {t0}, 15, {t0}\nv_lshrrev_b32 {t1}, 5, {L}\nv_lshl_add_u32 {t0}, {t1}, 8, {t0}\nv_and_b32 {t1}, 15, {L}\nv_lshl_add_u32 {t0}, {t1}, 4, {t0}")
        cv = [f"v_cvt_pk_bf16_f32 v{KVF+k}, v{S+2*k}, v{S+2*k+1}" for k in range(8)]
        self.mix(cv, d0[2:], [0, 5])
        for j in range(2): A(f"ds_write_b128 v{V_XW}, {vr(KVF + 4*j, 4)} offset:{X2_OFF + 1024*j}")
        for x in n0[:2]: A(x)
        A("s_waitcnt lgkmcnt(0)\ns_barrier")
        for j in range(2): A(f"ds_read_b128 {vr(KVF + 8 + 4*j, 4)}, v{V_XR} offset:{X2_OFF + 1024*j}")
        self.stamp("kvsum")
        def fin(u):
            N, D = SETS[u % 2]
            a = [f"v_add_f32 v{D}, v{D}, v{D+1}", f"v_add_f32 v{D+2}, v{D+2}, v{D+3}", f"v_add_f32 v{D+4}, v{D+4}, v{D+5}", f"v_add_f32 v{D+6}, v{D+6}, v{D+7}",
                 f"v_add_f32 v{D}, v{D}, v{D+2}", f"v_add_f32 v{D+4}, v{D+4}, v{D+6}", f"v_add_f32 v{D}, v{D}, v{D+4}", f"v_add_f32 v{D}, 0x358637bd, v{D}",
                 f"v_rcp_f32 v{D}, v{D}"]
            b = [f"v_mul_f32 v{N+k}, v{N+k}, v{D}" for k in range(16)]
            b += [f"v_cvt_pk_bf16_f32 v{N+k}, v{N+2*k}, v{N+2*k+1}" for k in range(8)]
            b += [("vm", "pub2", f"buffer_store_dwordx4 {vr(N+4*j,4)}, {t0}, {srd(SRD_WS)}, s{S_T1} offen offset:{512*j} sc1") for j in range(2)]
            if u < 3: b.append(f"s_add_u32 s{S_T1}, s{S_T1}, 0x10000")
            return a, b
        a0, b0 = fin(0)
        d1, n1 = mm(1)
        self.mix(a0, d1[:2], [0, 5])
        A("s_waitcnt lgkmcnt(0)")
        for x in n0[2:] + d1[2:]: A(x)
        pend_a = None
        for u in range(4):
            a, b = fin(u)
            ex = []
            if u + 1 < 4: ex += mm(u + 1)[1]
            main = b[:24]
            if u + 1 < 4:
                an, _ = fin(u + 1)
                main = main + an
                if u + 2 < 4: ex += mm(u + 2)[0]
            self.mix(main, ex, [2 + 4 * k for k in range(len(ex))])
            for x in b[24:]: em(x)
        self.stamp("e3")
        for x in self.wo_reads([3]): A(x)
        A("s_waitcnt lgkmcnt(0)\ns_barrier")
        for x in self.wo_q(7): em(x)
        r2 = self.wo_reads([4, 5, 6])
        h = o.get("r2split", 32)
        for x in r2[:h]: A(x)
        self.flag_store(self.f2w, ["pub2"])
        for x in r2[h:]: A(x)
        em(("wait", [("wo", 7)], "")); A("s_barrier")
        for x in self.wo_reads([7]): A(x)
        self.stamp("pub2")
        self.padspin("pub2")

    def gemm2(self):
        A = self.A; o = self.o; em = self.em
        L = f"v{V_LANE}"; t0, t1 = f"v{V_T}", f"v{V_T+1}"
        V_OD, V_OA, V_OUT, OF = V_WD, V_XA, V_WD + 1, 64
        NS = 10
        A(f"s_and_b32 s{S_T2}, s{S_XCD}, 3\ns_lshl_b32 s{S_T2}, s{S_T2}, 2\ns_and_b32 s3, s{S_J}, 3\ns_add_u32 s{S_T2}, s{S_T2}, s3")
        A(f"s_lshl_b32 s{S_T1}, s{S_B}, 4\ns_add_u32 s{S_T1}, s{S_T1}, s{S_T2}")
        A(f"s_lshl_b32 s{S_T0}, s{S_T1}, 8\ns_add_u32 s{S_T0}, s{S_T0}, {WS_F2}")
        A(f"s_lshl_b32 s{S_KX}, s{S_T1}, 18\ns_add_u32 s{S_KX}, s{S_KX}, {WS_O}")
        A(f"s_lshl_b32 s{S_MX}, s{S_W}, 12")
        A(f"v_lshlrev_b32 v{V_OA}, 4, {L}\nv_add_u32 v{V_OD}, s{S_MX}, v{V_OA}")
        A(f"v_add_u32 v{V_OA+1}, 0x10000, v{V_OA}\nv_add_u32 v{V_OA+2}, 0x20000, v{V_OA}")
        A(f"s_lshl_b32 s{S_KW}, s{S_T2}, 19\ns_lshl_b32 s3, s{S_B}, 11\ns_add_u32 s{S_KW}, s{S_KW}, s3")
        A(f"s_lshr_b32 s3, s{S_J}, 2\ns_lshl_b32 s3, s3, 8\ns_add_u32 s{S_KW}, s{S_KW}, s3\ns_lshl_b32 s3, s{S_W}, 6\ns_add_u32 s{S_KW}, s{S_KW}, s3")
        A(f"v_and_b32 {t0}, 15, {L}\nv_lshlrev_b32 {t0}, 12, {t0}\nv_bfe_u32 {t1}, {L}, 4, 1\nv_lshl_add_u32 {t0}, {t1}, 5, {t0}\nv_lshrrev_b32 {t1}, 5, {L}\nv_lshl_add_u32 v{V_OUT}, {t1}, 4, {t0}")
        A("s_waitcnt lgkmcnt(0)\ns_barrier")
        self.poll(f"s{S_T0}", 32)
        self.stamp("sync2")
        LA = o.get("g2la", 4)
        RING = 8
        def dma(i):
            base = 16384 * (i % NS)
            out = [f"s_add_u32 m0, s{S_MX}, {base}" if base else f"s_mov_b32 m0, s{S_MX}"]
            out += [("vm", ("o", i), f"buffer_load_dwordx4 v{V_OD}, {srd(SRD_WS)}, s{S_KX} offen offset:{1024*k} sc1 lds") for k in range(4)]
            out.append(f"s_add_u32 s{S_KX}, s{S_KX}, 16384")
            return out
        def reads(gu):
            i, u = divmod(gu, 8)
            off = 16384 * (i % NS) + 2048 * u
            return [f"ds_read_b128 {vr(OF + 8*(gu%RING) + 4*s, 4)}, v{V_OA + off // 65536} offset:{off % 65536 + 1024*s}" for s in range(2)]
        def mf(i, u):
            out = []
            ac = 8 * ((i >> 1) & 1)
            nbs = (0, 1) if u % 2 == 0 else (1, 0)
            for k, nb in enumerate(nbs):
                for q, s in enumerate((0, 1) if k == 0 else (1, 0)):
                    d = vr(ac + 4 * nb, 4)
                    hd = 16 * (i & 1) + 2 * u + s
                    out.append(f"{MF16} {d}, {ar(8*hd + 4*nb, 4)}, {vr(OF + 8*((8*i+u)%RING) + 4*s, 4)}, {'0' if i % 2 == 0 and u == 0 and q == 0 else d}")
            return out
        def fin(m):
            b = 8 * (m & 1); p = 16 + 4 * (m & 1)
            return [f"v_cvt_pk_bf16_f32 v{p}, v{b}, v{b+1}", f"v_cvt_pk_bf16_f32 v{p+1}, v{b+2}, v{b+3}",
                    f"v_cvt_pk_bf16_f32 v{p+2}, v{b+4}, v{b+5}", f"v_cvt_pk_bf16_f32 v{p+3}, v{b+6}, v{b+7}",
                    f"v_permlane16_swap_b32 v{p}, v{p+2}", f"v_permlane16_swap_b32 v{p+1}, v{p+3}",
                    ("vm", "out", f"buffer_store_dwordx4 {vr(p,4)}, v{V_OUT}, {srd(SRD_OUT)}, s{S_KW} offen{o.get('outpol',' sc1')}"), f"s_add_u32 s{S_KW}, s{S_KW}, 0x10000"]
        npre = o.get("g2pre", 4)
        for i in range(npre):
            for x in dma(i): em(x)
        nxt = npre
        em(("wait", [("o", 0)], "")); A("s_barrier")
        self.stamp("o first")
        for gu in range(LA):
            for r in reads(gu): A(r)
        rate = o.get("g2rate", 1.0)
        acc = 0.0
        ub = 8 - LA
        for i in range(16):
            fill = [[] for _ in range(32)]
            pre = {}
            for u in range(0, 8, 2): pre[4 * u] = f"s_waitcnt lgkmcnt({2*len([x for x in range(8*i+u+2, 8*i+u+LA) if x < 128])})"
            pre[4 * ub] = "s_waitcnt lgkmcnt(0)" if (i + NS < 16) else pre.get(4 * ub)
            if pre[4 * ub] is None: del pre[4 * ub]
            for u in range(8):
                gu = 8 * i + u + LA
                if gu < 128:
                    for k, r in enumerate(reads(gu)): fill[4 * u + 1 + k].append(r)
            if i < 15:
                fill[4 * ub].insert(0, ("wait", [("o", i + 1)], "")); fill[4 * ub].insert(1, "s_barrier")
            ops = []
            if i >= 2 and i % 2 == 0: ops += fin(i // 2 - 1)
            acc += rate
            while acc >= 1 and nxt < 16 and (nxt - NS) < i:
                ops += dma(nxt); nxt += 1; acc -= 1
            free = [g for g in range(3, 32) if len(fill[g]) == 0 and g + 1 not in pre]
            free2 = [g for g in range(3, 32) if len(fill[g]) == 1 and g + 1 not in pre]
            slots = sorted((free + free2)[:len(ops)])
            assert len(slots) >= len(ops), (i, len(slots), len(ops))
            for g, x in zip(slots, ops): fill[g].append(x)
            g = 0
            for u in range(8):
                for x in mf(i, u):
                    if g in pre: A(pre[g])
                    A(x)
                    for y in fill[g]: em(y)
                    g += 1
            if i in (3, 9) or "stamps" in o: self.stamp(f"g2s{i}")
        assert nxt == 16
        for x in fin(7): em(x)
        self.stamp("g2end")
        self.padspin("end")

    def body(self):
        self.e12(); self.e3(); self.gemm2()

if __name__ == "__main__":
    gen2.main(Gen3)
```

```python
import sys, json
import gen2
from gen2 import *

V_WOD = 252
V_WOR, V_WORB = 250, 192
S_MWO, S_KWO = 40, 41
QB = [32768, 65536, 98304, 131072]

class Gen3(Gen):
    def prologue(self):
        super().prologue()
        A = self.A; L = f"v{V_LANE}"; t0, t1 = f"v{V_T}", f"v{V_T+1}"
        A(f"s_lshr_b32 s{S_T0}, s{S_J}, 2\ns_lshl_b32 s{S_T0}, s{S_T0}, 8\ns_lshl_b32 s3, s{S_W}, 16\ns_add_u32 s{S_T0}, s{S_T0}, s3")
        A(f"v_bfe_u32 {t0}, {L}, 2, 2\nv_lshlrev_b32 {t0}, 11, {t0}\nv_add_u32 {t0}, s{S_T0}, {t0}")
        A(f"v_lshrrev_b32 {t1}, 4, {L}\nv_lshl_add_u32 {t0}, {t1}, 6, {t0}\nv_and_b32 {t1}, 3, {L}\nv_lshl_add_u32 v{V_WOD}, {t1}, 4, {t0}")
        A(f"v_xor_b32 v{V_WOD+1}, 32, v{V_WOD}\nv_add_u32 v{V_WOD+1}, {8192-1024}, v{V_WOD+1}")
        A(f"v_add_u32 v{V_WOD+2}, {2*(8192-1024)}, v{V_WOD}\nv_add_u32 v{V_WOD+3}, {2*(8192-1024)}, v{V_WOD+1}")
        A(f"s_lshl_b32 s{S_MWO}, s{S_W}, 13\ns_mov_b32 s{S_KWO}, 0")
        for x in self.wo_rsetup(): A(x)
    def wo_q(self, Q):
        out = []
        for hf in range(2):
            out.append(f"s_add_u32 m0, s{S_MWO}, {QB[Q & 3] + 4096*hf}")
            for i in range(4):
                out.append(("vm", ("wo", Q), f"buffer_load_dwordx4 v{V_WOD+i}, {srd(SRD_WO)}, s{S_KWO} offen offset:{1024*i} lds"))
            out.append(f"s_add_u32 s{S_KWO}, s{S_KWO}, {32768 if hf == 0 else 128*2048 - 32768}")
        return out
    def wo_rsetup(self):
        L = f"v{V_LANE}"; t0, t1 = f"v{V_T}", f"v{V_T+1}"
        return [f"v_lshrrev_b32 {t0}, 5, {L}", f"v_lshlrev_b32 {t0}, 12, {t0}", f"v_bfe_u32 {t1}, {L}, 4, 1", f"v_mul_u32_u24 {t1}, {1024+32}, {t1}",
                f"v_add_u32 {t0}, {t0}, {t1}", f"v_bfe_u32 {t1}, {L}, 2, 2", f"v_lshl_add_u32 {t0}, {t1}, 6, {t0}", f"v_and_b32 {t1}, 3, {L}",
                f"v_lshl_add_u32 {t0}, {t1}, 3, {t0}", f"s_lshl_b32 s3, s{S_W}, 8", f"s_add_u32 s3, s3, 32768", f"v_add_u32 v{V_WOR}, s3, {t0}",
                f"v_xor_b32 v{V_WOR+1}, 32, v{V_WOR}"]
    def wo_reads(self, Qs):
        out = []
        for Q in Qs:
            q = Q & 3
            for kb in range(4):
                for nb in range(2):
                    for rd in range(2):
                        out.append(f"ds_read_b64_tr_b16 {ar(32*Q + 8*kb + 4*nb + 2*rd, 2)}, v{(V_WORB if q//2 else V_WOR) + nb} offset:{32768*(q%2) + 8192*kb + 2048*rd}")
        return out
    def extra_need(self, i):
        return [("wo", 0)] if i == 15 else []
    def extra_tail(self, i):
        return self.wo_reads([0]) if i == 15 else []
    def extra_pend(self, i):
        if i == 1: return [f"s_mul_i32 s3, s{S_RH}, 0x80008000"] + [f"v_xor_b32 v{V_PHI+k}, s3, v{V_PHI+k}" for k in range(8)]
        if i == 6 and self.o.get("tlb"): return self.tlb_ops()
        if i in self.o.get("cpf_at", (5, 11)): return self.code_pf()
        if i == 13: return self.wo_q(0)
        if i == 14: return self.wo_q(1)
        return []
    def tlb_ops(self):
        t = V_ST; L = f"v{V_LANE}"
        n = self.o["tlb"]
        ops = [f"s_and_b32 s{S_T2}, s{S_XCD}, 3", f"s_lshl_b32 s{S_T2}, s{S_T2}, 2", f"s_and_b32 s3, s{S_J}, 3", f"s_add_u32 s{S_T2}, s{S_T2}, s3",
               f"s_lshl_b32 s{S_T3}, s{S_T2}, 19", f"v_lshlrev_b32 v{t}, 13, {L}",
               ("vm", "tlb", f"buffer_load_dword v{t+1}, v{t}, {srd(SRD_OUT)}, s{S_T3} offen"),
               f"s_lshl_b32 s3, s{S_B}, 4", f"s_add_u32 s{S_T2}, s{S_T2}, s3", f"s_lshl_b32 s{S_T2}, s{S_T2}, 18", f"s_add_u32 s{S_T2}, s{S_T2}, {WS_O}",
               f"v_lshlrev_b32 v{t}, 12, {L}",
               ("vm", "tlb", f"buffer_load_dword v{t+2}, v{t}, {srd(SRD_WS)}, s{S_T2} offen")]
        if n >= 2:
            ops += [f"s_lshl_b32 s{S_T2}, s{S_B}, 4", f"s_lshl_b32 s3, s{S_R}, 1", f"s_add_u32 s{S_T2}, s{S_T2}, s3", f"s_add_u32 s{S_T2}, s{S_T2}, s{S_RH}",
                    f"s_lshl_b32 s{S_T2}, s{S_T2}, 18", f"s_add_u32 s{S_T2}, s{S_T2}, {WS_O}",
                    ("vm", "tlb", f"buffer_load_dword v{t+3}, v{t}, {srd(SRD_WS)}, s{S_T2} offen"),
                    f"v_lshlrev_b32 v{t}, 15, {L}",
                    ("vm", "tlb", f"buffer_load_dword v{t+4}, v{t}, {srd(SRD_WO)}, 0 offen"),
                    f"v_lshlrev_b32 v{t}, 16, {L}",
                    ("vm", "tlb", f"buffer_load_dword v{t+5}, v{t}, {srd(SRD_WS)}, 0 offen")]
        return ops
    def pack_ops(self, m):
        ops = super().pack_ops(m)
        b = ACC[2] + 4 * m
        qs = [x for x in ops if "permlane" in x and int(x.split()[1][1:-1]) < 32]
        self.q_swaps = getattr(self, "q_swaps", []) + qs
        ops = [x for x in ops if x not in qs]
        return ops + [f"v_permlane32_swap_b32 v{b}, v{b+2}", f"v_permlane32_swap_b32 v{b+1}, v{b+3}"]
    def finish_pack(self, ops):
        assert not [x for x in ops if "cvt" in x and 32 <= int(x.split(", v")[1]) < 48]
        for x in self.unit_S0(ACC[1], 32): self.A(x)
        for x in ops: self.A(x)
    def slotfill(self, ops, pool):
        out = []
        for x in ops:
            if x.startswith("v_permlane32_swap") and pool: out.append(pool.pop(0))
            out.append(x)
        return out

    def mix(self, main, extra, pos):
        k = 0
        for idx, x in enumerate(main):
            while k < len(extra) and pos[k] <= idx:
                self.em(extra[k]); k += 1
            self.em(x)
        for x in extra[k:]: self.em(x)

    def e12(self):
        A = self.A; o = self.o; em = self.em
        L = f"v{V_LANE}"; t0, t1 = f"v{V_T}", f"v{V_T+1}"
        KVO, ZO, TD = 160, 176, 64
        WSET = [(32, 48), (96, 112)]
        FQ = self.FQ
        frag = lambda n: ACC[1] + 8 * n if n < 4 else ACC[0] + 8 * (n - 4)
        def tmf(n, sg):
            P, E = WSET[n % 2]; D = P if sg else TD
            return [f"{MF32} {vr(D,16)}, {vr(E + 8*sg + 4*j, 4)}, {vr(V_ID + 4*j, 4)}, {'0' if j == 0 else vr(D,16)}" for j in range(2)]
        def tcv(n, sg):
            P, E = WSET[n % 2]; D = P if sg else TD
            return [f"v_cvt_pk_bf16_f32 v{D+k}, v{D+2*k}, v{D+2*k+1}" for k in range(8)]
        def kvm(n, sg):
            P, E = WSET[n % 2]; D = P if sg else TD
            kv = ar(A_KVX, 16) if sg else vr(KVO, 16); z = ar(A_ZX, 16) if sg else vr(ZO, 16)
            out = []
            for j in range(2):
                first = (n == 0 and j == 0)
                out.append(f"{MF32} {kv}, {vr(D + 4*j, 4)}, {vr(ACC[2] + 8*n + 4*j, 4)}, {'0' if first else kv}")
                out.append(f"{MF32} {z}, {vr(D + 4*j, 4)}, {vr(V_ONE,4)}, {'0' if first else z}")
            return out
        A("s_waitcnt lgkmcnt(0)\ns_barrier")
        A(f"v_add_u32 v{V_WORB}, 0x10000, v{V_WOR}\nv_add_u32 v{V_WORB+1}, 0x10000, v{V_WOR+1}")
        V_XW, V_XR, V_ZW, V_ZR = V_XA, V_XA + 1, V_XA + 2, V_XA + 3
        tz = f"v{V_WD}"
        A(f"s_lshl_b32 s{S_T1}, s{S_W}, 13")
        A(f"v_lshlrev_b32 {t1}, 4, {L}\nv_add_u32 v{V_XW}, s{S_T1}, {t1}\nv_xor_b32 v{V_XR}, 16384, v{V_XW}")
        A(f"v_lshrrev_b32 {tz}, 5, {L}\nv_lshlrev_b32 {tz}, 4, {tz}\nv_add_u32 v{V_ZW}, s{S_T1}, {tz}\nv_xor_b32 v{V_ZR}, 16384, v{V_ZW}")
        dq = self.wo_q(2) + self.wo_q(3) + self.wo_q(4)
        bg = {"q": dq, "every": o.get("bg1", 14), "cnt": 0}
        plain_em = self.em
        def em_bg(x):
            plain_em(x)
            if bg["q"] and isinstance(x, str) and x.startswith("v_") and not x.startswith("v_mfma"):
                bg["cnt"] += 1
                if bg["cnt"] >= bg["every"]:
                    bg["cnt"] = 0
                    y = bg["q"].pop(0); plain_em(y)
                    if isinstance(y, str) and bg["q"] and not isinstance(bg["q"][0], str): bg["cnt"] = bg["every"] - 1
                    elif isinstance(y, str): bg["cnt"] = bg["every"] - 1
        self.em = em = em_bg
        for n in range(8):
            P, E = WSET[n % 2]
            pk = n - 1 if 1 <= n <= 4 else None
            self.mix(self.slotfill(self.unit_S1(P), self.q_swaps), tmf(pk, 1) if pk is not None else [], [0, 6])
            if n == 7:
                self.poll_check()
                self.stamp("sync1")
                bg["q"] = self.partial_loads(); bg["every"] = o.get("bg3", 4); bg["cnt"] = 99
            self.stamp(f"u{n}s1")
            for x in self.unit_S2(P, E): em(x)
            self.stamp(f"u{n}s2")
            s3 = self.unit_S3(P, E)
            if pk is not None:
                for x in tcv(pk, 1): em(x)
                self.mix(s3[:16], kvm(pk, 1), [1, 4, 8, 12])
                for x in tcv(pk, 0): em(x)
                self.mix(s3[16:], kvm(pk, 0), [1, 4, 8, 12])
            else:
                for x in s3: em(x)
            self.stamp(f"u{n}s3")
            for x in self.slotfill(self.unit_S4(P, E), self.q_swaps): em(x)
            self.stamp(f"u{n}s4")
            if n == 6:
                assert not bg["q"], len(bg["q"])
                self.poll_issue()
            if n == 3: assert not self.q_swaps
            if n == 4:
                self.stamp("e1")
                assert not bg["q"]
                for q in range(4): A(f"ds_write_b128 v{V_XW}, {ar(A_KVX + 4*q, 4)} offset:{X1_OFF + 1024*q}")
                A(f"s_mov_b32 exec_lo, 1\ns_mov_b32 exec_hi, 1")
                for q in range(4): A(f"ds_write_b128 v{V_ZW}, {ar(A_ZX + 4*q, 4)} offset:{X1Z_OFF + 32*q}")
                A("s_mov_b64 exec, -1")
                plain_em(("wait", [("wo", q) for q in range(5)], " lgkmcnt(0)")); A("s_barrier")
                R = 96
                for q in range(4): A(f"ds_read_b128 {vr(R + 4*q, 4)}, v{V_XR} offset:{X1_OFF + 1024*q}")
                for q in range(4): A(f"ds_read_b128 {vr(R + 16 + 4*q, 4)}, v{V_ZR} offset:{X1Z_OFF + 32*q}")
                A(f"s_lshl_b32 s{S_T0}, s{S_B}, 5\ns_add_u32 s{S_T0}, s{S_T0}, s{S_HEAD}\ns_lshl_b32 s{S_T0}, s{S_T0}, 3\ns_add_u32 s{S_T0}, s{S_T0}, s{S_R}")
                A(f"s_lshl_b32 s{S_T0}, s{S_T0}, 1\ns_add_u32 s{S_T0}, s{S_T0}, s{S_RH}")
                A(f"s_lshl_b32 s{S_T2}, s{S_T0}, 6\ns_add_u32 s{S_T2}, s{S_T2}, {WS_Z}\ns_lshl_b32 s{S_T0}, s{S_T0}, 11")
                A("s_waitcnt lgkmcnt(4)")
                for k in range(8): A(f"v_pk_add_f32 {vr(KVO+2*k,2)}, {vr(KVO+2*k,2)}, {vr(R+2*k,2)}")
                for k in range(8): A(f"v_cvt_pk_bf16_f32 v{KVO+k}, v{KVO+2*k}, v{KVO+2*k+1}")
                for j in range(2): plain_em(("vm", "pub1", f"buffer_store_dwordx4 {vr(KVO+4*j,4)}, {t1}, {srd(SRD_WS)}, s{S_T0} offen offset:{1024*j} sc1"))
                A("s_waitcnt lgkmcnt(0)")
                for k in range(8): A(f"v_pk_add_f32 {vr(ZO+2*k,2)}, {vr(ZO+2*k,2)}, {vr(R+16+2*k,2)}")
                for k in range(8): A(f"v_cvt_pk_bf16_f32 v{ZO+k}, v{ZO+2*k}, v{ZO+2*k+1}")
                A(f"s_mov_b32 exec_lo, 1\ns_mov_b32 exec_hi, 1")
                for j in range(2): plain_em(("vm", "pub1", f"buffer_store_dwordx4 {vr(ZO+4*j,4)}, {tz}, {srd(SRD_WS)}, s{S_T2} offen offset:{32*j} sc1"))
                A("s_mov_b64 exec, -1")
                self.stamp("pub1")
                r1 = self.wo_reads([1, 2])
                for x in r1: A(x)
                self.get_nonce()
                self.stamp("r1")
            for x in self.unit_S5a(P, E): em(x)
            self.stamp(f"u{n}s5a")
            F0, F1 = (E, E + 8) if n < 4 else (FQ[n - 4], FQ[n - 4] + 8)
            s5 = self.unit_S5b(P, E, F0, F1)
            ex = self.unit_S0(frag(n + 1), WSET[(n + 1) % 2][0]) if n < 7 else []
            self.mix(s5, ex + (tmf(n, 0) if n < 4 else []), [1, 5, 10, 14])
            self.stamp(f"u{n}s5b")
            if n == 4:
                A("s_waitcnt lgkmcnt(0)\ns_barrier")
                bg["q"] = self.code_pf() + self.wo_q(5) + self.wo_q(6); bg["every"] = o.get("bg2", 10); bg["cnt"] = 0
            if n == o.get("flag1_at", 5): self.flag_store(self.f1w, ["pub1"])
        assert not bg["q"]
        self.em = plain_em
        self.stamp("e2")

    def poll_issue(self):
        A = self.A; L = f"v{V_LANE}"; t0, t1 = f"v{V_T}", f"v{V_T+1}"
        self.f1base(S_T0)
        A(f"v_lshlrev_b32 v{V_T+6}, 3, v{V_LANE}\ns_mov_b32 exec_hi, 0\ns_mov_b32 exec_lo, 0xffff")
        Gen.em(self, ("vm", "f1", f"buffer_load_dwordx2 {vr(V_T+2,2)}, v{V_T+6}, {srd(SRD_WS)}, s{S_T0} offen sc1"))
        A("s_mov_b64 exec, -1")
        A(f"s_lshl_b32 s{S_T1}, s{S_B}, 5\ns_add_u32 s{S_T1}, s{S_T1}, s{S_HEAD}")
        A(f"s_lshl_b32 s{S_T2}, s{S_T1}, 10\ns_add_u32 s{S_T2}, s{S_T2}, {WS_Z}")
        A(f"s_lshl_b32 s{S_T1}, s{S_T1}, 15\ns_lshl_b32 s3, s{S_RH}, 11\ns_add_u32 s{S_T1}, s{S_T1}, s3")
        tz = f"v{V_T+4}"; tz2 = f"v{V_T+5}"
        A(f"v_bfe_u32 {t0}, {L}, 3, 1\nv_lshlrev_b32 {t0}, 2, {t0}\nv_and_b32 {tz}, 3, {L}\nv_add_u32 {tz}, {tz}, {t0}\nv_lshlrev_b32 {tz}, 7, {tz}")
        A(f"v_lshrrev_b32 {t0}, 5, {L}\nv_lshl_add_u32 {tz}, {t0}, 4, {tz}\ns_lshl_b32 s3, s{S_RH}, 6\nv_add_u32 {tz}, s3, {tz}\nv_xor_b32 {tz2}, 64, {tz}")
    def poll_check(self):
        A = self.A
        lab, done = self.label("pc"), self.label("pcd")
        Gen.em(self, ("wait", ["f1"], ""))
        A(f"s_mov_b32 s{S_SPIN}, 0\ns_mov_b32 exec_hi, 0\ns_mov_b32 exec_lo, 0xffff")
        A(f"{lab}:")
        A(f"v_cmp_ne_u64 vcc, s[{S_NON}:{S_NON+1}], {vr(V_T+2,2)}")
        A(f"s_add_u32 s{S_SPIN}, s{S_SPIN}, 1\ns_nop 3\ns_cbranch_vccz {done}")
        A(f"s_cmp_ge_u32 s{S_SPIN}, {SPIN_MAX}\ns_cbranch_scc1 {done}")
        A(f"buffer_load_dwordx2 {vr(V_T+2,2)}, v{V_T+6}, {srd(SRD_WS)}, s{S_T0} offen sc1\ns_waitcnt vmcnt(0)\ns_branch {lab}")
        A(f"{done}:\ns_mov_b64 exec, -1")
    PL, ZF, SUM = 0, 176, 160
    def partial_loads(self):
        t1 = f"v{V_T+1}"; out = []
        for r in range(8):
            for j in range(2):
                out.append(("vm", ("pl", r), f"buffer_load_dwordx4 {vr(self.PL + 8*r + 4*j, 4)}, {t1}, {srd(SRD_WS)}, s{S_T1} offen offset:{1024*j} sc1"))
            if r < 7: out.append(f"s_add_u32 s{S_T1}, s{S_T1}, 4096")
        for sl in range(2):
            for j in range(2):
                out.append(("vm", "zl", f"buffer_load_dwordx4 {vr(self.ZF + 8*sl + 4*j, 4)}, v{V_T+4+sl}, {srd(SRD_WS)}, s{S_T2} offen offset:{32*j} sc1"))
        return out

    def e3(self):
        A = self.A; o = self.o; em = self.em
        L = f"v{V_LANE}"; t0, t1 = f"v{V_T}", f"v{V_T+1}"
        V_XW, V_XR = V_XA, V_XA + 1
        PL, ZF, S = self.PL, self.ZF, self.SUM
        KVF = S
        for r in range(8):
            em(("wait", [("pl", r)], ""))
            for j in range(2):
                A(f"{MF32} {vr(S,16)}, {vr(V_ID + 4*j, 4)}, {vr(PL + 8*r + 4*j, 4)}, {'0' if r + j == 0 else vr(S,16)}")
        SETS = [(96, 112), (32, 48)]
        def mm(u):
            N, D = SETS[u % 2]; F = self.FQ[u]
            den = [f"{MF32} {vr(D,16)}, {vr(ZF + 4*k, 4)}, {vr(F + 4*k, 4)}, {'0' if k == 0 else vr(D,16)}" for k in range(4)]
            num = [f"{MF32} {vr(N,16)}, {vr(KVF + 4*k, 4)}, {vr(F + 4*k, 4)}, {'0' if k == 0 else vr(N,16)}" for k in range(4)]
            return den, num
        d0, n0 = mm(0)
        em(("wait", ["zl"], ""))
        A(d0[0])
        A(f"s_lshl_b32 s{S_T1}, s{S_B}, 4\ns_lshl_b32 s3, s{S_R}, 1\ns_add_u32 s{S_T1}, s{S_T1}, s3\ns_add_u32 s{S_T1}, s{S_T1}, s{S_RH}")
        A(d0[1])
        A(f"s_lshl_b32 s{S_T1}, s{S_T1}, 8\ns_add_u32 s{S_T1}, s{S_T1}, s{S_HEAD}\ns_lshl_b32 s{S_T1}, s{S_T1}, 10\ns_add_u32 s{S_T1}, s{S_T1}, {WS_O}")
        A(f"v_bfe_u32 {t0}, {L}, 4, 1\nv_lshlrev_b32 {t0}, 15, {t0}\nv_lshrrev_b32 {t1}, 5, {L}\nv_lshl_add_u32 {t0}, {t1}, 8, {t0}\nv_and_b32 {t1}, 15, {L}\nv_lshl_add_u32 {t0}, {t1}, 4, {t0}")
        cv = [f"v_cvt_pk_bf16_f32 v{KVF+k}, v{S+2*k}, v{S+2*k+1}" for k in range(8)]
        self.mix(cv, d0[2:], [0, 5])
        for j in range(2): A(f"ds_write_b128 v{V_XW}, {vr(KVF + 4*j, 4)} offset:{X2_OFF + 1024*j}")
        for x in n0[:2]: A(x)
        A("s_waitcnt lgkmcnt(0)\ns_barrier")
        for j in range(2): A(f"ds_read_b128 {vr(KVF + 8 + 4*j, 4)}, v{V_XR} offset:{X2_OFF + 1024*j}")
        self.stamp("kvsum")
        def fin(u):
            N, D = SETS[u % 2]
            a = [f"v_add_f32 v{D}, v{D}, v{D+1}", f"v_add_f32 v{D+2}, v{D+2}, v{D+3}", f"v_add_f32 v{D+4}, v{D+4}, v{D+5}", f"v_add_f32 v{D+6}, v{D+6}, v{D+7}",
                 f"v_add_f32 v{D}, v{D}, v{D+2}", f"v_add_f32 v{D+4}, v{D+4}, v{D+6}", f"v_add_f32 v{D}, v{D}, v{D+4}", f"v_add_f32 v{D}, 0x358637bd, v{D}",
                 f"v_rcp_f32 v{D}, v{D}"]
            b = [f"v_mul_f32 v{N+k}, v{N+k}, v{D}" for k in range(16)]
            b += [f"v_cvt_pk_bf16_f32 v{N+k}, v{N+2*k}, v{N+2*k+1}" for k in range(8)]
            b += [("vm", "pub2", f"buffer_store_dwordx4 {vr(N+4*j,4)}, {t0}, {srd(SRD_WS)}, s{S_T1} offen offset:{512*j} sc1") for j in range(2)]
            if u < 3: b.append(f"s_add_u32 s{S_T1}, s{S_T1}, 0x10000")
            return a, b
        a0, b0 = fin(0)
        d1, n1 = mm(1)
        self.mix(a0, d1[:2], [0, 5])
        A("s_waitcnt lgkmcnt(0)")
        for x in n0[2:] + d1[2:]: A(x)
        pend_a = None
        for u in range(4):
            a, b = fin(u)
            ex = []
            if u + 1 < 4: ex += mm(u + 1)[1]
            main = b[:24]
            if u + 1 < 4:
                an, _ = fin(u + 1)
                main = main + an
                if u + 2 < 4: ex += mm(u + 2)[0]
            self.mix(main, ex, [2 + 4 * k for k in range(len(ex))])
            for x in b[24:]: em(x)
        self.stamp("e3")
        for x in self.wo_reads([3]): A(x)
        A("s_waitcnt lgkmcnt(0)\ns_barrier")
        for x in self.wo_q(7): em(x)
        r2 = self.wo_reads([4, 5, 6])
        h = o.get("r2split", 32)
        for x in r2[:h]: A(x)
        self.flag_store(self.f2w, ["pub2"])
        for x in r2[h:]: A(x)
        em(("wait", [("wo", 7)], "")); A("s_barrier")
        for x in self.wo_reads([7]): A(x)
        self.stamp("pub2")
        self.padspin("pub2")

    def gemm2(self):
        A = self.A; o = self.o; em = self.em
        L = f"v{V_LANE}"; t0, t1 = f"v{V_T}", f"v{V_T+1}"
        V_OD, V_OA, V_OUT, OF = V_WD, V_XA, V_WD + 1, 64
        NS = 10
        A(f"s_and_b32 s{S_T2}, s{S_XCD}, 3\ns_lshl_b32 s{S_T2}, s{S_T2}, 2\ns_and_b32 s3, s{S_J}, 3\ns_add_u32 s{S_T2}, s{S_T2}, s3")
        A(f"s_lshl_b32 s{S_T1}, s{S_B}, 4\ns_add_u32 s{S_T1}, s{S_T1}, s{S_T2}")
        A(f"s_lshl_b32 s{S_T0}, s{S_T1}, 8\ns_add_u32 s{S_T0}, s{S_T0}, {WS_F2}")
        A(f"s_lshl_b32 s{S_KX}, s{S_T1}, 18\ns_add_u32 s{S_KX}, s{S_KX}, {WS_O}")
        A(f"s_lshl_b32 s{S_MX}, s{S_W}, 12")
        A(f"v_lshlrev_b32 v{V_OA}, 4, {L}\nv_add_u32 v{V_OD}, s{S_MX}, v{V_OA}")
        A(f"v_add_u32 v{V_OA+1}, 0x10000, v{V_OA}\nv_add_u32 v{V_OA+2}, 0x20000, v{V_OA}")
        A(f"s_lshl_b32 s{S_KW}, s{S_T2}, 19\ns_lshl_b32 s3, s{S_B}, 11\ns_add_u32 s{S_KW}, s{S_KW}, s3")
        A(f"s_lshr_b32 s3, s{S_J}, 2\ns_lshl_b32 s3, s3, 8\ns_add_u32 s{S_KW}, s{S_KW}, s3\ns_lshl_b32 s3, s{S_W}, 6\ns_add_u32 s{S_KW}, s{S_KW}, s3")
        A(f"v_and_b32 {t0}, 15, {L}\nv_lshlrev_b32 {t0}, 12, {t0}\nv_bfe_u32 {t1}, {L}, 4, 1\nv_lshl_add_u32 {t0}, {t1}, 5, {t0}\nv_lshrrev_b32 {t1}, 5, {L}\nv_lshl_add_u32 v{V_OUT}, {t1}, 4, {t0}")
        A("s_waitcnt lgkmcnt(0)\ns_barrier")
        A("L_G2C:")
        self.poll(f"s{S_T0}", 32)
        self.stamp("sync2")
        LA = o.get("g2la", 4)
        RING = 8
        def dma(i):
            base = 16384 * (i % NS)
            out = [f"s_add_u32 m0, s{S_MX}, {base}" if base else f"s_mov_b32 m0, s{S_MX}"]
            out += [("vm", ("o", i), f"buffer_load_dwordx4 v{V_OD}, {srd(SRD_WS)}, s{S_KX} offen offset:{1024*k} sc1 lds") for k in range(4)]
            out.append(f"s_add_u32 s{S_KX}, s{S_KX}, 16384")
            return out
        def reads(gu):
            i, u = divmod(gu, 8)
            off = 16384 * (i % NS) + 2048 * u
            return [f"ds_read_b128 {vr(OF + 8*(gu%RING) + 4*s, 4)}, v{V_OA + off // 65536} offset:{off % 65536 + 1024*s}" for s in range(2)]
        def mf(i, u):
            out = []
            ac = 8 * ((i >> 1) & 1)
            nbs = (0, 1) if u % 2 == 0 else (1, 0)
            for k, nb in enumerate(nbs):
                for q, s in enumerate((0, 1) if k == 0 else (1, 0)):
                    d = vr(ac + 4 * nb, 4)
                    hd = 16 * (i & 1) + 2 * u + s
                    out.append(f"{MF16} {d}, {ar(8*hd + 4*nb, 4)}, {vr(OF + 8*((8*i+u)%RING) + 4*s, 4)}, {'0' if i % 2 == 0 and u == 0 and q == 0 else d}")
            return out
        def fin(m):
            b = 8 * (m & 1); p = 16 + 4 * (m & 1)
            return [f"v_cvt_pk_bf16_f32 v{p}, v{b}, v{b+1}", f"v_cvt_pk_bf16_f32 v{p+1}, v{b+2}, v{b+3}",
                    f"v_cvt_pk_bf16_f32 v{p+2}, v{b+4}, v{b+5}", f"v_cvt_pk_bf16_f32 v{p+3}, v{b+6}, v{b+7}",
                    f"v_permlane16_swap_b32 v{p}, v{p+2}", f"v_permlane16_swap_b32 v{p+1}, v{p+3}",
                    ("vm", "out", f"buffer_store_dwordx4 {vr(p,4)}, v{V_OUT}, {srd(SRD_OUT)}, s{S_KW} offen{o.get('outpol',' sc1')}"), f"s_add_u32 s{S_KW}, s{S_KW}, 0x10000"]
        npre = o.get("g2pre", 4)
        for i in range(npre):
            for x in dma(i): em(x)
        nxt = npre
        em(("wait", [("o", 0)], "")); A("s_barrier")
        self.stamp("o first")
        for gu in range(LA):
            for r in reads(gu): A(r)
        rate = o.get("g2rate", 1.0)
        acc = 0.0
        ub = 8 - LA
        for i in range(16):
            fill = [[] for _ in range(32)]
            pre = {}
            for u in range(0, 8, 2): pre[4 * u] = f"s_waitcnt lgkmcnt({2*len([x for x in range(8*i+u+2, 8*i+u+LA) if x < 128])})"
            pre[4 * ub] = "s_waitcnt lgkmcnt(0)" if (i + NS < 16) else pre.get(4 * ub)
            if pre[4 * ub] is None: del pre[4 * ub]
            for u in range(8):
                gu = 8 * i + u + LA
                if gu < 128:
                    for k, r in enumerate(reads(gu)): fill[4 * u + 1 + k].append(r)
            if i < 15:
                fill[4 * ub].insert(0, ("wait", [("o", i + 1)], "")); fill[4 * ub].insert(1, "s_barrier")
            ops = []
            if i >= 2 and i % 2 == 0: ops += fin(i // 2 - 1)
            acc += rate
            while acc >= 1 and nxt < 16 and (nxt - NS) < i:
                ops += dma(nxt); nxt += 1; acc -= 1
            free = [g for g in range(3, 32) if len(fill[g]) == 0 and g + 1 not in pre]
            free2 = [g for g in range(3, 32) if len(fill[g]) == 1 and g + 1 not in pre]
            slots = sorted((free + free2)[:len(ops)])
            assert len(slots) >= len(ops), (i, len(slots), len(ops))
            for g, x in zip(slots, ops): fill[g].append(x)
            g = 0
            for u in range(8):
                for x in mf(i, u):
                    if g in pre: A(pre[g])
                    A(x)
                    for y in fill[g]: em(y)
                    g += 1
            if i in (3, 9) or "stamps" in o: self.stamp(f"g2s{i}")
        assert nxt == 16
        for x in fin(7): em(x)
        self.stamp("g2end")
        self.padspin("end")

    def body(self):
        self.e12(); self.e3(); self.gemm2()

if __name__ == "__main__":
    gen2.main(Gen3)
```

```python
import sys, json
from asmlib import Asm
KNAME = "concat_heads__linear_kernel_hedgehog__linear_kernel_hedgehog__prompt_kernel"

WS_KV   = 0x000000
WS_Z    = 0x200000
WS_F1   = 0x220000
WS_F2   = 0x230000
WS_O    = 0x400000
WS_DIAG = 0x1000000
WS_DUMP = 0x2000000
WS_SIZE = 0x10000000

XS = [0, 32768, 65536]
WB = 98304
PHI = 159744
LDS_BYTES = 163840
TSTR = 136
X1_OFF, X1Z_OFF, X2_OFF = 0, 4096, 5120

S_PTR = 4
SRD_X, SRD_W, SRD_WO, SRD_WS, SRD_OUT, SRD_DBG, SRD_T = 12, 16, 20, 24, 28, 32, 36
S_P2 = 40
S_HEAD, S_SPIN = 46, 47
S_XCD, S_J, S_B, S_R, S_C, S_W, S_RH, S_HH = 48, 49, 50, 51, 52, 53, 54, 55
S_KX, S_KW, S_MX, S_MW = 56, 57, 58, 59
S_T0, S_T1, S_T2, S_T3 = 60, 61, 62, 63
S_L2E = 64
S_NON = 44
S_STAMP = 70

ACC = [0, 64, 128]
V_XD, V_WD, V_XA, V_WA, V_LANE = 192, 200, 203, 207, 209
V_CNT = 210
V_PHI, V_ONE, V_ID = 212, 220, 224
V_T = 232
V_PX, V_PW, V_PD = 250, 251, 252
SRD_PX, SRD_PW, S_PFX, S_PFW, S_PHASE = 4, 8, 40, 41, 42
S_KT = 66
V_ST = 240
A_W, A_X = 0, 96
A_T, A_KVX, A_ZX = 128, 160, 176
MF16, MF32 = "v_mfma_f32_16x16x32_bf16", "v_mfma_f32_32x32x16_bf16"
SPIN_MAX = 1 << 16

def srd(i): return f"s[{i}:{i+3}]"
def vr(i, n): return f"v[{i}:{i+n-1}]"
def ar(i, n): return f"a[{i}:{i+n-1}]"

class Gen:
    def __init__(self, opt):
        self.o = opt
        self.A = Asm()
        self.nstamp = 0
        self.stamp_names = []
        self.vm = []
        self.nlab = 0
        self.vm_done = []
    def stamp(self, name):
        if self.o.get("pad") and self.o["pad"][0] == "@" + name: self.padspin("@" + name)
        if name[0] == "u" and name[1].isdigit() and "stamps" not in self.o: return
        if not self.o.get("diag"): return
        if "stamps" in self.o:
            if name not in self.o["stamps"] and name not in ("start", "end"): return
        elif name in self.o.get("nostamp", ("kernarg", "step7", "r1")): return
        s = S_STAMP + 2 * self.nstamp
        assert s + 1 <= 99
        self.A(f"s_memrealtime s[{s}:{s+1}]" if self.o.get("rt") else f"s_memtime s[{s}:{s+1}]")
        self.nstamp += 1; self.stamp_names.append(name)
    def em(self, x):
        if isinstance(x, str): self.A(x)
        elif x[0] == "vm": self.A(x[2]); self.vm.append(x[1])
        elif x[0] == "wait": self.A(f"s_waitcnt vmcnt({0 if self.o.get('vm0') else self.vmn(x[1])}){x[2]}")
        elif x[0] == "call": x[1]()
        else: raise ValueError(x)
    def vmn(self, tags):
        for t in tags: assert t in self.vm or t in self.vm_done, t
        idx = [i for i, t in enumerate(self.vm) if t in tags]
        if not idx: return 63
        n = len(self.vm) - 1 - max(idx)
        assert n <= 63
        return n
    def padspin(self, where):
        p = self.o.get("pad")
        if not p or p[0] != where: return
        A = self.A; lab = self.label("pad")
        A(f"{lab}:\ns_memrealtime s[96:97]\ns_waitcnt lgkmcnt(0)\ns_sub_u32 s96, s96, s98\ns_cmp_lt_u32 s96, {int(p[1]*100)}\ns_cbranch_scc1 {lab}")
    def label(self, p):
        self.nlab += 1
        return f"L_{p}{self.nlab}"

    def prologue(self):
        A = self.A; o = self.o; em = self.em
        A(f"s_cmp_ge_u32 s2, 256\ns_cbranch_scc1 L_END")
        if o.get("diag"): A("s_memrealtime s[100:101]")
        if o.get("pad"): A("s_memrealtime s[98:99]")
        self.stamp("start")
        A(f"s_lshl_b32 s3, s2, 3\ns_and_b32 s3, s3, 32" if not o.get("badmap") else "s_lshr_b32 s3, s2, 2\ns_and_b32 s3, s3, 32")
        A(f"s_load_dwordx8 s[{S_PTR}:{S_PTR+7}], s[0:1], s3")
        A(f"s_load_dwordx4 s[{S_P2}:{S_P2+3}], s[0:1], 64")
        A(f"s_load_dwordx2 s[{S_P2+4}:{S_P2+5}], s[0:1], 80")
        A(f"s_getpc_b64 s[{SRD_T}:{SRD_T+1}]")
        A("L_PC:")
        if o.get("cpf2"): A(f"s_mov_b64 s[68:69], s[{SRD_T}:{SRD_T+1}]")
        A(f"v_lshrrev_b32 v1, 6, v0\nv_and_b32 v{V_LANE}, 63, v0")
        A(f"s_and_b32 s{S_XCD}, s2, 7\ns_lshr_b32 s{S_J}, s2, 3")
        if o.get("badmap"): A(f"s_lshr_b32 s{S_XCD}, s2, 5\ns_and_b32 s{S_J}, s2, 31")
        A(f"v_readfirstlane_b32 s{S_W}, v1")
        A(f"s_lshr_b32 s{S_B}, s{S_XCD}, 2\ns_and_b32 s{S_R}, s{S_J}, 7")
        cm = o.get("cmap", "blk")
        if cm == "blk":
            A(f"s_and_b32 s{S_C}, s{S_XCD}, 3\ns_lshl_b32 s{S_C}, s{S_C}, 2\ns_lshr_b32 s3, s{S_J}, 3\ns_add_u32 s{S_C}, s{S_C}, s3")
        elif cm == "il":
            A(f"s_and_b32 s{S_C}, s{S_XCD}, 3\ns_lshr_b32 s3, s{S_J}, 3\ns_lshl_b32 s3, s3, 2\ns_add_u32 s{S_C}, s{S_C}, s3")
        elif cm == "rev":
            A(f"s_and_b32 s{S_C}, s{S_XCD}, 3\ns_lshl_b32 s{S_C}, s{S_C}, 2\ns_lshr_b32 s3, s{S_J}, 3\ns_sub_u32 s{S_C}, s{S_C}, s3\ns_add_u32 s{S_C}, s{S_C}, 3")
        elif cm == "4x8":
            A(f"s_and_b32 s{S_R}, s{S_J}, 3\ns_and_b32 s3, s{S_XCD}, 1\ns_lshl_b32 s3, s3, 2\ns_add_u32 s{S_R}, s{S_R}, s3")
            A(f"s_lshr_b32 s{S_C}, s{S_J}, 2\ns_and_b32 s3, s{S_XCD}, 2\ns_lshl_b32 s3, s3, 2\ns_add_u32 s{S_C}, s{S_C}, s3")
        L = f"v{V_LANE}"; t0, t1, t2 = f"v{V_T}", f"v{V_T+1}", f"v{V_T+2}"
        A(f"s_lshr_b32 s{S_RH}, s{S_W}, 1\ns_and_b32 s{S_HH}, s{S_W}, 1")
        A(f"v_bfe_u32 {t0}, {L}, 2, 3\ns_lshl_b32 s3, s{S_W}, 3\nv_add_u32 {t0}, s3, {t0}")
        A(f"v_mul_u32_u24 {t0}, 6144, {t0}")
        A(f"v_lshrrev_b32 {t1}, 5, {L}\nv_lshl_add_u32 {t0}, {t1}, 6, {t0}")
        A(f"s_lshl_b32 s3, s{S_HH}, 1\nv_and_b32 {t1}, 3, {L}\nv_xor_b32 {t1}, s3, {t1}\nv_lshl_add_u32 v{V_WD}, {t1}, 4, {t0}")
        A(f"v_add_u32 v{V_WD+1}, 1024, v{V_WD}\nv_add_u32 v{V_WD+2}, 2048, v{V_WD}")
        A(f"v_lshrrev_b32 {t0}, 3, {L}\ns_lshl_b32 s3, s{S_W}, 6\nv_add_u32 {t0}, s3, {t0}\nv_lshlrev_b32 {t0}, 11, {t0}")
        A(f"v_lshrrev_b32 {t1}, 4, {L}\nv_and_b32 {t2}, 7, {L}\nv_xor_b32 {t1}, {t1}, {t2}")
        A(f"v_lshl_add_u32 v{V_XD}, {t1}, 4, {t0}")
        A(f"v_xor_b32 v{V_XD+1}, 64, v{V_XD}\nv_add_u32 v{V_XD+1}, {16384-1024}, v{V_XD+1}")
        for j in range(2, 8):
            d = 16384 * 2 - (2048 if j % 4 >= 2 else -2048)
            A(f"v_add_u32 v{V_XD+j}, {d}, v{V_XD+j-2}")
        A(f"s_lshl_b32 s{S_MX}, s{S_W}, 13")
        A(f"s_mul_i32 s{S_MW}, s{S_W}, 3072\ns_add_u32 s{S_MW}, s{S_MW}, {WB}")
        kp = o.get("kperm")
        if kp:
            n = kp["n"]
            win = kp.get("win", [n] * (16 // n)); assert sum(win) == 16
            tabs = []
            for a in range(n):
                order = []; st = 0
                for ln in win:
                    order += [st + (u + a * ln // n if kp.get("spread") else u + a) % ln + st * 0 if False else st + ((u + (a * ln // n if kp.get("spread") else a)) % ln) for u in range(ln)]
                    st += ln
                assert sorted(order) == list(range(16))
                tabs.append(sum(k << (4 * i) for i, k in enumerate(order)))
            A(f"s_add_u32 s{S_T2}, s{S_R}, s{S_C}\ns_and_b32 s{S_T2}, s{S_T2}, {n-1}")
            A(f"s_mov_b32 s{S_KT}, {tabs[0] & 0xffffffff}\ns_mov_b32 s{S_KT+1}, {tabs[0] >> 32}")
            for a in range(1, n):
                A(f"s_cmp_eq_u32 s{S_T2}, {a}\ns_cselect_b32 s{S_KT}, {tabs[a] & 0xffffffff}, s{S_KT}\ns_cselect_b32 s{S_KT+1}, {tabs[a] >> 32}, s{S_KT+1}")
            if kp.get("d"):
                A(kp["d"].format(d=f"s{S_T2}", xcd=f"s{S_XCD}", b=f"s{S_B}"))
                A(f"s_lshl_b32 s{S_T2}, s{S_T2}, 2\ns_lshr_b64 s[{S_T0}:{S_T1}], s[{S_KT}:{S_KT+1}], s{S_T2}")
                A(f"s_sub_u32 s{S_T2}, 63, s{S_T2}\ns_lshl_b64 s[{S_KT}:{S_KT+1}], s[{S_KT}:{S_KT+1}], s{S_T2}\ns_lshl_b64 s[{S_KT}:{S_KT+1}], s[{S_KT}:{S_KT+1}], 1")
                A(f"s_or_b64 s[{S_KT}:{S_KT+1}], s[{S_KT}:{S_KT+1}], s[{S_T0}:{S_T1}]")
            A(self.kx(0)); A(self.kw(0))
        else:
            A(f"s_mov_b32 s{S_KX}, 0\ns_mov_b32 s{S_KW}, 0")
        A(f"s_lshl_b32 s{S_T0}, s{S_R}, 19\ns_lshl_b32 s{S_T1}, s{S_C}, 7")
        A(f"s_mov_b32 s{SRD_X+2}, 0x80000\ns_mov_b32 s{SRD_X+3}, 0x20000")
        A(f"s_sub_u32 s{SRD_W+2}, 0x600000, s{S_T1}\ns_mov_b32 s{SRD_W+3}, 0x20000")
        A("s_waitcnt lgkmcnt(0)")
        A(f"s_add_u32 s{SRD_W}, s{S_PTR+2}, s{S_T1}\ns_addc_u32 s{SRD_W+1}, s{S_PTR+3}, 0")
        A(f"s_add_u32 s{SRD_X}, s{S_PTR}, s{S_T0}\ns_addc_u32 s{SRD_X+1}, s{S_PTR+1}, 0")
        self.stamp("kernarg")
        for g in [("w", 0), ("x", 0), ("w", 1)]:
            for ins in self.dma_group(*g): em(ins)
        if o.get("codepf", 1):
            A(f"s_mov_b32 s{SRD_T+2}, {'L_E1-L_PC' if o.get('cpf2') else 'L_END-L_PC'}\ns_mov_b32 s{SRD_T+3}, 0x20000")
            A(f"v_lshlrev_b32 {t0}, 7, v0")
            n = o.get("codepf_n", 1 if o.get("cpf2") else 2)
            for i in range(n):
                em(("vm", "pf", f"buffer_load_dword v{V_T+4+i}, {t0}, {srd(SRD_T)}, 0 offen"))
                if i + 1 < n: A(f"v_add_u32 {t0}, 0x8000, {t0}")
        for base, p, n in ((SRD_WS, S_P2 + 4, WS_SIZE), (SRD_OUT, S_P2, 0x800000), (SRD_DBG, S_P2 + 2, 256), (SRD_WO, S_PTR + 6, 0x200000)):
            A(f"s_mov_b32 s{base}, s{p}\ns_mov_b32 s{base+1}, s{p+1}\ns_mov_b32 s{base+2}, {n}\ns_mov_b32 s{base+3}, 0x20000")
        A(f"s_lshl_b32 s{S_HEAD}, s{S_C}, 1\ns_add_u32 s{S_HEAD}, s{S_HEAD}, s{S_HH}")
        lab = self.label("non")
        A(f"s_or_b32 s3, s2, s{S_W}\ns_cmp_lg_u32 s3, 0\ns_cbranch_scc1 {lab}")
        A(f"s_memrealtime s[{S_T2}:{S_T3}]\ns_waitcnt lgkmcnt(0)\ns_lshl_b64 s[{S_T2}:{S_T3}], s[{S_T2}:{S_T3}], 2\ns_or_b32 s{S_T2}, s{S_T2}, 1")
        A(f"v_mov_b32 v{V_CNT}, s{S_T2}\nv_mov_b32 v{V_CNT+1}, s{S_T3}\ns_mov_b64 exec, 1")
        A(f"buffer_store_dwordx2 {vr(V_CNT,2)}, off, {srd(SRD_DBG)}, 0 sc1")
        A(f"s_mov_b64 exec, -1\n{lab}:")
        A(f"s_mov_b32 s{SRD_T}, s{S_PTR+4}\ns_mov_b32 s{SRD_T+1}, s{S_PTR+5}\ns_mov_b32 s{SRD_T+2}, 0x10000\ns_mov_b32 s{SRD_T+3}, 0x20000")
        A(f"s_lshl_b32 s{S_T0}, s{S_C}, 12\nv_lshlrev_b32 {t0}, 4, v0")
        A(f"s_lshl_b32 s3, s{S_W}, 10\ns_add_u32 m0, s3, {PHI}")
        em(("vm", "phi", f"buffer_load_dwordx4 {t0}, {srd(SRD_T)}, s{S_T0} offen lds"))
        if o.get("pft"):
            A(f"s_lshr_b32 s{S_PHASE}, s{S_J}, 3\ns_lshl_b32 s3, s{S_PHASE}, 2\ns_add_u32 s3, s3, s{S_W}\ns_lshl_b32 s3, s3, 15")
            A(f"s_add_u32 s{S_PHASE}, s{S_PHASE}, s{S_R}\ns_and_b32 s{S_PHASE}, s{S_PHASE}, 3")
            A(f"v_lshrrev_b32 {t0}, 2, {L}\nv_lshlrev_b32 {t0}, 11, {t0}\nv_and_b32 {t1}, 3, {L}\nv_lshl_add_u32 {t0}, {t1}, 7, {t0}\nv_add_u32 v{V_PX}, s3, {t0}")
            A(f"s_lshl_b32 s3, s{S_R}, 2\ns_add_u32 s3, s3, s{S_W}\ns_mul_i32 s3, s3, 12288")
            A(f"v_lshlrev_b32 {t1}, 6, {t1}\nv_bfe_u32 {t0}, {L}, 2, 1\nv_add_u32 {t0}, {t0}, {t1}\nv_mul_u32_u24 {t0}, 6144, {t0}")
            A(f"v_lshrrev_b32 {t1}, 3, {L}\nv_lshl_add_u32 {t0}, {t1}, 11, {t0}\nv_add_u32 {t0}, s3, {t0}")
            A(f"v_cmp_gt_u32 vcc, 24, {L}\nv_bfrev_b32 {t1}, 1\nv_cndmask_b32 v{V_PW}, {t1}, {t0}, vcc")
            for d, q in ((SRD_PX, SRD_X), (SRD_PW, SRD_W)):
                A(f"s_mov_b64 s[{d}:{d+1}], s[{q}:{q+1}]\ns_mov_b32 s{d+2}, s{q+2}\ns_mov_b32 s{d+3}, 0x20000")
        pre = o.get("pre", [("x", 1), ("w", 2), ("w", 3)])
        for g in pre:
            for ins in self.dma_group(*g): em(ins)
        for st, t0_, cond in o.get("pft", []):
            if st < 0:
                for x in self.pf_ops(t0_, cond): em(x)
        self.pend0 = []
        for g in [("x", 1), ("w", 2), ("w", 3), ("x", 2), ("w", 4)]:
            if g not in pre: self.pend0 += self.dma_group(*g)
        A(f"v_and_b32 {t0}, 15, {L}\nv_lshlrev_b32 {t0}, 7, {t0}\ns_lshl_b32 s3, s{S_RH}, 14\nv_add_u32 {t0}, s3, {t0}")
        A(f"v_lshrrev_b32 {t1}, 4, {L}\nv_bfe_u32 {t2}, {L}, 1, 3\nv_xor_b32 {t1}, {t1}, {t2}")
        A(f"v_lshl_add_u32 v{V_XA}, {t1}, 4, {t0}")
        A(f"v_xor_b32 v{V_XA+1}, 64, v{V_XA}")
        for t in range(2): A(f"v_add_u32 v{V_XA+2+t}, 32768, v{V_XA+t}")
        A(f"v_lshrrev_b32 {t0}, 4, {L}\nv_mul_u32_u24 {t0}, 3072, {t0}")
        A(f"v_bfe_u32 {t1}, {L}, 2, 2\nv_lshl_add_u32 {t0}, {t1}, 6, {t0}")
        A(f"v_bfe_u32 {t1}, {L}, 4, 1\nv_lshl_add_u32 {t0}, {t1}, 5, {t0}")
        A(f"v_and_b32 {t1}, 3, {L}\nv_lshl_add_u32 {t0}, {t1}, 3, {t0}")
        A(f"s_lshl_b32 s3, s{S_HH}, 9\ns_add_u32 s3, s3, {WB}\nv_add_u32 v{V_WA}, s3, {t0}")
        A(f"v_xor_b32 v{V_WA+1}, 32, v{V_WA}")
        for i in range(4): A(f"v_mov_b32 v{V_ONE+i}, 0x3f803f80")
        A(f"v_and_b32 {t0}, 31, {L}\nv_lshrrev_b32 {t1}, 5, {L}\nv_lshlrev_b32 {t1}, 2, {t1}\nv_sub_u32 {t0}, {t0}, {t1}")
        A(f"v_mov_b32 {t1}, 0x3f80\nv_mov_b32 {t2}, 0x3f800000")
        for j in range(2):
            for u in range(4):
                f0 = 16 * j + 8 * (u // 2) + 2 * (u % 2)
                d = V_ID + 4 * j + u
                A(f"v_cmp_eq_u32 vcc, {f0}, {t0}\nv_cndmask_b32 v{d}, 0, {t1}, vcc")
                A(f"v_cmp_eq_u32 vcc, {f0+1}, {t0}\nv_cndmask_b32 v{d}, v{d}, {t2}, vcc")
        A(f"s_mov_b32 s{S_L2E}, 0x3fb8aa3b\ns_mov_b32 s{S_L2E+1}, 0x3fb8aa3b")

    def f1base(self, s):
        self.A(f"s_lshl_b32 s{s}, s{S_B}, 5\ns_add_u32 s{s}, s{s}, s{S_HEAD}\ns_lshl_b32 s{s}, s{s}, 7\ns_add_u32 s{s}, s{s}, {WS_F1}")
    def f1w(self, s):
        self.f1base(s); self.A(f"s_lshl_b32 s3, s{S_RH}, 3\ns_add_u32 s3, s3, s{S_R}\ns_lshl_b32 s3, s3, 3\ns_add_u32 s{s}, s{s}, s3")
    def f2w(self, s):
        self.A(f"s_lshl_b32 s{s}, s{S_B}, 4\ns_lshl_b32 s3, s{S_R}, 1\ns_add_u32 s{s}, s{s}, s3\ns_add_u32 s{s}, s{s}, s{S_RH}")
        self.A(f"s_lshl_b32 s{s}, s{s}, 5\ns_add_u32 s{s}, s{s}, s{S_HEAD}\ns_lshl_b32 s{s}, s{s}, 3\ns_add_u32 s{s}, s{s}, {WS_F2}")

    def kx(self, i):
        return f"s_bfe_u32 s{S_KX}, s{S_KT + i//8}, {(4 << 16) | (4*(i%8))}\ns_lshl_b32 s{S_KX}, s{S_KX}, 7"
    def kw(self, h):
        if h % 2: return f"s_add_u32 s{S_KW}, s{S_KW}, {32*6144}"
        i = h // 2
        return f"s_bfe_u32 s{S_KW}, s{S_KT + i//8}, {(4 << 16) | (4*(i%8))}\ns_mul_i32 s{S_KW}, s{S_KW}, {64*6144}"
    def dma_group(self, kind, i):
        out = []
        if kind == "x":
            base = XS[i % 3]
            for j in range(8):
                if j % 4 == 0: out.append(f"s_add_u32 m0, s{S_MX}, {base + 4096*(j//4)}" if base + j else f"s_mov_b32 m0, s{S_MX}")
                out.append(("vm", ("x", i), f"buffer_load_dwordx4 v{V_XD+j}, {srd(SRD_X)}, s{S_KX} offen offset:{1024*(j%4)}{self.o.get('xpol','')} lds"))
            if not self.o.get("kperm"): out.append(f"s_add_u32 s{S_KX}, s{S_KX}, 128")
            elif i < 15: out += self.kx(i + 1).split("\n")
        else:
            base = 12288 * (i % 5)
            out.append(f"s_add_u32 m0, s{S_MW}, {base}" if base else f"s_mov_b32 m0, s{S_MW}")
            for p in range(3):
                out.append(("vm", ("w", i), f"buffer_load_dwordx4 v{V_WD+p}, {srd(SRD_W)}, s{S_KW} offen offset:{1024*p}{self.o.get('wpol','')} lds"))
            if not self.o.get("kperm"): out.append(f"s_add_u32 s{S_KW}, s{S_KW}, {32*6144}")
            elif i < 31: out += self.kw(i + 1).split("\n")
        return out

    def pf_ops(self, t, cond):
        o = self.o
        out = []
        if cond:
            out += [f"s_and_b32 s3, s{S_PHASE}, {cond[0]}\ns_cmp_eq_u32 s3, {cond[1]}\ns_cselect_b32 s{SRD_PX+2}, s{SRD_X+2}, 0\ns_cselect_b32 s{SRD_PW+2}, s{SRD_W+2}, 0"]
        out += [f"s_mov_b32 s{S_PFX}, {128*t}", f"s_mov_b32 s{S_PFW}, {64*6144*t}",
                ("vm", "pfw", f"buffer_load_dword v{V_PD+1}, v{V_PW}, {srd(SRD_PW)}, s{S_PFW} offen{o.get('pfpolw','')}"),
                ("vm", "pfx", f"buffer_load_dword v{V_PD}, v{V_PX}, {srd(SRD_PX)}, s{S_PFX} offen{o.get('pfpolx','')}")]
        return out
    def pf_at(self, i):
        out = []
        for st, t0_, cond in self.o.get("pft", []):
            if st == i: out += self.pf_ops(t0_, cond)
        return out
    def x_reads(self, gm):
        i, m = divmod(gm, 8)
        slot = i % 3
        off = (32768 if slot >= 1 else 0) + 2048 * m
        return [f"ds_read_b128 {ar(A_X + 8*(gm%4) + 4*s, 4)}, v{V_XA + s + (2 if slot == 2 else 0)} offset:{off}" for s in range(2)]
    def w_reads(self, i):
        out = []
        for n in range(6):
            p, nb = divmod(n, 2)
            for s in range(2):
                pos = (2 * i + s) % 5
                for rd in range(2):
                    out.append(f"ds_read_b64_tr_b16 {ar(A_W + 48*(i&1) + 4*(2*n+s) + 2*rd, 2)}, v{V_WA+nb} offset:{pos*12288 + 1024*p + 256*rd}")
        return out
    def order1(self, m):
        ns = list(range(6)) if m % 2 == 0 else list(range(5, -1, -1))
        return [(n, s) for k, n in enumerate(ns) for s in ((0, 1) if k % 2 == 0 else (1, 0))]
    def mfmas1(self, i, m):
        out = []; seen = set()
        for n, s in self.order1(m):
            p, nb = divmod(n, 2)
            w = ar(A_W + 48 * (i & 1) + 4 * (2 * n + s), 4)
            x = ar(A_X + 8 * ((8 * i + m) % 4) + 4 * s, 4)
            d = vr(ACC[p] + 8 * m + 4 * nb, 4)
            c = "0" if (i == 0 and n not in seen) else d
            seen.add(n)
            a, b = (w, x) if p < 2 else (x, w)
            out.append(f"{MF16} {d}, {a}, {b}, {c}")
        return out
    def pack_ops(self, m):
        out = []; done = []
        for n, s in self.order1(m):
            if n in done: continue
            done.append(n)
            p, nb = divmod(n, 2)
            src = ACC[p] + 8 * m + 4 * nb
            if p < 2: dst = ACC[p] + 8 * (m // 2) + 4 * nb + 2 * (m % 2)
            else: dst = ACC[2] + 4 * m + 2 * nb
            out.append((n, [f"v_cvt_pk_bf16_f32 v{dst}, v{src}, v{src+1}", f"v_cvt_pk_bf16_f32 v{dst+1}, v{src+2}, v{src+3}"]))
        res = []
        parts = []
        for n, _ in out:
            if n // 2 not in parts: parts.append(n // 2)
        d = dict(out)
        for p in parts:
            res += d[2 * p] + d[2 * p + 1]
            if p == 2:
                b = ACC[2] + 4 * m
                res += [f"v_permlane16_swap_b32 v{b}, v{b+2}", f"v_permlane16_swap_b32 v{b+1}, v{b+3}"]
            elif m % 2 == 1:
                b = ACC[p] + 8 * (m // 2)
                for nb in range(2):
                    res += [f"v_permlane16_swap_b32 v{b+4*nb}, v{b+4*nb+2}", f"v_permlane16_swap_b32 v{b+4*nb+1}, v{b+4*nb+3}"]
        cv = [x for x in res if "cvt" in x]; sw = [x for x in res if "swap" in x]
        return cv + sw

    def phase1(self):
        A = self.A; o = self.o; em = self.em
        em(("wait", [("w", 0), ("x", 0), ("w", 1)], "")); A("s_barrier")
        self.stamp("first data")
        self.padspin("first")
        for r in self.x_reads(0) + self.w_reads(0)[:16] + self.x_reads(1) + self.w_reads(0)[16:] + self.x_reads(2): A(r)
        pend = list(self.pend0)
        for i in range(16):
            fill = [[] for _ in range(96)]
            pre = {}
            for m in range(5):
                for k, r in enumerate(self.x_reads(8 * i + m + 3)):
                    fill[12 * m + (9 if m == 0 else 2) + 2 * k].append(r)
            pre[0] = "s_waitcnt lgkmcnt(12)"
            pre[8] = "s_waitcnt lgkmcnt(0)"
            pre[36] = "s_waitcnt lgkmcnt(4)"
            pre[48] = "s_waitcnt lgkmcnt(4)"
            pre[60] = "s_waitcnt lgkmcnt(0)"
            bar2 = o.get("bar2")
            if bar2:
                fill[8].append("s_barrier")
                if 2 * i + 5 < 32: pend += self.dma_group("w", 2 * i + 5)
                if 2 * i + 6 < 32: pend += self.dma_group("w", 2 * i + 6)
                pend += self.pf_at(i)
            slots = [g for g in range(o.get("dma0", 10 if bar2 else 1), o.get("dma1", 59)) if not fill[g] and g not in pre and g + 1 not in pre]
            if pend:
                step = len(slots) / len(pend)
                assert step >= 1
                for k, x in enumerate(pend): fill[slots[int(k * step)]].append(x)
                pend = []
            need = [("x", i + 1), ("w", 2 * i + 2), ("w", 2 * i + 3)] if i < 15 else ["cnt"]
            if i == 0: need += ["phi"]
            need += self.extra_need(i)
            for k, r in enumerate(self.extra_tail(i)): fill[61 + k].append(r)
            fill[60].append(("wait", need, "")); fill[60].append("s_barrier")
            if i < 15:
                rd = self.x_reads(8 * i + 8) + self.w_reads(i + 1)[:16] + self.x_reads(8 * i + 9) + self.w_reads(i + 1)[16:] + self.x_reads(8 * i + 10)
                for k, r in enumerate(rd): fill[61 + k].append(r)
                if bar2:
                    if i + 3 < 16:
                        for k, x in enumerate(self.dma_group("x", i + 3)): fill[62 + (5 * k) // 2].append(x)
                else:
                    if 2 * i + 5 < 32:
                        ops = self.dma_group("w", 2 * i + 5)
                        ops += self.pf_at(i) + self.extra_after_w(i)
                        for k, x in enumerate(ops): fill[62 + 3 * k].append(x)
                    if i + 3 < 16: pend += self.dma_group("x", i + 3)
                    if 2 * i + 6 < 32: pend += self.dma_group("w", 2 * i + 6)
            if i == 0:
                fill[93].append(("call", self.phi_reads))
            pend += self.extra_pend(i)
            if i == 11 and not getattr(self, "own_cnt", False):
                pend += [("vm", "cnt", f"buffer_load_dwordx2 {vr(V_CNT,2)}, off, {srd(SRD_DBG)}, 0 sc1")]
            if i == 15 and not o.get("nopack"):
                qc = []; qs = []; placed = {}
                cost = lambda x: 8 if isinstance(x, str) and "permlane" in x else 4
                import re as _re
                regs = lambda x: [int(t) for t in _re.findall(r"v(\d+)", x.split(None, 1)[1])]
                for g in range(12, 96):
                    if g % 12 == 1:
                        ops = self.pack_ops(g // 12 - 1)
                        qc += [x for x in ops if "cvt" in x]; qs += [x for x in ops if "cvt" not in x]
                    room = 8 - sum(cost(x) for x in fill[g]) - (8 if g + 1 in pre else 0)
                    pend_dst = {regs(x)[0] for x in qc}
                    qs.sort(key=lambda x: 0 if 64 <= regs(x)[0] < 72 else 1)
                    if room >= 8 and qs and (not qc or 64 <= regs(qs[0])[0] < 72) and not (set(regs(qs[0])) & pend_dst) and all(placed.get(r, -9) <= g - 2 for r in regs(qs[0])):
                        x = qs.pop(0); fill[g].append(x)
                        for r in regs(x): placed[r] = g
                        continue
                    while qc and room >= 4:
                        x = qc.pop(0); room -= 4; fill[g].append(x); placed[regs(x)[0]] = g
                self.pack_left = qc + qs
            g = 0
            for m in range(8):
                for mf in self.mfmas1(i, m):
                    if g in pre: A(pre[g])
                    A(mf)
                    for x in fill[g]: em(x)
                    g += 1
            if i in (0, 7, 14) or "stamps" in o: self.stamp(f"step{i}")
        left = list(getattr(self, "pack_left", []))
        for m in (range(7, 8) if not o.get("nopack") else range(8)): left += self.pack_ops(m)
        self.finish_pack([x for x in left if "cvt" in x] + [x for x in left if "cvt" not in x])
        A("L_E1:")
        self.stamp("p1end")
        self.padspin("p1")

    def get_nonce(self):
        A = self.A
        lab, done = self.label("nl"), self.label("nd")
        A(f"s_mov_b32 s{S_SPIN}, 0\n{lab}:")
        A(f"v_readfirstlane_b32 s{S_NON}, v{V_CNT}\nv_readfirstlane_b32 s{S_NON+1}, v{V_CNT+1}")
        A(f"s_add_u32 s{S_SPIN}, s{S_SPIN}, 1\ns_nop 2\ns_cmp_lg_u32 s{S_NON}, 0\ns_cbranch_scc1 {done}")
        A(f"s_cmp_ge_u32 s{S_SPIN}, {SPIN_MAX}\ns_cbranch_scc1 {done}")
        A(f"buffer_load_dwordx2 {vr(V_CNT,2)}, off, {srd(SRD_DBG)}, 0 sc1\ns_waitcnt vmcnt(0)\ns_branch {lab}")
        A(f"{done}:")
    def phi_reads(self):
        A = self.A; L = f"v{V_LANE}"; t0, t1 = f"v{V_T+2}", f"v{V_T+3}"
        A(f"v_lshrrev_b32 {t0}, 5, {L}\nv_lshlrev_b32 {t0}, 9, {t0}")
        A(f"v_bfe_u32 {t1}, {L}, 2, 2\nv_lshl_add_u32 {t0}, {t1}, 6, {t0}")
        A(f"v_bfe_u32 {t1}, {L}, 4, 1\nv_lshl_add_u32 {t0}, {t1}, 5, {t0}")
        A(f"v_and_b32 {t1}, 3, {L}\nv_lshl_add_u32 {t0}, {t1}, 3, {t0}")
        A(f"s_lshl_b32 s3, s{S_HH}, 11\ns_add_u32 s3, s3, {PHI}\nv_add_u32 {t0}, s3, {t0}")
        for j in range(2):
            for rd in range(2):
                A(f"ds_read_b64_tr_b16 {vr(V_PHI + 4*j + 2*rd, 2)}, {t0} offset:{1024*j + 256*rd}")

    def unit_S0(self, frag, P):
        return [f"{MF32} {vr(P,16)}, {vr(V_PHI,4)}, {vr(frag,4)}, 0", f"{MF32} {vr(P,16)}, {vr(V_PHI+4,4)}, {vr(frag+4,4)}, {vr(P,16)}"]
    def unit_S1(self, P):
        a, b = V_ST, V_ST + 1
        out = [f"v_max3_f32 v{a}, v{P}, v{P+1}, v{P+2}", f"v_max3_f32 v{b}, -v{P}, -v{P+1}, -v{P+2}"]
        for k in range(3, 15, 2):
            out += [f"v_max3_f32 v{a}, v{a}, v{P+k}, v{P+k+1}", f"v_max3_f32 v{b}, v{b}, -v{P+k}, -v{P+k+1}"]
        out += [f"v_max_f32 v{a}, v{a}, v{P+15}", f"v_max_f32 v{b}, v{b}, -v{P+15}"]
        out += [f"v_permlane32_swap_b32 v{a}, v{b}", f"v_max_f32 v{a}, v{a}, v{b}", f"v_mul_f32 v{a}, 0xbfb8aa3b, v{a}", f"v_mov_b32 v{b}, v{a}",
                f"v_permlane32_swap_b32 v{a}, v{b}"]
        return out
    def unit_S2(self, P, E):
        st = vr(V_ST, 2); c = f"s[{S_L2E}:{S_L2E+1}]"
        out = [f"v_pk_fma_f32 {vr(E+2*k,2)}, {vr(P+2*k,2)}, {c}, {st} op_sel_hi:[1,1,0]" for k in range(8)]
        out += [f"v_pk_fma_f32 {vr(P+2*k,2)}, {vr(P+2*k,2)}, {c}, {st} op_sel:[0,0,1] op_sel_hi:[1,1,1] neg_lo:[1,0,0] neg_hi:[1,0,0]" for k in range(8)]
        return out
    def unit_S3(self, P, E):
        return [f"v_exp_f32 v{E+k}, v{E+k}" for k in range(16)] + [f"v_exp_f32 v{P+k}, v{P+k}" for k in range(16)]
    def unit_S4(self, P, E):
        ta, tb, tc, td = V_ST + 2, V_ST + 4, V_ST + 6, V_ST + 8
        out = [f"v_pk_add_f32 {vr(ta,2)}, {vr(E,2)}, {vr(E+2,2)}", f"v_pk_add_f32 {vr(tc,2)}, {vr(E+4,2)}, {vr(E+6,2)}"]
        for k in (8, 12): out += [f"v_pk_add_f32 {vr(ta,2)}, {vr(ta,2)}, {vr(E+k,2)}", f"v_pk_add_f32 {vr(tc,2)}, {vr(tc,2)}, {vr(E+k+2,2)}"]
        out += [f"v_pk_add_f32 {vr(ta,2)}, {vr(ta,2)}, {vr(tc,2)}"]
        out += [f"v_pk_add_f32 {vr(tb,2)}, {vr(P,2)}, {vr(P+2,2)}", f"v_pk_add_f32 {vr(td,2)}, {vr(P+4,2)}, {vr(P+6,2)}"]
        for k in (8, 12): out += [f"v_pk_add_f32 {vr(tb,2)}, {vr(tb,2)}, {vr(P+k,2)}", f"v_pk_add_f32 {vr(td,2)}, {vr(td,2)}, {vr(P+k+2,2)}"]
        out += [f"v_pk_add_f32 {vr(tb,2)}, {vr(tb,2)}, {vr(td,2)}"]
        a, b = V_ST, V_ST + 1
        out += [f"v_add_f32 v{a}, v{ta}, v{ta+1}", f"v_add_f32 v{b}, v{tb}, v{tb+1}"]
        out += [f"v_permlane32_swap_b32 v{a}, v{b}", f"v_add_f32 v{a}, v{a}, v{b}", f"v_rcp_f32 v{a}, v{a}", f"v_mov_b32 v{b}, v{a}",
                f"v_permlane32_swap_b32 v{a}, v{b}"]
        return out
    def unit_S5a(self, P, E):
        st = vr(V_ST, 2)
        out = [f"v_pk_mul_f32 {vr(E+2*k,2)}, {vr(E+2*k,2)}, {st} op_sel_hi:[1,0]" for k in range(8)]
        out += [f"v_pk_mul_f32 {vr(P+2*k,2)}, {vr(P+2*k,2)}, {st} op_sel:[0,1] op_sel_hi:[1,1]" for k in range(8)]
        return out
    def unit_S5b(self, P, E, F0, F1):
        return [f"v_cvt_pk_bf16_f32 v{F0+k}, v{E+2*k}, v{E+2*k+1}" for k in range(8)] + [f"v_cvt_pk_bf16_f32 v{F1+k}, v{P+2*k}, v{P+2*k+1}" for k in range(8)]

    def interleave(self, main, extra, start=0, every=1):
        k = 0
        for idx, x in enumerate(main):
            self.em(x)
            if idx >= start and (idx - start) % every == 0 and k < len(extra):
                e = extra[k]; k += 1
                for y in (e if isinstance(e, list) else [e]): self.em(y)
        for e in extra[k:]:
            for y in (e if isinstance(e, list) else [e]): self.em(y)

    def wo_setup(self):
        A = self.A; L = f"v{V_LANE}"; t0, t1 = f"v{V_T}", f"v{V_T+1}"
        V = V_XD
        A(f"s_lshr_b32 s{S_T0}, s{S_J}, 2\ns_lshl_b32 s{S_T0}, s{S_T0}, 8\ns_lshl_b32 s3, s{S_W}, 6\ns_add_u32 s{S_T0}, s{S_T0}, s3")
        A(f"v_lshrrev_b32 {t0}, 2, {L}\nv_lshlrev_b32 {t0}, 11, {t0}\nv_add_u32 {t0}, s{S_T0}, {t0}")
        A(f"v_bfe_u32 {t1}, {L}, 4, 1\nv_lshlrev_b32 {t1}, 1, {t1}\nv_xor_b32 {t1}, {t1}, {L}\nv_and_b32 {t1}, 3, {t1}")
        A(f"v_lshl_add_u32 v{V}, {t1}, 4, {t0}")
        for i in range(1, 4): A(f"v_add_u32 v{V+i}, {32768-1024}, v{V+i-1}")
        A(f"s_add_u32 s{S_MX}, s{S_W}, 1\ns_lshl_b32 s{S_MX}, s{S_MX}, 15\ns_mov_b32 s{S_KX}, 0")
        A(f"v_lshrrev_b32 {t0}, 5, {L}\nv_lshlrev_b32 {t0}, 10, {t0}\nv_add_u32 {t0}, s{S_MX}, {t0}")
        A(f"v_bfe_u32 {t1}, {L}, 4, 1\nv_mul_u32_u24 {t1}, {256+32}, {t1}\nv_add_u32 {t0}, {t0}, {t1}")
        A(f"v_bfe_u32 {t1}, {L}, 2, 2\nv_lshl_add_u32 {t0}, {t1}, 6, {t0}")
        A(f"v_and_b32 {t1}, 3, {L}\nv_lshl_add_u32 v{V+4}, {t1}, 3, {t0}\nv_xor_b32 v{V+5}, 32, v{V+4}")
    def wo_dma(self, rnd):
        out = []
        if self.o.get("nowodma"):
            self.vm_done.append(("wo", rnd))
            return ["s_nop 0"] * 48
        for grp in range(8):
            ops = [f"s_add_u32 m0, s{S_MX}, {4096*grp}" if grp else f"s_mov_b32 m0, s{S_MX}"]
            out.append(ops[0])
            for i in range(4):
                out.append(("vm", ("wo", rnd), f"buffer_load_dwordx4 v{V_XD+i}, {srd(SRD_WO)}, s{S_KX} offen offset:{1024*i} lds"))
            out.append(f"s_add_u32 s{S_KX}, s{S_KX}, {64*2048}")
        return out
    def wo_reads(self, rnd):
        out = []
        for kb in range(16):
            for nb in range(2):
                for rd in range(2):
                    out.append(f"ds_read_b64_tr_b16 {ar(128*rnd + 8*kb + 4*nb + 2*rd, 2)}, v{V_XD+4+nb} offset:{2048*kb + 512*rd}")
        return out

    def e1(self):
        A = self.A; o = self.o; em = self.em
        L = f"v{V_LANE}"; t0, t1 = f"v{V_T}", f"v{V_T+1}"
        V_TW, V_TR = V_WD, V_WD + 1
        KVO, ZO = 160, 176
        WSET = [(32, 48), (96, 112)]
        A(f"s_mul_i32 s3, s{S_RH}, 0x80008000")
        for k in range(8): A(f"v_xor_b32 v{V_PHI+k}, s3, v{V_PHI+k}")
        for x in self.unit_S0(ACC[1], WSET[0][0]): A(x)
        self.wo_setup()
        A(f"s_lshl_b32 s{S_T1}, s{S_W}, 13")
        A(f"v_and_b32 {t0}, 31, {L}\nv_mul_u32_u24 {t0}, {TSTR}, {t0}\nv_lshrrev_b32 {t1}, 5, {L}\nv_lshl_add_u32 {t0}, {t1}, 3, {t0}\nv_add_u32 v{V_TW}, s{S_T1}, {t0}")
        A(f"v_lshlrev_b32 {t0}, 3, {t1}\nv_bfe_u32 {t1}, {L}, 2, 2\nv_add_u32 {t0}, {t0}, {t1}\nv_mul_u32_u24 {t0}, {TSTR}, {t0}")
        A(f"v_bfe_u32 {t1}, {L}, 4, 1\nv_lshl_add_u32 {t0}, {t1}, 5, {t0}\nv_and_b32 {t1}, 3, {L}\nv_lshl_add_u32 {t0}, {t1}, 3, {t0}\nv_add_u32 v{V_TR}, s{S_T1}, {t0}")
        dma = self.wo_dma(0)
        def kv_mfmas(u):
            out = []
            for sg in (1, 0):
                kv = ar(A_KVX, 16) if sg else vr(KVO, 16)
                z = ar(A_ZX, 16) if sg else vr(ZO, 16)
                for j in range(2):
                    T = ar(A_T + 8 * sg + 4 * j, 4)
                    first = (u == 0 and j == 0)
                    out.append(f"{MF32} {kv}, {T}, {vr(ACC[2] + 8*u + 4*j, 4)}, {'0' if first else kv}")
                    out.append(f"{MF32} {z}, {T}, {vr(V_ONE,4)}, {'0' if first else z}")
            return out
        for u in range(4):
            P, E = WSET[u % 2]
            for x in self.unit_S1(P) + self.unit_S2(P, E): A(x)
            ex = []
            prev = kv_mfmas(u - 1) if u else []
            d = dma[12 * u:12 * u + 12]
            s3 = self.unit_S3(P, E)
            if prev: A("s_waitcnt lgkmcnt(0)")
            for k, x in enumerate(s3):
                A(x)
                if k % 4 == 0 and prev: A(prev[k // 4])
                if k % 4 == 2 and d: em(d.pop(0))
                if k % 8 == 3 and d: em(d.pop(0))
            assert not d
            for x in self.unit_S4(P, E) + self.unit_S5a(P, E): A(x)
            s5 = self.unit_S5b(P, E, E, E + 8)
            nxt = self.unit_S0(ACC[1] + 8 * (u + 1), WSET[(u + 1) % 2][0]) if u < 3 else []
            self.interleave(s5, nxt, start=0, every=6)
            for sg in range(2):
                for q in range(4):
                    A(f"ds_write_b64 v{V_TW}, {vr(E + 8*sg + 2*q, 2)} offset:{64*sg + 16*q}")
            for sg in (1, 0):
                for j in range(2):
                    for rd in range(2):
                        A(f"ds_read_b64_tr_b16 {ar(A_T + 8*sg + 4*j + 2*rd, 2)}, v{V_TR} offset:{64*sg + (16*j + 4*rd)*TSTR}")
        self.stamp("e1 units")
        A("s_waitcnt lgkmcnt(0)")
        last = kv_mfmas(3)
        V_XW, V_XR, V_ZW, V_ZR = V_XA, V_XA + 1, V_XA + 2, V_XA + 3
        for x in last[:4]: A(x)
        A(f"v_lshlrev_b32 {t0}, 4, {L}\nv_add_u32 v{V_XW}, s{S_T1}, {t0}\nv_xor_b32 v{V_XR}, 16384, v{V_XW}")
        A(f"v_lshrrev_b32 {t0}, 5, {L}\nv_lshlrev_b32 {t0}, 4, {t0}\nv_add_u32 v{V_ZW}, s{S_T1}, {t0}\nv_xor_b32 v{V_ZR}, 16384, v{V_ZW}")
        for x in last[4:]: A(x)
        for q in range(4): A(f"ds_write_b128 v{V_XW}, {ar(A_KVX + 4*q, 4)} offset:{X1_OFF + 1024*q}")
        A(f"s_mov_b32 exec_lo, 1\ns_mov_b32 exec_hi, 1")
        for q in range(4): A(f"ds_write_b128 v{V_ZW}, {ar(A_ZX + 4*q, 4)} offset:{X1Z_OFF + 32*q}")
        A("s_mov_b64 exec, -1")
        A("s_waitcnt lgkmcnt(0)\ns_barrier")
        R = 96
        for q in range(4): A(f"ds_read_b128 {vr(R + 4*q, 4)}, v{V_XR} offset:{X1_OFF + 1024*q}")
        for q in range(4): A(f"ds_read_b128 {vr(R + 16 + 4*q, 4)}, v{V_ZR} offset:{X1Z_OFF + 32*q}")
        A(f"s_lshl_b32 s{S_T0}, s{S_B}, 5\ns_add_u32 s{S_T0}, s{S_T0}, s{S_HEAD}\ns_lshl_b32 s{S_T0}, s{S_T0}, 3\ns_add_u32 s{S_T0}, s{S_T0}, s{S_R}")
        A(f"s_lshl_b32 s{S_T0}, s{S_T0}, 1\ns_add_u32 s{S_T0}, s{S_T0}, s{S_RH}")
        A(f"s_lshl_b32 s{S_T2}, s{S_T0}, 6\ns_add_u32 s{S_T2}, s{S_T2}, {WS_Z}\ns_lshl_b32 s{S_T0}, s{S_T0}, 11")
        A(f"v_lshlrev_b32 {t1}, 4, {L}")
        A("s_waitcnt lgkmcnt(4)")
        for k in range(8): A(f"v_pk_add_f32 {vr(KVO+2*k,2)}, {vr(KVO+2*k,2)}, {vr(R+2*k,2)}")
        for k in range(8): A(f"v_cvt_pk_bf16_f32 v{KVO+k}, v{KVO+2*k}, v{KVO+2*k+1}")
        for j in range(2): em(("vm", "pub1", f"buffer_store_dwordx4 {vr(KVO+4*j,4)}, {t1}, {srd(SRD_WS)}, s{S_T0} offen offset:{1024*j} sc1"))
        A("s_waitcnt lgkmcnt(0)")
        for k in range(8): A(f"v_pk_add_f32 {vr(ZO+2*k,2)}, {vr(ZO+2*k,2)}, {vr(R+16+2*k,2)}")
        for k in range(8): A(f"v_cvt_pk_bf16_f32 v{ZO+k}, v{ZO+2*k}, v{ZO+2*k+1}")
        A(f"s_mov_b32 exec_lo, 1\ns_mov_b32 exec_hi, 1")
        for j in range(2): em(("vm", "pub1", f"buffer_store_dwordx4 {vr(ZO+4*j,4)}, {t0}, {srd(SRD_WS)}, s{S_T2} offen offset:{32*j} sc1"))
        A("s_mov_b64 exec, -1")
        self.stamp("pub1")

    def flag_store(self, fn, tags):
        A = self.A
        fn(S_T0)
        self.em(("wait", tags, ""))
        A(f"s_mov_b64 exec, 1")
        self.em(("vm", "flag", f"buffer_store_dwordx2 {vr(V_CNT,2)}, off, {srd(SRD_WS)}, s{S_T0} sc1"))
        A("s_mov_b64 exec, -1")

    def poll(self, soff, nlanes):
        A = self.A
        lab, done = self.label("poll"), self.label("pdone")
        A(f"v_lshlrev_b32 v{V_T+6}, 3, v{V_LANE}\ns_mov_b32 s{S_SPIN}, 0")
        A("s_mov_b32 exec_hi, 0")
        if nlanes < 32: A(f"s_mov_b32 exec_lo, {(1 << nlanes) - 1}")
        A(f"{lab}:")
        A(f"buffer_load_dwordx2 {vr(V_T+2,2)}, v{V_T+6}, {srd(SRD_WS)}, {soff} offen sc1")
        A(f"s_add_u32 s{S_SPIN}, s{S_SPIN}, 1")
        A("s_waitcnt vmcnt(0)")
        A(f"v_cmp_ne_u64 vcc, s[{S_NON}:{S_NON+1}], {vr(V_T+2,2)}")
        A(f"s_cmp_ge_u32 s{S_SPIN}, {SPIN_MAX}\ns_cbranch_scc1 {done}")
        A(f"s_nop 4\ns_cbranch_vccnz {lab}")
        A(f"{done}:\ns_mov_b64 exec, -1")
        self.vm_done += self.vm; self.vm = []

    FQ = [64, 80, 128, 144]
    def e2(self):
        A = self.A; o = self.o; em = self.em
        WSET = [(32, 48), (96, 112)]
        self.em(("wait", [("wo", 0)], ""))
        r1 = self.wo_reads(0)
        for x in self.unit_S0(ACC[0], WSET[0][0]): A(x)
        for x in r1: A(x)
        self.stamp("r1")
        dma = self.wo_dma(1)
        for u in range(4):
            P, E = WSET[u % 2]
            for x in self.unit_S1(P) + self.unit_S2(P, E): A(x)
            d = dma[16 * (u - 1):16 * u] if u else []
            if u == 1: A("s_waitcnt lgkmcnt(0)")
            for k, x in enumerate(self.unit_S3(P, E)):
                A(x)
                if k % 2 == 1 and d: em(d.pop(0))
            assert not d
            for x in self.unit_S4(P, E) + self.unit_S5a(P, E): A(x)
            s5 = self.unit_S5b(P, E, self.FQ[u], self.FQ[u] + 8)
            nxt = self.unit_S0(ACC[0] + 8 * (u + 1), WSET[(u + 1) % 2][0]) if u < 3 else []
            self.interleave(s5, nxt, start=0, every=6)
            if u == 0:
                self.get_nonce()
                self.flag_store(self.f1w, ["pub1"])
        self.stamp("e2")

    def e3(self):
        A = self.A; o = self.o; em = self.em
        L = f"v{V_LANE}"; t0, t1 = f"v{V_T}", f"v{V_T+1}"
        V_XW, V_XR = V_XA, V_XA + 1
        A(f"s_lshl_b32 s{S_T1}, s{S_B}, 5\ns_add_u32 s{S_T1}, s{S_T1}, s{S_HEAD}")
        A(f"s_lshl_b32 s{S_T2}, s{S_T1}, 10\ns_add_u32 s{S_T2}, s{S_T2}, {WS_Z}")
        A(f"s_lshl_b32 s{S_T1}, s{S_T1}, 15\ns_lshl_b32 s3, s{S_RH}, 11\ns_add_u32 s{S_T1}, s{S_T1}, s3")
        A(f"v_lshlrev_b32 {t0}, 4, {L}")
        tz = f"v{V_T+4}"; tz2 = f"v{V_T+5}"
        A(f"v_bfe_u32 {t1}, {L}, 3, 1\nv_lshlrev_b32 {t1}, 2, {t1}\nv_and_b32 {tz}, 3, {L}\nv_add_u32 {tz}, {tz}, {t1}\nv_lshlrev_b32 {tz}, 7, {tz}")
        A(f"v_lshrrev_b32 {t1}, 5, {L}\nv_lshl_add_u32 {tz}, {t1}, 4, {tz}\ns_lshl_b32 s3, s{S_RH}, 6\nv_add_u32 {tz}, s3, {tz}\nv_xor_b32 {tz2}, 64, {tz}")
        self.f1base(S_T0)
        self.poll(f"s{S_T0}", 16)
        self.stamp("sync1")
        PL, ZF, S, KVF = 0, 96, 112, 160
        for r in range(8):
            for j in range(2):
                em(("vm", ("pl", r), f"buffer_load_dwordx4 {vr(PL + 8*r + 4*j, 4)}, {t0}, {srd(SRD_WS)}, s{S_T1} offen offset:{1024*j} sc1"))
            if r < 7: A(f"s_add_u32 s{S_T1}, s{S_T1}, 4096")
        for sl in range(2):
            for j in range(2):
                em(("vm", "zl", f"buffer_load_dwordx4 {vr(ZF + 8*sl + 4*j, 4)}, {tz2 if sl else tz}, {srd(SRD_WS)}, s{S_T2} offen offset:{32*j} sc1"))
        for r in range(8):
            em(("wait", [("pl", r)], ""))
            for j in range(2):
                A(f"{MF32} {vr(S,16)}, {vr(V_ID + 4*j, 4)}, {vr(PL + 8*r + 4*j, 4)}, {'0' if r + j == 0 else vr(S,16)}")
        A(f"s_lshl_b32 s{S_T1}, s{S_B}, 4\ns_lshl_b32 s3, s{S_R}, 1\ns_add_u32 s{S_T1}, s{S_T1}, s3\ns_add_u32 s{S_T1}, s{S_T1}, s{S_RH}")
        A(f"s_lshl_b32 s{S_T1}, s{S_T1}, 5\ns_add_u32 s{S_T1}, s{S_T1}, s{S_HEAD}\ns_lshl_b32 s{S_T1}, s{S_T1}, 13\ns_add_u32 s{S_T1}, s{S_T1}, {WS_O}")
        A(f"v_bfe_u32 {t0}, {L}, 4, 1\nv_lshlrev_b32 {t0}, 10, {t0}\nv_lshrrev_b32 {t1}, 5, {L}\nv_lshl_add_u32 {t0}, {t1}, 8, {t0}\nv_and_b32 {t1}, 15, {L}\nv_lshl_add_u32 {t0}, {t1}, 4, {t0}")
        for k in range(8): A(f"v_cvt_pk_bf16_f32 v{KVF+k}, v{S+2*k}, v{S+2*k+1}")
        for j in range(2): A(f"ds_write_b128 v{V_XW}, {vr(KVF + 4*j, 4)} offset:{X2_OFF + 1024*j}")
        A("s_waitcnt lgkmcnt(0)\ns_barrier")
        for j in range(2): A(f"ds_read_b128 {vr(KVF + 8 + 4*j, 4)}, v{V_XR} offset:{X2_OFF + 1024*j}")
        em(("wait", ["zl"], ""))
        self.stamp("kvsum")
        SETS = [(0, 16), (32, 48)]
        def mm(u):
            N, D = SETS[u % 2]; F = self.FQ[u]
            den = [f"{MF32} {vr(D,16)}, {vr(ZF + 4*k, 4)}, {vr(F + 4*k, 4)}, {'0' if k == 0 else vr(D,16)}" for k in range(4)]
            num = [f"{MF32} {vr(N,16)}, {vr(KVF + 4*k, 4)}, {vr(F + 4*k, 4)}, {'0' if k == 0 else vr(N,16)}" for k in range(4)]
            return den, num
        def fin(u):
            N, D = SETS[u % 2]
            a = [f"v_add_f32 v{D}, v{D}, v{D+1}", f"v_add_f32 v{D+2}, v{D+2}, v{D+3}", f"v_add_f32 v{D+4}, v{D+4}, v{D+5}", f"v_add_f32 v{D+6}, v{D+6}, v{D+7}",
                 f"v_add_f32 v{D}, v{D}, v{D+2}", f"v_add_f32 v{D+4}, v{D+4}, v{D+6}", f"v_add_f32 v{D}, v{D}, v{D+4}", f"v_add_f32 v{D}, 0x358637bd, v{D}",
                 f"v_rcp_f32 v{D}, v{D}"]
            b = [f"v_mul_f32 v{N+k}, v{N+k}, v{D}" for k in range(16)]
            b += [f"v_cvt_pk_bf16_f32 v{N+k}, v{N+2*k}, v{N+2*k+1}" for k in range(8)]
            b += [("vm", "pub2", f"buffer_store_dwordx4 {vr(N+4*j,4)}, {t0}, {srd(SRD_WS)}, s{S_T1} offen offset:{2048*(u%2) + 512*j} sc1") for j in range(2)]
            if u == 1: b.append(f"s_add_u32 s{S_T1}, s{S_T1}, 4096")
            return a, b
        d0, n0 = mm(0)
        for x in d0: A(x)
        A("s_waitcnt lgkmcnt(0)")
        for x in n0: A(x)
        for u in range(4):
            a, b = fin(u)
            if u < 3:
                d, n = mm(u + 1)
                self.interleave(a + b[:24], d + n, start=0, every=4)
                for x in b[24:]: em(x)
            else:
                for x in a + b: em(x)
        self.stamp("e3")
        r2 = self.wo_reads(1)
        h = o.get("r2split", 64)
        for x in r2[:h]: A(x)
        self.flag_store(self.f2w, ["pub2"])
        for x in r2[h:]: A(x)
        self.stamp("pub2")
        self.padspin("pub2")

    def gemm2(self):
        A = self.A; o = self.o; em = self.em
        L = f"v{V_LANE}"; t0, t1 = f"v{V_T}", f"v{V_T+1}"
        V_OD, V_OA, V_OUT, OF = V_WD, V_XA, V_WD + 1, 64
        NS = 10
        A(f"s_and_b32 s{S_T2}, s{S_XCD}, 3\ns_lshl_b32 s{S_T2}, s{S_T2}, 2\ns_and_b32 s3, s{S_J}, 3\ns_add_u32 s{S_T2}, s{S_T2}, s3")
        A(f"s_lshl_b32 s{S_T1}, s{S_B}, 4\ns_add_u32 s{S_T1}, s{S_T1}, s{S_T2}")
        A(f"s_lshl_b32 s{S_T0}, s{S_T1}, 8\ns_add_u32 s{S_T0}, s{S_T0}, {WS_F2}")
        A(f"s_lshl_b32 s{S_KX}, s{S_T1}, 18\ns_add_u32 s{S_KX}, s{S_KX}, {WS_O}")
        A(f"s_lshl_b32 s{S_MX}, s{S_W}, 12")
        A(f"v_lshlrev_b32 v{V_OA}, 4, {L}\nv_add_u32 v{V_OD}, s{S_MX}, v{V_OA}")
        A(f"v_add_u32 v{V_OA+1}, 0x10000, v{V_OA}\nv_add_u32 v{V_OA+2}, 0x20000, v{V_OA}")
        A(f"s_lshl_b32 s{S_KW}, s{S_T2}, 19\ns_lshl_b32 s3, s{S_B}, 11\ns_add_u32 s{S_KW}, s{S_KW}, s3")
        A(f"s_lshr_b32 s3, s{S_J}, 2\ns_lshl_b32 s3, s3, 8\ns_add_u32 s{S_KW}, s{S_KW}, s3\ns_lshl_b32 s3, s{S_W}, 6\ns_add_u32 s{S_KW}, s{S_KW}, s3")
        A(f"v_and_b32 {t0}, 15, {L}\nv_lshlrev_b32 {t0}, 12, {t0}\nv_bfe_u32 {t1}, {L}, 4, 1\nv_lshl_add_u32 {t0}, {t1}, 5, {t0}\nv_lshrrev_b32 {t1}, 5, {L}\nv_lshl_add_u32 v{V_OUT}, {t1}, 4, {t0}")
        A("s_waitcnt lgkmcnt(0)\ns_barrier")
        self.poll(f"s{S_T0}", 32)
        self.stamp("sync2")
        def dma(i):
            base = 16384 * (i % NS)
            out = [f"s_add_u32 m0, s{S_MX}, {base}" if base else f"s_mov_b32 m0, s{S_MX}"]
            out += [("vm", ("o", i), f"buffer_load_dwordx4 v{V_OD}, {srd(SRD_WS)}, s{S_KX} offen offset:{1024*k} sc1 lds") for k in range(4)]
            out.append(f"s_add_u32 s{S_KX}, s{S_KX}, 16384")
            return out
        def reads(gm):
            i, m = divmod(gm, 8)
            off = 16384 * (i % NS) + 1024 * m
            return [f"ds_read_b128 {vr(OF + 8*(gm%4) + 4*s, 4)}, v{V_OA + (off + 8192*s) // 65536} offset:{(off + 8192*s) % 65536}" for s in range(2)]
        def mf(i, m):
            out = []
            nbs = (0, 1) if m % 2 == 0 else (1, 0)
            for k, nb in enumerate(nbs):
                for q, s in enumerate((0, 1) if k == 0 else (1, 0)):
                    d = vr(8 * m + 4 * nb, 4)
                    out.append(f"{MF16} {d}, {ar(8*(2*i+s) + 4*nb, 4)}, {vr(OF + 8*((8*i+m)%4) + 4*s, 4)}, {'0' if i == 0 and q == 0 else d}")
            return out
        def fin(m):
            b = 8 * m
            return [f"v_cvt_pk_bf16_f32 v{b}, v{b}, v{b+1}", f"v_cvt_pk_bf16_f32 v{b+1}, v{b+2}, v{b+3}",
                    f"v_cvt_pk_bf16_f32 v{b+2}, v{b+4}, v{b+5}", f"v_cvt_pk_bf16_f32 v{b+3}, v{b+6}, v{b+7}",
                    f"v_permlane16_swap_b32 v{b}, v{b+2}", f"v_permlane16_swap_b32 v{b+1}, v{b+3}",
                    ("vm", "out", f"buffer_store_dwordx4 {vr(b,4)}, v{V_OUT}, {srd(SRD_OUT)}, s{S_KW} offen{o.get('outpol','')}"), f"s_add_u32 s{S_KW}, s{S_KW}, 0x10000"]
        npre = o.get("g2pre", 3)
        for i in range(npre):
            for x in dma(i): em(x)
        nxt = npre
        em(("wait", [("o", 0)], "")); A("s_barrier")
        self.stamp("o first")
        for gm in range(3):
            for r in reads(gm): A(r)
        rate = o.get("g2rate", 1.5)
        acc = 0.0
        for i in range(16):
            fill = [[] for _ in range(32)]
            pre = {0: "s_waitcnt lgkmcnt(4)", 4: "s_waitcnt lgkmcnt(4)", 8: "s_waitcnt lgkmcnt(4)", 12: "s_waitcnt lgkmcnt(4)", 16: "s_waitcnt lgkmcnt(4)", 20: "s_waitcnt lgkmcnt(0)"}
            for m in range(8):
                gm = 8 * i + m + 3
                if gm < 128:
                    for k, r in enumerate(reads(gm)): fill[4 * m + 1 + k].append(r)
            if i < 15:
                fill[20].insert(0, ("wait", [("o", i + 1)], "")); fill[20].insert(1, "s_barrier")
            acc += rate
            ops = []
            while acc >= 1 and nxt < 16 and (nxt - NS) < i:
                ops += dma(nxt); nxt += 1; acc -= 1
            slots = [g for g in range(0, 20) if len(fill[g]) == 0] + [g for g in range(0, 20) if len(fill[g]) == 1 and g + 1 not in pre]
            slots = sorted(slots[:max(len(ops), 0)])
            assert len(slots) >= len(ops)
            for g, x in zip(slots, ops): fill[g].append(x)
            if i == 15:
                for m in range(6):
                    ops = fin(m)
                    for k, x in enumerate(ops): fill[4 * (m + 2) + k // 2].append(x)
            g = 0
            for m in range(8):
                for x in mf(i, m):
                    if g in pre: A(pre[g])
                    A(x)
                    for y in fill[g]: em(y)
                    g += 1
        assert nxt == 16
        for m in (6, 7):
            for x in fin(m): em(x)
        self.stamp("g2end")
        self.padspin("end")

    def dump_acc(self):
        A = self.A
        A("s_nop 15")
        A(f"s_lshl_b32 s3, s2, 2\ns_add_u32 s3, s3, s{S_W}\ns_mul_i32 s3, s3, {192*256}\ns_add_u32 s3, s3, {WS_DUMP}")
        A(f"v_lshlrev_b32 v{V_T}, 2, v{V_LANE}")
        for r in range(192):
            A(f"buffer_store_dword v{r}, v{V_T}, {srd(SRD_WS)}, s3 offen offset:{(r%16)*256}")
            if r % 16 == 15: A("s_add_u32 s3, s3, 4096")

    def diag_out(self):
        if not self.o.get("diag"): return
        A = self.A
        A("s_waitcnt vmcnt(0)")
        self.stamp("end")
        A("s_memrealtime s[64:65]")
        A("s_waitcnt lgkmcnt(0)")
        A(f"s_lshl_b32 s3, s2, 2\ns_add_u32 s3, s3, s{S_W}\ns_lshl_b32 s3, s3, 7\ns_add_u32 s3, s3, {WS_DIAG}")
        vals = ["s100", "s64"] + [f"s{S_STAMP+2*k}" for k in range(self.nstamp)]
        A(f"v_mov_b32 v{V_T+1}, 0")
        for k, s in enumerate(vals):
            A(f"v_mov_b32 v{V_T}, {s}")
            A(f"buffer_store_dword v{V_T}, v{V_T+1}, {srd(SRD_WS)}, s3 offen offset:{4*k}")

    def body(self):
        self.e1(); self.e2(); self.e3(); self.gemm2()
    def code_pf(self, a, b, dst):
        return [f"s_add_u32 s{SRD_T}, s68, {a}-L_PC", f"s_addc_u32 s{SRD_T+1}, s69, 0", f"s_mov_b32 s{SRD_T+2}, {b}-{a}",
                f"s_lshl_b32 s3, s{S_W}, 13", f"v_lshlrev_b32 v{dst}, 7, v{V_LANE}",
                ("vm", "pf", f"buffer_load_dword v{dst}, v{dst}, {srd(SRD_T)}, s3 offen ; nolint")]
    def cold_code(self): pass
    def extra_after_w(self, i): return []
    def finish_pack(self, ops):
        for x in ops: self.A(x)
    def extra_pend(self, i): return []
    def extra_need(self, i): return []
    def extra_tail(self, i): return []
    def build(self):
        A = self.A
        self.prologue()
        self.phase1()
        if not self.o.get("p1only"):
            self.body()
        if self.o.get("dump"): self.dump_acc()
        self.diag_out()
        A("L_END:\ns_endpgm")
        self.cold_code()
        body, info = A.finish(verbose=self.o.get("verbose"))
        hdr = open("concat_heads__linear_kernel_hedgehog__linear_kernel_hedgehog__prompt.s.ref").read().split("; Override")[0]
        txt = hdr + f"""; @launch grid=(256,1,1) block=(256,1,1) lds={LDS_BYTES}
.amdgcn_target "amdgcn-amd-amdhsa--gfx950"
.text
.globl {KNAME}
.p2align 8
.type {KNAME},@function
{KNAME}:
{body}
.section .rodata,"a"
.p2align 6
.amdhsa_kernel {KNAME}
  .amdhsa_next_free_vgpr 512
  .amdhsa_next_free_sgpr 102
  .amdhsa_accum_offset 256
  .amdhsa_group_segment_fixed_size 0
  .amdhsa_kernarg_size 88
  .amdhsa_user_sgpr_count 2
  .amdhsa_user_sgpr_kernarg_segment_ptr 1
  .amdhsa_system_sgpr_workgroup_id_x 1
.end_amdhsa_kernel
"""
        return txt, info

def main(cls):
    out = sys.argv[1]
    opt = {}
    for a in sys.argv[2:]:
        k, v = a.split("=", 1)
        opt[k] = eval(v)
    g = cls(opt)
    txt, info = g.build()
    open(out, "w").write(txt)
    json.dump(dict(stamps=g.stamp_names, opt={k: str(v) for k, v in opt.items()}), open(out + ".json", "w"))
    print(out, info, len(g.stamp_names))

if __name__ == "__main__":
    main(Gen)
```

```python
import re, subprocess, os, tempfile
MC = "llvm-mc"

REG_RE = re.compile(r"(?<![\w.])([vas])(?:(\d+)\b|\[(\d+):(\d+)\])")
TRANS = ("v_exp_", "v_log_", "v_rcp_", "v_rsq_", "v_sqrt_", "v_sin_", "v_cos_")

def regs_of(tok):
    out = set()
    for m in REG_RE.finditer(tok):
        k = m.group(1)
        if m.group(2) is not None:
            out.add((k, int(m.group(2))))
        else:
            for i in range(int(m.group(3)), int(m.group(4)) + 1):
                out.add((k, i))
    for name in ("vcc", "m0", "exec"):
        if re.search(r"(?<![\w])" + name + r"(?![\w])", tok) or re.search(r"(?<![\w])" + name + r"_(lo|hi)", tok):
            out.add((name, 0))
    return out

def split_ops(s):
    ops, depth, cur = [], 0, ""
    for ch in s:
        if ch in "[(": depth += 1
        if ch in "])": depth -= 1
        if ch == "," and depth == 0:
            ops.append(cur.strip()); cur = ""
        else:
            cur += ch
    if cur.strip(): ops.append(cur.strip())
    return ops

class Ins:
    __slots__ = ("text", "op", "kind", "wr", "rd", "srcC", "srcAB", "passes", "trans", "size", "stdata", "nopn", "ldsdma")
    def __init__(self, text):
        self.text = text
        t = text.split(";")[0].strip()
        self.size = None
        if t.endswith(":") or t.startswith(".") or not t:
            self.op = None; self.kind = "meta"; return
        parts = t.split(None, 1)
        op = parts[0]; self.op = op
        ops = split_ops(parts[1]) if len(parts) > 1 else []
        self.wr = set(); self.rd = set(); self.srcC = set(); self.srcAB = set(); self.passes = 0
        self.trans = op.startswith(TRANS); self.stdata = set(); self.nopn = 0; self.ldsdma = False
        R = [regs_of(o) for o in ops]
        if op.startswith("v_mfma"):
            self.kind = "mfma"
            self.wr = R[0]; self.srcAB = R[1] | R[2]; self.srcC = R[3]
            self.rd = self.srcAB | self.srcC
            self.passes = 8 if "32x32" in op else 4
        elif op.startswith("v_cmp"):
            self.kind = "valu"; self.wr = set(R[0]); self.rd = set().union(*R[1:]) if len(R) > 1 else set()
            if op.startswith("v_cmpx"): self.wr.add(("exec", 0))
        elif op.startswith("v_"):
            self.kind = "valu"
            self.wr = set(R[0]); self.rd = set().union(*R[1:]) if len(R) > 1 else set()
            if op.startswith(("v_fmac", "v_dot2c", "v_pk_fmac")): self.rd |= R[0]
            if op.startswith("v_permlane32_swap") or op.startswith("v_permlane16_swap"):
                self.wr |= R[1]; self.rd |= R[0]
            if op.startswith(("v_add_co", "v_sub_co", "v_addc_co", "v_subb_co", "v_subrev_co")):
                self.wr |= R[1]; self.rd = set().union(*R[2:])
            if op.startswith("v_writelane"): self.rd |= R[0]
            if op.startswith("v_cndmask") and len(ops) == 3: self.rd.add(("vcc", 0))
        elif op.startswith("ds_read") or op.startswith("ds_bpermute") or op.startswith("ds_swizzle"):
            self.kind = "ds"; self.wr = R[0]; self.rd = set().union(*R[1:])
        elif op.startswith("ds_"):
            self.kind = "ds"; self.rd = set().union(*R)
        elif op.startswith(("buffer_load", "global_load")):
            self.kind = "vmem"
            if re.search(r"\blds\b", t):
                self.ldsdma = True; self.rd = set().union(*R) | {("m0", 0)}
            else:
                self.wr = R[0]; self.rd = set().union(*R[1:])
        elif op.startswith(("buffer_store", "buffer_atomic")):
            self.kind = "vmem"; self.rd = set().union(*R)
            if "x4" in op or "x3" in op: self.stdata = R[0]
            if op.startswith("buffer_atomic") and re.search(r"\bsc0\b", t): self.wr = R[0]
        elif op.startswith(("global_store", "global_atomic")):
            self.kind = "vmem"; self.rd = set().union(*R)
            if "x4" in op or "x3" in op: self.stdata = R[1]
        elif op.startswith(("buffer_inv", "buffer_wbl2")):
            self.kind = "vmem"
        elif op.startswith(("s_load", "s_buffer_load", "s_memtime", "s_memrealtime")):
            self.kind = "smem"; self.wr = R[0]; self.rd = set().union(*R[1:]) if len(R) > 1 else set()
        elif op == "s_nop":
            self.kind = "salu"; self.nopn = int(ops[0], 0)
        elif op.startswith(("s_cbranch", "s_branch", "s_endpgm", "s_setpc", "s_swappc")):
            self.kind = "branch"; self.rd = set().union(*R) if R else set()
        elif op.startswith(("s_waitcnt", "s_barrier", "s_sleep", "s_setprio", "s_cmp", "s_bitcmp")):
            self.kind = "salu"; self.rd = set().union(*R) if R else set()
        elif op.startswith("s_"):
            self.kind = "salu"; self.wr = set(R[0]) if R else set(); self.rd = set().union(*R[1:]) if len(R) > 1 else set()
            if "saveexec" in op: self.wr.add(("exec", 0)); self.rd.add(("exec", 0))
        else:
            raise ValueError("unknown instr: " + text)

def isv(r): return r[0] in ("v", "a")
def iss(r): return r[0] in ("s", "vcc")

def need_states(p, c):
    n = 0
    if p.kind == "valu":
        wv = {r for r in p.wr if isv(r)}
        ws = {r for r in p.wr if iss(r)}
        if c.kind == "mfma" and wv & c.rd: n = max(n, 2)
        if c.kind == "valu":
            if c.op.startswith("v_permlane") and wv & c.rd: n = max(n, 2)
            if ("dpp" in c.text or "row_" in c.text or "quad_perm" in c.text) and wv & c.rd: n = max(n, 2)
            if c.op.startswith(("v_readlane", "v_readfirstlane")) and wv & c.rd: n = max(n, 1)
            if ws & c.rd: n = max(n, 4 if c.op.startswith(("v_readlane", "v_writelane")) else 2)
            if p.trans and not c.trans and (wv & c.rd): n = max(n, 1)
            if ("exec", 0) in p.wr: n = max(n, 5)
        if c.kind == "mfma" and ("exec", 0) in p.wr: n = max(n, 4)
        if c.kind in ("vmem",) and ws & c.rd: n = max(n, 5)
        if c.kind in ("salu", "branch", "smem") and ws & c.rd: n = max(n, 4)
        if p.trans and c.kind in ("mfma", "vmem", "ds") and wv & c.rd: n = max(n, 2 if c.kind == "mfma" else 1)
    if p.kind == "mfma":
        P = p.passes
        if c.kind == "mfma":
            if p.wr & c.srcAB: n = max(n, {4: 8, 8: 12}[P])
            if p.wr & c.srcC:
                if not (p.wr == c.srcC and p.passes == c.passes): n = max(n, {4: 6, 8: 10}[P])
            elif p.wr & c.wr: n = max(n, {4: 8, 8: 12}[P])
        elif c.kind in ("valu", "vmem", "ds"):
            if p.wr & (c.rd | c.wr): n = max(n, {4: 8, 8: 12}[P])
            if c.kind == "valu" and p.srcC & c.wr: n = max(n, {4: 3, 8: 7}[P])
    if p.kind == "salu" and ("m0", 0) in p.wr and c.kind == "vmem" and c.ldsdma: n = max(n, 1)
    if p.kind == "vmem" and p.stdata:
        if p.stdata & c.wr: n = max(n, 2)
    return n

MAXLOOK = 20
def fix_hazards(ins, verbose=False):
    out = []
    added = 0
    for c in ins:
        if c.kind == "meta":
            out.append(c); continue
        dist = 0; need = 0
        for p in reversed(out):
            if p.kind == "meta": continue
            k = need_states(p, c)
            if k > dist: need = max(need, k - dist)
            dist += 1 + (p.nopn if p.op == "s_nop" else 0)
            if dist >= MAXLOOK: break
        if need:
            added += need
            if verbose: print(f"hazard: +{need} before: {c.text}")
            while need > 0:
                k = min(need, 16)
                out.append(Ins(f"s_nop {k-1}")); need -= k
        out.append(c)
    return out, added

def sizes(ins):
    txt = '.amdgcn_target "amdgcn-amd-amdhsa--gfx950"\n.text\n' + "\n".join(i.text for i in ins) + "\n"
    with tempfile.NamedTemporaryFile("w", suffix=".s", delete=False) as f:
        f.write(txt); name = f.name
    r = subprocess.run([MC, "-triple=amdgcn-amd-amdhsa", "-mcpu=gfx950", "-show-encoding", name], capture_output=True, text=True)
    os.unlink(name)
    if r.returncode != 0:
        print(r.stderr[:4000]); raise SystemExit("assembly failed")
    encs = [l for l in r.stdout.splitlines() if "; encoding:" in l]
    real = [i for i in ins if i.kind != "meta"]
    assert len(encs) == len(real), (len(encs), len(real))
    for i, l in zip(real, encs):
        e = l.split("encoding:")[1]
        i.size = e.count(",") + 1
        i.op_enc = l.split()[0] if False else None

def promotable(i):
    if i.kind != "valu" or i.size != 4: return False
    if i.op.endswith("_e32") or i.op.startswith(("v_readfirstlane", "v_accvgpr", "v_nop", "v_dot2c", "v_cmpx")): return False
    if "dpp" in i.text or "sdwa" in i.text: return False
    return True

def fix_align(ins):
    class X: pass
    sizes_ok(ins)
    out = []; off = 0; pads = 0; promos = 0
    last4 = None
    for i in ins:
        if i.kind == "meta":
            t = i.text.strip()
            m = re.match(r"\.p2align\s+(\d+)", t)
            if m:
                a = 1 << int(m.group(1)); off = (off + a - 1) // a * a; last4 = None
            out.append(i); continue
        if i.size >= 8 and off % 8 == 4:
            if last4 is not None:
                p = out[last4]
                q = Ins(p.op + "_e64" + p.text[p.text.index(p.op) + len(p.op):]); q.size = 8
                out[last4] = q; promos += 1
            else:
                n = Ins("s_nop 0"); n.size = 4; out.append(n); pads += 1
            off += 4; last4 = None
        out.append(i)
        if i.size == 4:
            if off % 8 == 0:
                last4 = len(out) - 1 if promotable(i) else None
            else:
                last4 = None
        else:
            last4 = None
        off += i.size
    return out, pads, promos, off

def sizes_ok(ins):
    txt = '.amdgcn_target "amdgcn-amd-amdhsa--gfx950"\n.text\n' + "\n".join(i.text for i in ins) + "\n"
    with tempfile.NamedTemporaryFile("w", suffix=".s", delete=False) as f:
        f.write(txt); name = f.name
    r = subprocess.run([MC, "-triple=amdgcn-amd-amdhsa", "-mcpu=gfx950", "-show-encoding", name], capture_output=True, text=True)
    os.unlink(name)
    if r.returncode != 0:
        print(r.stderr[:4000]); raise SystemExit("assembly failed")
    encs = [l for l in r.stdout.splitlines() if "; encoding:" in l]
    real = [i for i in ins if i.kind != "meta"]
    assert len(encs) == len(real), (len(encs), len(real))
    for i, l in zip(real, encs):
        e = l.split("encoding:")[1]
        i.size = e.count(",") + 1

def lint_outstanding(ins):
    lg = []; vm = []; errs = []
    for n, i in enumerate(ins):
        if i.kind == "meta": continue
        if i.op == "s_waitcnt":
            m = re.search(r"lgkmcnt\((\d+)\)", i.text)
            if m:
                k = int(m.group(1)); lg = lg[len(lg) - k:] if k < len(lg) and k else ([] if k == 0 else lg)
            m = re.search(r"vmcnt\((\d+)\)", i.text)
            if m:
                k = int(m.group(1)); vm = vm[len(vm) - k:] if k < len(vm) and k else ([] if k == 0 else vm)
            continue
        touched = {r for r in (i.rd | i.wr) if isv(r)}
        for q in (lg, vm):
            for dst, txt in q:
                if dst & touched and "nolint" not in txt: errs.append((i.text, txt))
        if i.kind == "ds": lg.append(({r for r in i.wr if isv(r)}, i.text))
        elif i.kind == "vmem": vm.append(({r for r in i.wr if isv(r)}, i.text))
    return errs

def insert_page_stubs(ins, nw=4):
    out = []; off = None; pos = []
    for i in ins:
        if i.kind == "meta":
            if i.text.strip().startswith(".p2align 12"): off = 0
            if i.text.strip() == "L_END:": off = None
            out.append(i); continue
        if off is not None and off % 4096 == 0:
            k = len(pos); pos.append(len(out))
            out += [Ins(f"L_HOP{k}:"), None, Ins("s_nop 0")]; out[-1].size = 4
            off += 8
        if off is not None:
            assert off % 4096 + i.size <= 4096
            off += i.size
        out.append(i)
    n = len(pos)
    for k, p in enumerate(pos):
        b = Ins(f"s_cbranch_execz {'L_HOP%d' % (k + nw) if k + nw < n else 'L_HOPBACK'}"); b.size = 4
        out[p + 1] = b
    return out, n

class Asm:
    def __init__(self):
        self.lines = []
    def __call__(self, s):
        for l in s.split("\n"):
            l = l.strip()
            if l: self.lines.append(l)
    def finish(self, verbose=False, align=True):
        ins = [Ins(l) for l in self.lines]
        ins, added = fix_hazards(ins, verbose)
        errs = lint_outstanding(ins)
        for e in errs[:20]: print("LINT:", e)
        assert not errs, len(errs)
        pads = promos = 0; size = None
        if align:
            ins, pads, promos, size = fix_align(ins)
        if any(i.kind == "meta" and i.text.strip().startswith(".p2align 12") for i in ins):
            ins, nst = insert_page_stubs(ins)
        info = dict(hazard_nops=added, pads=pads, promos=promos, bytes=size)
        txt = "\n".join((i.text if (i.kind == "meta" and i.text.endswith(":")) else "    " + i.text) for i in ins)
        return txt, info
```

```python
import sys, json
from asmlib import Asm
KNAME = "concat_heads__linear_kernel_hedgehog__linear_kernel_hedgehog__prompt_kernel"

WS_KV   = 0x000000
WS_Z    = 0x200000
WS_F1   = 0x220000
WS_F2   = 0x230000
WS_O    = 0x400000
WS_DIAG = 0x1000000
WS_DUMP = 0x2000000
WS_SIZE = 0x10000000

XS = [0, 32768, 65536]
WB = 98304
PHI = 159744
LDS_BYTES = 163840
TSTR = 136
X1_OFF, X1Z_OFF, X2_OFF = 0, 4096, 5120

S_PTR = 4
SRD_X, SRD_W, SRD_WO, SRD_WS, SRD_OUT, SRD_DBG, SRD_T = 12, 16, 20, 24, 28, 32, 36
S_P2 = 40
S_HEAD, S_SPIN = 46, 47
S_XCD, S_J, S_B, S_R, S_C, S_W, S_RH, S_HH = 48, 49, 50, 51, 52, 53, 54, 55
S_KX, S_KW, S_MX, S_MW = 56, 57, 58, 59
S_T0, S_T1, S_T2, S_T3 = 60, 61, 62, 63
S_L2E = 64
S_NON = 44
SRD_C = 68
V_CP = 211
S_STAMP = 72

ACC = [0, 64, 128]
V_XD, V_WD, V_XA, V_WA, V_LANE = 192, 200, 203, 207, 209
V_CNT = 248
V_PHI, V_ONE, V_ID = 212, 220, 224
V_T = 232
V_PX, V_PW, V_PD = 250, 251, 252
SRD_PX, SRD_PW, S_PFX, S_PFW, S_PHASE = 4, 8, 40, 41, 42
S_KT = 66
V_ST = 240
A_W, A_X = 0, 96
A_T, A_KVX, A_ZX = 128, 160, 176
MF16, MF32 = "v_mfma_f32_16x16x32_bf16", "v_mfma_f32_32x32x16_bf16"
SPIN_MAX = 1 << 16

def srd(i): return f"s[{i}:{i+3}]"
def vr(i, n): return f"v[{i}:{i+n-1}]"
def ar(i, n): return f"a[{i}:{i+n-1}]"

class Gen:
    def __init__(self, opt):
        self.o = opt
        self.A = Asm()
        self.nstamp = 0
        self.stamp_names = []
        self.vm = []
        self.nlab = 0
        self.vm_done = []
    def stamp(self, name):
        if self.o.get("pad") and self.o["pad"][0] == "@" + name: self.padspin("@" + name)
        if name[0] == "u" and name[1].isdigit() and "stamps" not in self.o: return
        if not self.o.get("diag"): return
        if "stamps" in self.o:
            if name not in self.o["stamps"] and name not in ("start", "end"): return
        elif name in self.o.get("nostamp", ("kernarg", "step7", "r1")): return
        s = S_STAMP + 2 * self.nstamp
        assert s + 1 <= 99
        self.A(f"s_memrealtime s[{s}:{s+1}]" if self.o.get("rt") else f"s_memtime s[{s}:{s+1}]")
        self.nstamp += 1; self.stamp_names.append(name)
    def em(self, x):
        if isinstance(x, str): self.A(x)
        elif x[0] == "vm": self.A(x[2]); self.vm.append(x[1])
        elif x[0] == "wait": self.A(f"s_waitcnt vmcnt({0 if self.o.get('vm0') else self.vmn(x[1])}){x[2]}")
        elif x[0] == "call": x[1]()
        else: raise ValueError(x)
    def vmn(self, tags):
        for t in tags: assert t in self.vm or t in self.vm_done, t
        idx = [i for i, t in enumerate(self.vm) if t in tags]
        if not idx: return 63
        n = len(self.vm) - 1 - max(idx)
        assert n <= 63
        return n
    def padspin(self, where):
        p = self.o.get("pad")
        if not p or p[0] != where: return
        A = self.A; lab = self.label("pad")
        A(f"{lab}:\ns_memrealtime s[96:97]\ns_waitcnt lgkmcnt(0)\ns_sub_u32 s96, s96, s98\ns_cmp_lt_u32 s96, {int(p[1]*100)}\ns_cbranch_scc1 {lab}")
    def label(self, p):
        self.nlab += 1
        return f"L_{p}{self.nlab}"

    def prologue(self):
        A = self.A; o = self.o; em = self.em
        A(f"s_cmp_ge_u32 s2, 256\ns_cbranch_scc1 L_END")
        if o.get("diag"): A("s_memrealtime s[100:101]")
        if o.get("pad"): A("s_memrealtime s[98:99]")
        self.stamp("start")
        A(f"s_lshl_b32 s3, s2, 3\ns_and_b32 s3, s3, 32" if not o.get("badmap") else "s_lshr_b32 s3, s2, 2\ns_and_b32 s3, s3, 32")
        A(f"s_load_dwordx8 s[{S_PTR}:{S_PTR+7}], s[0:1], s3")
        A(f"s_load_dwordx4 s[{S_P2}:{S_P2+3}], s[0:1], 64")
        A(f"s_load_dwordx2 s[{S_P2+4}:{S_P2+5}], s[0:1], 80")
        A(f"s_getpc_b64 s[{SRD_C}:{SRD_C+1}]")
        A("L_PC:")
        if o.get("codepf", 1):
            A(f"s_mov_b32 s{SRD_C+2}, L_END-L_PC\ns_mov_b32 s{SRD_C+3}, 0x20000\ns_lshr_b32 s3, s2, 3\ns_lshl_b32 s3, s3, 11")
            A(f"v_lshrrev_b32 v1, 6, v0\nv_and_b32 v2, 3, v0\nv_lshl_add_u32 v1, v1, 2, v2\nv_lshlrev_b32 v1, 7, v1\nv_add_u32 v1, s3, v1")
            A(f"v_and_b32 v2, 60, v0\nv_lshl_add_u32 v{V_CP}, v2, 24, v1")
            em(self.code_pf()[0])
        A(f"v_lshrrev_b32 v1, 6, v0\nv_and_b32 v{V_LANE}, 63, v0")
        A(f"s_and_b32 s{S_XCD}, s2, 7\ns_lshr_b32 s{S_J}, s2, 3")
        if o.get("badmap"): A(f"s_lshr_b32 s{S_XCD}, s2, 5\ns_and_b32 s{S_J}, s2, 31")
        A(f"v_readfirstlane_b32 s{S_W}, v1")
        A(f"s_lshr_b32 s{S_B}, s{S_XCD}, 2\ns_and_b32 s{S_R}, s{S_J}, 7")
        cm = o.get("cmap", "blk")
        if cm == "blk":
            A(f"s_and_b32 s{S_C}, s{S_XCD}, 3\ns_lshl_b32 s{S_C}, s{S_C}, 2\ns_lshr_b32 s3, s{S_J}, 3\ns_add_u32 s{S_C}, s{S_C}, s3")
        elif cm == "il":
            A(f"s_and_b32 s{S_C}, s{S_XCD}, 3\ns_lshr_b32 s3, s{S_J}, 3\ns_lshl_b32 s3, s3, 2\ns_add_u32 s{S_C}, s{S_C}, s3")
        elif cm == "rev":
            A(f"s_and_b32 s{S_C}, s{S_XCD}, 3\ns_lshl_b32 s{S_C}, s{S_C}, 2\ns_lshr_b32 s3, s{S_J}, 3\ns_sub_u32 s{S_C}, s{S_C}, s3\ns_add_u32 s{S_C}, s{S_C}, 3")
        elif cm == "4x8":
            A(f"s_and_b32 s{S_R}, s{S_J}, 3\ns_and_b32 s3, s{S_XCD}, 1\ns_lshl_b32 s3, s3, 2\ns_add_u32 s{S_R}, s{S_R}, s3")
            A(f"s_lshr_b32 s{S_C}, s{S_J}, 2\ns_and_b32 s3, s{S_XCD}, 2\ns_lshl_b32 s3, s3, 2\ns_add_u32 s{S_C}, s{S_C}, s3")
        L = f"v{V_LANE}"; t0, t1, t2 = f"v{V_T}", f"v{V_T+1}", f"v{V_T+2}"
        A(f"s_lshr_b32 s{S_RH}, s{S_W}, 1\ns_and_b32 s{S_HH}, s{S_W}, 1")
        A(f"v_bfe_u32 {t0}, {L}, 2, 3\ns_lshl_b32 s3, s{S_W}, 3\nv_add_u32 {t0}, s3, {t0}")
        A(f"v_mul_u32_u24 {t0}, 6144, {t0}")
        A(f"v_lshrrev_b32 {t1}, 5, {L}\nv_lshl_add_u32 {t0}, {t1}, 6, {t0}")
        A(f"s_lshl_b32 s3, s{S_HH}, 1\nv_and_b32 {t1}, 3, {L}\nv_xor_b32 {t1}, s3, {t1}\nv_lshl_add_u32 v{V_WD}, {t1}, 4, {t0}")
        A(f"v_add_u32 v{V_WD+1}, 1024, v{V_WD}\nv_add_u32 v{V_WD+2}, 2048, v{V_WD}")
        A(f"v_lshrrev_b32 {t0}, 3, {L}\ns_lshl_b32 s3, s{S_W}, 6\nv_add_u32 {t0}, s3, {t0}\nv_lshlrev_b32 {t0}, 11, {t0}")
        A(f"v_lshrrev_b32 {t1}, 4, {L}\nv_and_b32 {t2}, 7, {L}\nv_xor_b32 {t1}, {t1}, {t2}")
        A(f"v_lshl_add_u32 v{V_XD}, {t1}, 4, {t0}")
        A(f"v_xor_b32 v{V_XD+1}, 64, v{V_XD}\nv_add_u32 v{V_XD+1}, {16384-1024}, v{V_XD+1}")
        for j in range(2, 8):
            d = 16384 * 2 - (2048 if j % 4 >= 2 else -2048)
            A(f"v_add_u32 v{V_XD+j}, {d}, v{V_XD+j-2}")
        A(f"s_lshl_b32 s{S_MX}, s{S_W}, 13")
        A(f"s_mul_i32 s{S_MW}, s{S_W}, 3072\ns_add_u32 s{S_MW}, s{S_MW}, {WB}")
        kp = o.get("kperm")
        if kp:
            n = kp["n"]
            win = kp.get("win", [n] * (16 // n)); assert sum(win) == 16
            tabs = []
            for a in range(n):
                order = []; st = 0
                for ln in win:
                    order += [st + (u + a * ln // n if kp.get("spread") else u + a) % ln + st * 0 if False else st + ((u + (a * ln // n if kp.get("spread") else a)) % ln) for u in range(ln)]
                    st += ln
                assert sorted(order) == list(range(16))
                tabs.append(sum(k << (4 * i) for i, k in enumerate(order)))
            A(f"s_add_u32 s{S_T2}, s{S_R}, s{S_C}\ns_and_b32 s{S_T2}, s{S_T2}, {n-1}")
            A(f"s_mov_b32 s{S_KT}, {tabs[0] & 0xffffffff}\ns_mov_b32 s{S_KT+1}, {tabs[0] >> 32}")
            for a in range(1, n):
                A(f"s_cmp_eq_u32 s{S_T2}, {a}\ns_cselect_b32 s{S_KT}, {tabs[a] & 0xffffffff}, s{S_KT}\ns_cselect_b32 s{S_KT+1}, {tabs[a] >> 32}, s{S_KT+1}")
            if kp.get("d"):
                A(kp["d"].format(d=f"s{S_T2}", xcd=f"s{S_XCD}", b=f"s{S_B}"))
                A(f"s_lshl_b32 s{S_T2}, s{S_T2}, 2\ns_lshr_b64 s[{S_T0}:{S_T1}], s[{S_KT}:{S_KT+1}], s{S_T2}")
                A(f"s_sub_u32 s{S_T2}, 63, s{S_T2}\ns_lshl_b64 s[{S_KT}:{S_KT+1}], s[{S_KT}:{S_KT+1}], s{S_T2}\ns_lshl_b64 s[{S_KT}:{S_KT+1}], s[{S_KT}:{S_KT+1}], 1")
                A(f"s_or_b64 s[{S_KT}:{S_KT+1}], s[{S_KT}:{S_KT+1}], s[{S_T0}:{S_T1}]")
            A(self.kx(0)); A(self.kw(0))
        else:
            A(f"s_mov_b32 s{S_KX}, 0\ns_mov_b32 s{S_KW}, 0")
        A(f"s_lshl_b32 s{S_T0}, s{S_R}, 19\ns_lshl_b32 s{S_T1}, s{S_C}, 7")
        A(f"s_mov_b32 s{SRD_X+2}, 0x80000\ns_mov_b32 s{SRD_X+3}, 0x20000")
        A(f"s_sub_u32 s{SRD_W+2}, 0x600000, s{S_T1}\ns_mov_b32 s{SRD_W+3}, 0x20000")
        A("s_waitcnt lgkmcnt(0)")
        A(f"s_add_u32 s{SRD_W}, s{S_PTR+2}, s{S_T1}\ns_addc_u32 s{SRD_W+1}, s{S_PTR+3}, 0")
        A(f"s_add_u32 s{SRD_X}, s{S_PTR}, s{S_T0}\ns_addc_u32 s{SRD_X+1}, s{S_PTR+1}, 0")
        self.stamp("kernarg")
        for g in [("w", 0), ("x", 0), ("w", 1)]:
            for ins in self.dma_group(*g): em(ins)
        for base, p, n in ((SRD_WS, S_P2 + 4, WS_SIZE), (SRD_OUT, S_P2, 0x800000), (SRD_DBG, S_P2 + 2, 256), (SRD_WO, S_PTR + 6, 0x200000)):
            A(f"s_mov_b32 s{base}, s{p}\ns_mov_b32 s{base+1}, s{p+1}\ns_mov_b32 s{base+2}, {n}\ns_mov_b32 s{base+3}, 0x20000")
        A(f"s_lshl_b32 s{S_HEAD}, s{S_C}, 1\ns_add_u32 s{S_HEAD}, s{S_HEAD}, s{S_HH}")
        lab = self.label("non")
        A(f"s_or_b32 s3, s2, s{S_W}\ns_cmp_lg_u32 s3, 0\ns_cbranch_scc1 {lab}")
        A(f"s_memrealtime s[{S_T2}:{S_T3}]\ns_waitcnt lgkmcnt(0)\ns_lshl_b64 s[{S_T2}:{S_T3}], s[{S_T2}:{S_T3}], 2\ns_or_b32 s{S_T2}, s{S_T2}, 1")
        A(f"v_mov_b32 v{V_CNT}, s{S_T2}\nv_mov_b32 v{V_CNT+1}, s{S_T3}\ns_mov_b64 exec, 1")
        A(f"buffer_store_dwordx2 {vr(V_CNT,2)}, off, {srd(SRD_DBG)}, 0 sc1")
        A(f"s_mov_b64 exec, -1\n{lab}:")
        A(f"s_mov_b32 s{SRD_T}, s{S_PTR+4}\ns_mov_b32 s{SRD_T+1}, s{S_PTR+5}\ns_mov_b32 s{SRD_T+2}, 0x10000\ns_mov_b32 s{SRD_T+3}, 0x20000")
        A(f"s_lshl_b32 s{S_T0}, s{S_C}, 12\nv_lshlrev_b32 {t0}, 4, v0")
        A(f"s_lshl_b32 s3, s{S_W}, 10\ns_add_u32 m0, s3, {PHI}")
        em(("vm", "phi", f"buffer_load_dwordx4 {t0}, {srd(SRD_T)}, s{S_T0} offen lds"))
        if o.get("pft"):
            A(f"s_lshr_b32 s{S_PHASE}, s{S_J}, 3\ns_lshl_b32 s3, s{S_PHASE}, 2\ns_add_u32 s3, s3, s{S_W}\ns_lshl_b32 s3, s3, 15")
            A(f"s_add_u32 s{S_PHASE}, s{S_PHASE}, s{S_R}\ns_and_b32 s{S_PHASE}, s{S_PHASE}, 3")
            A(f"v_lshrrev_b32 {t0}, 2, {L}\nv_lshlrev_b32 {t0}, 11, {t0}\nv_and_b32 {t1}, 3, {L}\nv_lshl_add_u32 {t0}, {t1}, 7, {t0}\nv_add_u32 v{V_PX}, s3, {t0}")
            A(f"s_lshl_b32 s3, s{S_R}, 2\ns_add_u32 s3, s3, s{S_W}\ns_mul_i32 s3, s3, 12288")
            A(f"v_lshlrev_b32 {t1}, 6, {t1}\nv_bfe_u32 {t0}, {L}, 2, 1\nv_add_u32 {t0}, {t0}, {t1}\nv_mul_u32_u24 {t0}, 6144, {t0}")
            A(f"v_lshrrev_b32 {t1}, 3, {L}\nv_lshl_add_u32 {t0}, {t1}, 11, {t0}\nv_add_u32 {t0}, s3, {t0}")
            A(f"v_cmp_gt_u32 vcc, 24, {L}\nv_bfrev_b32 {t1}, 1\nv_cndmask_b32 v{V_PW}, {t1}, {t0}, vcc")
            for d, q in ((SRD_PX, SRD_X), (SRD_PW, SRD_W)):
                A(f"s_mov_b64 s[{d}:{d+1}], s[{q}:{q+1}]\ns_mov_b32 s{d+2}, s{q+2}\ns_mov_b32 s{d+3}, 0x20000")
        pre = o.get("pre", [("x", 1), ("w", 2), ("w", 3)])
        for g in pre:
            for ins in self.dma_group(*g): em(ins)
        for st, t0_, cond in o.get("pft", []):
            if st < 0:
                for x in self.pf_ops(t0_, cond): em(x)
        self.pend0 = []
        for g in [("x", 1), ("w", 2), ("w", 3), ("x", 2), ("w", 4)]:
            if g not in pre: self.pend0 += self.dma_group(*g)
        A(f"v_and_b32 {t0}, 15, {L}\nv_lshlrev_b32 {t0}, 7, {t0}\ns_lshl_b32 s3, s{S_RH}, 14\nv_add_u32 {t0}, s3, {t0}")
        A(f"v_lshrrev_b32 {t1}, 4, {L}\nv_bfe_u32 {t2}, {L}, 1, 3\nv_xor_b32 {t1}, {t1}, {t2}")
        A(f"v_lshl_add_u32 v{V_XA}, {t1}, 4, {t0}")
        A(f"v_xor_b32 v{V_XA+1}, 64, v{V_XA}")
        for t in range(2): A(f"v_add_u32 v{V_XA+2+t}, 32768, v{V_XA+t}")
        A(f"v_lshrrev_b32 {t0}, 4, {L}\nv_mul_u32_u24 {t0}, 3072, {t0}")
        A(f"v_bfe_u32 {t1}, {L}, 2, 2\nv_lshl_add_u32 {t0}, {t1}, 6, {t0}")
        A(f"v_bfe_u32 {t1}, {L}, 4, 1\nv_lshl_add_u32 {t0}, {t1}, 5, {t0}")
        A(f"v_and_b32 {t1}, 3, {L}\nv_lshl_add_u32 {t0}, {t1}, 3, {t0}")
        A(f"s_lshl_b32 s3, s{S_HH}, 9\ns_add_u32 s3, s3, {WB}\nv_add_u32 v{V_WA}, s3, {t0}")
        A(f"v_xor_b32 v{V_WA+1}, 32, v{V_WA}")
        for i in range(4): A(f"v_mov_b32 v{V_ONE+i}, 0x3f803f80")
        A(f"v_and_b32 {t0}, 31, {L}\nv_lshrrev_b32 {t1}, 5, {L}\nv_lshlrev_b32 {t1}, 2, {t1}\nv_sub_u32 {t0}, {t0}, {t1}")
        A(f"v_mov_b32 {t1}, 0x3f80\nv_mov_b32 {t2}, 0x3f800000")
        for j in range(2):
            for u in range(4):
                f0 = 16 * j + 8 * (u // 2) + 2 * (u % 2)
                d = V_ID + 4 * j + u
                A(f"v_cmp_eq_u32 vcc, {f0}, {t0}\nv_cndmask_b32 v{d}, 0, {t1}, vcc")
                A(f"v_cmp_eq_u32 vcc, {f0+1}, {t0}\nv_cndmask_b32 v{d}, v{d}, {t2}, vcc")
        A(f"s_mov_b32 s{S_L2E}, 0x3fb8aa3b\ns_mov_b32 s{S_L2E+1}, 0x3fb8aa3b")

    def f1base(self, s):
        self.A(f"s_lshl_b32 s{s}, s{S_B}, 5\ns_add_u32 s{s}, s{s}, s{S_HEAD}\ns_lshl_b32 s{s}, s{s}, 7\ns_add_u32 s{s}, s{s}, {WS_F1}")
    def f1w(self, s):
        self.f1base(s); self.A(f"s_lshl_b32 s3, s{S_RH}, 3\ns_add_u32 s3, s3, s{S_R}\ns_lshl_b32 s3, s3, 3\ns_add_u32 s{s}, s{s}, s3")
    def f2w(self, s):
        self.A(f"s_lshl_b32 s{s}, s{S_B}, 4\ns_lshl_b32 s3, s{S_R}, 1\ns_add_u32 s{s}, s{s}, s3\ns_add_u32 s{s}, s{s}, s{S_RH}")
        self.A(f"s_lshl_b32 s{s}, s{s}, 5\ns_add_u32 s{s}, s{s}, s{S_HEAD}\ns_lshl_b32 s{s}, s{s}, 3\ns_add_u32 s{s}, s{s}, {WS_F2}")

    def kx(self, i):
        return f"s_bfe_u32 s{S_KX}, s{S_KT + i//8}, {(4 << 16) | (4*(i%8))}\ns_lshl_b32 s{S_KX}, s{S_KX}, 7"
    def kw(self, h):
        if h % 2: return f"s_add_u32 s{S_KW}, s{S_KW}, {32*6144}"
        i = h // 2
        return f"s_bfe_u32 s{S_KW}, s{S_KT + i//8}, {(4 << 16) | (4*(i%8))}\ns_mul_i32 s{S_KW}, s{S_KW}, {64*6144}"
    def dma_group(self, kind, i):
        out = []
        if kind == "x":
            base = XS[i % 3]
            for j in range(8):
                if j % 4 == 0: out.append(f"s_add_u32 m0, s{S_MX}, {base + 4096*(j//4)}" if base + j else f"s_mov_b32 m0, s{S_MX}")
                out.append(("vm", ("x", i), f"buffer_load_dwordx4 v{V_XD+j}, {srd(SRD_X)}, s{S_KX} offen offset:{1024*(j%4)}{self.o.get('xpol','')} lds"))
            if not self.o.get("kperm"): out.append(f"s_add_u32 s{S_KX}, s{S_KX}, 128")
            elif i < 15: out += self.kx(i + 1).split("\n")
        else:
            base = 12288 * (i % 5)
            out.append(f"s_add_u32 m0, s{S_MW}, {base}" if base else f"s_mov_b32 m0, s{S_MW}")
            for p in range(3):
                out.append(("vm", ("w", i), f"buffer_load_dwordx4 v{V_WD+p}, {srd(SRD_W)}, s{S_KW} offen offset:{1024*p}{self.o.get('wpol','')} lds"))
            if not self.o.get("kperm"): out.append(f"s_add_u32 s{S_KW}, s{S_KW}, {32*6144}")
            elif i < 31: out += self.kw(i + 1).split("\n")
        return out

    def pf_ops(self, t, cond):
        o = self.o
        out = []
        if cond:
            out += [f"s_and_b32 s3, s{S_PHASE}, {cond[0]}\ns_cmp_eq_u32 s3, {cond[1]}\ns_cselect_b32 s{SRD_PX+2}, s{SRD_X+2}, 0\ns_cselect_b32 s{SRD_PW+2}, s{SRD_W+2}, 0"]
        out += [f"s_mov_b32 s{S_PFX}, {128*t}", f"s_mov_b32 s{S_PFW}, {64*6144*t}",
                ("vm", "pfw", f"buffer_load_dword v{V_PD+1}, v{V_PW}, {srd(SRD_PW)}, s{S_PFW} offen{o.get('pfpolw','')}"),
                ("vm", "pfx", f"buffer_load_dword v{V_PD}, v{V_PX}, {srd(SRD_PX)}, s{S_PFX} offen{o.get('pfpolx','')}")]
        return out
    def pf_at(self, i):
        out = []
        for st, t0_, cond in self.o.get("pft", []):
            if st == i: out += self.pf_ops(t0_, cond)
        return out
    def x_reads(self, gm):
        i, m = divmod(gm, 8)
        slot = i % 3
        off = (32768 if slot >= 1 else 0) + 2048 * m
        return [f"ds_read_b128 {ar(A_X + 8*(gm%4) + 4*s, 4)}, v{V_XA + s + (2 if slot == 2 else 0)} offset:{off}" for s in range(2)]
    def w_reads(self, i):
        out = []
        for n in range(6):
            p, nb = divmod(n, 2)
            for s in range(2):
                pos = (2 * i + s) % 5
                for rd in range(2):
                    out.append(f"ds_read_b64_tr_b16 {ar(A_W + 48*(i&1) + 4*(2*n+s) + 2*rd, 2)}, v{V_WA+nb} offset:{pos*12288 + 1024*p + 256*rd}")
        return out
    def order1(self, m):
        ns = list(range(6)) if m % 2 == 0 else list(range(5, -1, -1))
        return [(n, s) for k, n in enumerate(ns) for s in ((0, 1) if k % 2 == 0 else (1, 0))]
    def mfmas1(self, i, m):
        out = []; seen = set()
        for n, s in self.order1(m):
            p, nb = divmod(n, 2)
            w = ar(A_W + 48 * (i & 1) + 4 * (2 * n + s), 4)
            x = ar(A_X + 8 * ((8 * i + m) % 4) + 4 * s, 4)
            d = vr(ACC[p] + 8 * m + 4 * nb, 4)
            c = "0" if (i == 0 and n not in seen) else d
            seen.add(n)
            a, b = (w, x) if p < 2 else (x, w)
            out.append(f"{MF16} {d}, {a}, {b}, {c}")
        return out
    def pack_ops(self, m):
        out = []; done = []
        for n, s in self.order1(m):
            if n in done: continue
            done.append(n)
            p, nb = divmod(n, 2)
            src = ACC[p] + 8 * m + 4 * nb
            if p < 2: dst = ACC[p] + 8 * (m // 2) + 4 * nb + 2 * (m % 2)
            else: dst = ACC[2] + 4 * m + 2 * nb
            out.append((n, [f"v_cvt_pk_bf16_f32 v{dst}, v{src}, v{src+1}", f"v_cvt_pk_bf16_f32 v{dst+1}, v{src+2}, v{src+3}"]))
        res = []
        parts = []
        for n, _ in out:
            if n // 2 not in parts: parts.append(n // 2)
        d = dict(out)
        for p in parts:
            res += d[2 * p] + d[2 * p + 1]
            if p == 2:
                b = ACC[2] + 4 * m
                res += [f"v_permlane16_swap_b32 v{b}, v{b+2}", f"v_permlane16_swap_b32 v{b+1}, v{b+3}"]
            elif m % 2 == 1:
                b = ACC[p] + 8 * (m // 2)
                for nb in range(2):
                    res += [f"v_permlane16_swap_b32 v{b+4*nb}, v{b+4*nb+2}", f"v_permlane16_swap_b32 v{b+4*nb+1}, v{b+4*nb+3}"]
        cv = [x for x in res if "cvt" in x]; sw = [x for x in res if "swap" in x]
        return cv + sw

    def phase1(self):
        A = self.A; o = self.o; em = self.em
        self.hops()
        em(("wait", [("w", 0), ("x", 0), ("w", 1)], "")); A("s_barrier")
        self.stamp("first data")
        self.padspin("first")
        for r in self.x_reads(0) + self.w_reads(0)[:16] + self.x_reads(1) + self.w_reads(0)[16:] + self.x_reads(2): A(r)
        pend = list(self.pend0)
        for i in range(16):
            fill = [[] for _ in range(96)]
            pre = {}
            for m in range(5):
                for k, r in enumerate(self.x_reads(8 * i + m + 3)):
                    fill[12 * m + (9 if m == 0 else 2) + 2 * k].append(r)
            pre[0] = "s_waitcnt lgkmcnt(12)"
            pre[8] = "s_waitcnt lgkmcnt(0)"
            pre[36] = "s_waitcnt lgkmcnt(4)"
            pre[48] = "s_waitcnt lgkmcnt(4)"
            pre[60] = "s_waitcnt lgkmcnt(0)"
            bar2 = o.get("bar2")
            if bar2:
                fill[8].append("s_barrier")
                if 2 * i + 5 < 32: pend += self.dma_group("w", 2 * i + 5)
                if 2 * i + 6 < 32: pend += self.dma_group("w", 2 * i + 6)
                pend += self.pf_at(i)
            slots = [g for g in range(o.get("dma0", 10 if bar2 else 1), o.get("dma1", 59)) if not fill[g] and g not in pre and g + 1 not in pre]
            if pend:
                step = len(slots) / len(pend)
                assert step >= 1
                for k, x in enumerate(pend): fill[slots[int(k * step)]].append(x)
                pend = []
            need = [("x", i + 1), ("w", 2 * i + 2), ("w", 2 * i + 3)] if i < 15 else ["cnt"]
            if i == 0: need += ["phi"]
            need += self.extra_need(i)
            for k, r in enumerate(self.extra_tail(i)): fill[61 + k].append(r)
            fill[60].append(("wait", need, "")); fill[60].append("s_barrier")
            if i < 15:
                rd = self.x_reads(8 * i + 8) + self.w_reads(i + 1)[:16] + self.x_reads(8 * i + 9) + self.w_reads(i + 1)[16:] + self.x_reads(8 * i + 10)
                for k, r in enumerate(rd): fill[61 + k].append(r)
                if bar2:
                    if i + 3 < 16:
                        for k, x in enumerate(self.dma_group("x", i + 3)): fill[62 + (5 * k) // 2].append(x)
                else:
                    if 2 * i + 5 < 32:
                        ops = self.dma_group("w", 2 * i + 5)
                        ops += self.pf_at(i) + self.extra_after_w(i)
                        for k, x in enumerate(ops): fill[62 + 3 * k].append(x)
                    if i + 3 < 16: pend += self.dma_group("x", i + 3)
                    if 2 * i + 6 < 32: pend += self.dma_group("w", 2 * i + 6)
            if i == 0:
                fill[93].append(("call", self.phi_reads))
            pend += self.extra_pend(i)
            if i == 11 and not getattr(self, "own_cnt", False):
                pend += [("vm", "cnt", f"buffer_load_dwordx2 {vr(V_CNT,2)}, off, {srd(SRD_DBG)}, 0 sc1")]
            if i == 15 and not o.get("nopack"):
                qc = []; qs = []; placed = {}
                cost = lambda x: 8 if isinstance(x, str) and "permlane" in x else 4
                import re as _re
                regs = lambda x: [int(t) for t in _re.findall(r"v(\d+)", x.split(None, 1)[1])]
                for g in range(12, 96):
                    if g % 12 == 1:
                        ops = self.pack_ops(g // 12 - 1)
                        qc += [x for x in ops if "cvt" in x]; qs += [x for x in ops if "cvt" not in x]
                    room = 8 - sum(cost(x) for x in fill[g]) - (8 if g + 1 in pre else 0)
                    pend_dst = {regs(x)[0] for x in qc}
                    qs.sort(key=lambda x: 0 if 64 <= regs(x)[0] < 72 else 1)
                    if room >= 8 and qs and (not qc or 64 <= regs(qs[0])[0] < 72) and not (set(regs(qs[0])) & pend_dst) and all(placed.get(r, -9) <= g - 2 for r in regs(qs[0])):
                        x = qs.pop(0); fill[g].append(x)
                        for r in regs(x): placed[r] = g
                        continue
                    while qc and room >= 4:
                        x = qc.pop(0); room -= 4; fill[g].append(x); placed[regs(x)[0]] = g
                self.pack_left = qc + qs
            g = 0
            for m in range(8):
                for mf in self.mfmas1(i, m):
                    if g in pre: A(pre[g])
                    A(mf)
                    for x in fill[g]: em(x)
                    g += 1
            if i in (0, 7, 14) or "stamps" in o: self.stamp(f"step{i}")
        left = list(getattr(self, "pack_left", []))
        for m in (range(7, 8) if not o.get("nopack") else range(8)): left += self.pack_ops(m)
        self.finish_pack([x for x in left if "cvt" in x] + [x for x in left if "cvt" not in x])
        A("L_E1:")
        self.stamp("p1end")
        self.padspin("p1")

    def get_nonce(self):
        A = self.A
        lab, done = self.label("nl"), self.label("nd")
        A(f"s_mov_b32 s{S_SPIN}, 0\n{lab}:")
        A(f"v_readfirstlane_b32 s{S_NON}, v{V_CNT}\nv_readfirstlane_b32 s{S_NON+1}, v{V_CNT+1}")
        A(f"s_add_u32 s{S_SPIN}, s{S_SPIN}, 1\ns_nop 2\ns_cmp_lg_u32 s{S_NON}, 0\ns_cbranch_scc1 {done}")
        A(f"s_cmp_ge_u32 s{S_SPIN}, {SPIN_MAX}\ns_cbranch_scc1 {done}")
        A(f"buffer_load_dwordx2 {vr(V_CNT,2)}, off, {srd(SRD_DBG)}, 0 sc1\ns_waitcnt vmcnt(0)\ns_branch {lab}")
        A(f"{done}:")
    def phi_reads(self):
        A = self.A; L = f"v{V_LANE}"; t0, t1 = f"v{V_T+2}", f"v{V_T+3}"
        A(f"v_lshrrev_b32 {t0}, 5, {L}\nv_lshlrev_b32 {t0}, 9, {t0}")
        A(f"v_bfe_u32 {t1}, {L}, 2, 2\nv_lshl_add_u32 {t0}, {t1}, 6, {t0}")
        A(f"v_bfe_u32 {t1}, {L}, 4, 1\nv_lshl_add_u32 {t0}, {t1}, 5, {t0}")
        A(f"v_and_b32 {t1}, 3, {L}\nv_lshl_add_u32 {t0}, {t1}, 3, {t0}")
        A(f"s_lshl_b32 s3, s{S_HH}, 11\ns_add_u32 s3, s3, {PHI}\nv_add_u32 {t0}, s3, {t0}")
        for j in range(2):
            for rd in range(2):
                A(f"ds_read_b64_tr_b16 {vr(V_PHI + 4*j + 2*rd, 2)}, {t0} offset:{1024*j + 256*rd}")

    def unit_S0(self, frag, P):
        return [f"{MF32} {vr(P,16)}, {vr(V_PHI,4)}, {vr(frag,4)}, 0", f"{MF32} {vr(P,16)}, {vr(V_PHI+4,4)}, {vr(frag+4,4)}, {vr(P,16)}"]
    def unit_S1(self, P):
        a, b = V_ST, V_ST + 1
        out = [f"v_max3_f32 v{a}, v{P}, v{P+1}, v{P+2}", f"v_max3_f32 v{b}, -v{P}, -v{P+1}, -v{P+2}"]
        for k in range(3, 15, 2):
            out += [f"v_max3_f32 v{a}, v{a}, v{P+k}, v{P+k+1}", f"v_max3_f32 v{b}, v{b}, -v{P+k}, -v{P+k+1}"]
        out += [f"v_max_f32 v{a}, v{a}, v{P+15}", f"v_max_f32 v{b}, v{b}, -v{P+15}"]
        out += [f"v_permlane32_swap_b32 v{a}, v{b}", f"v_max_f32 v{a}, v{a}, v{b}", f"v_mul_f32 v{a}, 0xbfb8aa3b, v{a}", f"v_mov_b32 v{b}, v{a}",
                f"v_permlane32_swap_b32 v{a}, v{b}"]
        return out
    def unit_S2(self, P, E):
        st = vr(V_ST, 2); c = f"s[{S_L2E}:{S_L2E+1}]"
        out = [f"v_pk_fma_f32 {vr(E+2*k,2)}, {vr(P+2*k,2)}, {c}, {st} op_sel_hi:[1,1,0]" for k in range(8)]
        out += [f"v_pk_fma_f32 {vr(P+2*k,2)}, {vr(P+2*k,2)}, {c}, {st} op_sel:[0,0,1] op_sel_hi:[1,1,1] neg_lo:[1,0,0] neg_hi:[1,0,0]" for k in range(8)]
        return out
    def unit_S3(self, P, E):
        return [f"v_exp_f32 v{E+k}, v{E+k}" for k in range(16)] + [f"v_exp_f32 v{P+k}, v{P+k}" for k in range(16)]
    def unit_S4(self, P, E):
        ta, tb = V_ST + 2, V_ST + 4
        out = []
        for t, R in ((ta, E), (tb, P)):
            out.append(f"v_pk_add_f32 {vr(t,2)}, {vr(R,2)}, {vr(R+2,2)}")
            out += [f"v_pk_add_f32 {vr(t,2)}, {vr(t,2)}, {vr(R+k,2)}" for k in range(4, 16, 2)]
        a, b = V_ST, V_ST + 1
        out += [f"v_add_f32 v{a}, v{ta}, v{ta+1}", f"v_add_f32 v{b}, v{tb}, v{tb+1}"]
        out += [f"v_permlane32_swap_b32 v{a}, v{b}", f"v_add_f32 v{a}, v{a}, v{b}", f"v_rcp_f32 v{a}, v{a}", f"v_mov_b32 v{b}, v{a}",
                f"v_permlane32_swap_b32 v{a}, v{b}"]
        return out
    def unit_S5a(self, P, E):
        st = vr(V_ST, 2)
        out = [f"v_pk_mul_f32 {vr(E+2*k,2)}, {vr(E+2*k,2)}, {st} op_sel_hi:[1,0]" for k in range(8)]
        out += [f"v_pk_mul_f32 {vr(P+2*k,2)}, {vr(P+2*k,2)}, {st} op_sel:[0,1] op_sel_hi:[1,1]" for k in range(8)]
        return out
    def unit_S5b(self, P, E, F0, F1):
        return [f"v_cvt_pk_bf16_f32 v{F0+k}, v{E+2*k}, v{E+2*k+1}" for k in range(8)] + [f"v_cvt_pk_bf16_f32 v{F1+k}, v{P+2*k}, v{P+2*k+1}" for k in range(8)]

    def interleave(self, main, extra, start=0, every=1):
        k = 0
        for idx, x in enumerate(main):
            self.em(x)
            if idx >= start and (idx - start) % every == 0 and k < len(extra):
                e = extra[k]; k += 1
                for y in (e if isinstance(e, list) else [e]): self.em(y)
        for e in extra[k:]:
            for y in (e if isinstance(e, list) else [e]): self.em(y)

    def wo_setup(self):
        A = self.A; L = f"v{V_LANE}"; t0, t1 = f"v{V_T}", f"v{V_T+1}"
        V = V_XD
        A(f"s_lshr_b32 s{S_T0}, s{S_J}, 2\ns_lshl_b32 s{S_T0}, s{S_T0}, 8\ns_lshl_b32 s3, s{S_W}, 6\ns_add_u32 s{S_T0}, s{S_T0}, s3")
        A(f"v_lshrrev_b32 {t0}, 2, {L}\nv_lshlrev_b32 {t0}, 11, {t0}\nv_add_u32 {t0}, s{S_T0}, {t0}")
        A(f"v_bfe_u32 {t1}, {L}, 4, 1\nv_lshlrev_b32 {t1}, 1, {t1}\nv_xor_b32 {t1}, {t1}, {L}\nv_and_b32 {t1}, 3, {t1}")
        A(f"v_lshl_add_u32 v{V}, {t1}, 4, {t0}")
        for i in range(1, 4): A(f"v_add_u32 v{V+i}, {32768-1024}, v{V+i-1}")
        A(f"s_add_u32 s{S_MX}, s{S_W}, 1\ns_lshl_b32 s{S_MX}, s{S_MX}, 15\ns_mov_b32 s{S_KX}, 0")
        A(f"v_lshrrev_b32 {t0}, 5, {L}\nv_lshlrev_b32 {t0}, 10, {t0}\nv_add_u32 {t0}, s{S_MX}, {t0}")
        A(f"v_bfe_u32 {t1}, {L}, 4, 1\nv_mul_u32_u24 {t1}, {256+32}, {t1}\nv_add_u32 {t0}, {t0}, {t1}")
        A(f"v_bfe_u32 {t1}, {L}, 2, 2\nv_lshl_add_u32 {t0}, {t1}, 6, {t0}")
        A(f"v_and_b32 {t1}, 3, {L}\nv_lshl_add_u32 v{V+4}, {t1}, 3, {t0}\nv_xor_b32 v{V+5}, 32, v{V+4}")
    def wo_dma(self, rnd):
        out = []
        if self.o.get("nowodma"):
            self.vm_done.append(("wo", rnd))
            return ["s_nop 0"] * 48
        for grp in range(8):
            ops = [f"s_add_u32 m0, s{S_MX}, {4096*grp}" if grp else f"s_mov_b32 m0, s{S_MX}"]
            out.append(ops[0])
            for i in range(4):
                out.append(("vm", ("wo", rnd), f"buffer_load_dwordx4 v{V_XD+i}, {srd(SRD_WO)}, s{S_KX} offen offset:{1024*i} lds"))
            out.append(f"s_add_u32 s{S_KX}, s{S_KX}, {64*2048}")
        return out
    def wo_reads(self, rnd):
        out = []
        for kb in range(16):
            for nb in range(2):
                for rd in range(2):
                    out.append(f"ds_read_b64_tr_b16 {ar(128*rnd + 8*kb + 4*nb + 2*rd, 2)}, v{V_XD+4+nb} offset:{2048*kb + 512*rd}")
        return out

    def e1(self):
        A = self.A; o = self.o; em = self.em
        L = f"v{V_LANE}"; t0, t1 = f"v{V_T}", f"v{V_T+1}"
        V_TW, V_TR = V_WD, V_WD + 1
        KVO, ZO = 160, 176
        WSET = [(32, 48), (96, 112)]
        A(f"s_mul_i32 s3, s{S_RH}, 0x80008000")
        for k in range(8): A(f"v_xor_b32 v{V_PHI+k}, s3, v{V_PHI+k}")
        for x in self.unit_S0(ACC[1], WSET[0][0]): A(x)
        self.wo_setup()
        A(f"s_lshl_b32 s{S_T1}, s{S_W}, 13")
        A(f"v_and_b32 {t0}, 31, {L}\nv_mul_u32_u24 {t0}, {TSTR}, {t0}\nv_lshrrev_b32 {t1}, 5, {L}\nv_lshl_add_u32 {t0}, {t1}, 3, {t0}\nv_add_u32 v{V_TW}, s{S_T1}, {t0}")
        A(f"v_lshlrev_b32 {t0}, 3, {t1}\nv_bfe_u32 {t1}, {L}, 2, 2\nv_add_u32 {t0}, {t0}, {t1}\nv_mul_u32_u24 {t0}, {TSTR}, {t0}")
        A(f"v_bfe_u32 {t1}, {L}, 4, 1\nv_lshl_add_u32 {t0}, {t1}, 5, {t0}\nv_and_b32 {t1}, 3, {L}\nv_lshl_add_u32 {t0}, {t1}, 3, {t0}\nv_add_u32 v{V_TR}, s{S_T1}, {t0}")
        dma = self.wo_dma(0)
        def kv_mfmas(u):
            out = []
            for sg in (1, 0):
                kv = ar(A_KVX, 16) if sg else vr(KVO, 16)
                z = ar(A_ZX, 16) if sg else vr(ZO, 16)
                for j in range(2):
                    T = ar(A_T + 8 * sg + 4 * j, 4)
                    first = (u == 0 and j == 0)
                    out.append(f"{MF32} {kv}, {T}, {vr(ACC[2] + 8*u + 4*j, 4)}, {'0' if first else kv}")
                    out.append(f"{MF32} {z}, {T}, {vr(V_ONE,4)}, {'0' if first else z}")
            return out
        for u in range(4):
            P, E = WSET[u % 2]
            for x in self.unit_S1(P) + self.unit_S2(P, E): A(x)
            ex = []
            prev = kv_mfmas(u - 1) if u else []
            d = dma[12 * u:12 * u + 12]
            s3 = self.unit_S3(P, E)
            if prev: A("s_waitcnt lgkmcnt(0)")
            for k, x in enumerate(s3):
                A(x)
                if k % 4 == 0 and prev: A(prev[k // 4])
                if k % 4 == 2 and d: em(d.pop(0))
                if k % 8 == 3 and d: em(d.pop(0))
            assert not d
            for x in self.unit_S4(P, E) + self.unit_S5a(P, E): A(x)
            s5 = self.unit_S5b(P, E, E, E + 8)
            nxt = self.unit_S0(ACC[1] + 8 * (u + 1), WSET[(u + 1) % 2][0]) if u < 3 else []
            self.interleave(s5, nxt, start=0, every=6)
            for sg in range(2):
                for q in range(4):
                    A(f"ds_write_b64 v{V_TW}, {vr(E + 8*sg + 2*q, 2)} offset:{64*sg + 16*q}")
            for sg in (1, 0):
                for j in range(2):
                    for rd in range(2):
                        A(f"ds_read_b64_tr_b16 {ar(A_T + 8*sg + 4*j + 2*rd, 2)}, v{V_TR} offset:{64*sg + (16*j + 4*rd)*TSTR}")
        self.stamp("e1 units")
        A("s_waitcnt lgkmcnt(0)")
        last = kv_mfmas(3)
        V_XW, V_XR, V_ZW, V_ZR = V_XA, V_XA + 1, V_XA + 2, V_XA + 3
        for x in last[:4]: A(x)
        A(f"v_lshlrev_b32 {t0}, 4, {L}\nv_add_u32 v{V_XW}, s{S_T1}, {t0}\nv_xor_b32 v{V_XR}, 16384, v{V_XW}")
        A(f"v_lshrrev_b32 {t0}, 5, {L}\nv_lshlrev_b32 {t0}, 4, {t0}\nv_add_u32 v{V_ZW}, s{S_T1}, {t0}\nv_xor_b32 v{V_ZR}, 16384, v{V_ZW}")
        for x in last[4:]: A(x)
        for q in range(4): A(f"ds_write_b128 v{V_XW}, {ar(A_KVX + 4*q, 4)} offset:{X1_OFF + 1024*q}")
        A(f"s_mov_b32 exec_lo, 1\ns_mov_b32 exec_hi, 1")
        for q in range(4): A(f"ds_write_b128 v{V_ZW}, {ar(A_ZX + 4*q, 4)} offset:{X1Z_OFF + 32*q}")
        A("s_mov_b64 exec, -1")
        A("s_waitcnt lgkmcnt(0)\ns_barrier")
        R = 96
        for q in range(4): A(f"ds_read_b128 {vr(R + 4*q, 4)}, v{V_XR} offset:{X1_OFF + 1024*q}")
        for q in range(4): A(f"ds_read_b128 {vr(R + 16 + 4*q, 4)}, v{V_ZR} offset:{X1Z_OFF + 32*q}")
        A(f"s_lshl_b32 s{S_T0}, s{S_B}, 5\ns_add_u32 s{S_T0}, s{S_T0}, s{S_HEAD}\ns_lshl_b32 s{S_T0}, s{S_T0}, 3\ns_add_u32 s{S_T0}, s{S_T0}, s{S_R}")
        A(f"s_lshl_b32 s{S_T0}, s{S_T0}, 1\ns_add_u32 s{S_T0}, s{S_T0}, s{S_RH}")
        A(f"s_lshl_b32 s{S_T2}, s{S_T0}, 6\ns_add_u32 s{S_T2}, s{S_T2}, {WS_Z}\ns_lshl_b32 s{S_T0}, s{S_T0}, 11")
        A(f"v_lshlrev_b32 {t1}, 4, {L}")
        A("s_waitcnt lgkmcnt(4)")
        for k in range(8): A(f"v_pk_add_f32 {vr(KVO+2*k,2)}, {vr(KVO+2*k,2)}, {vr(R+2*k,2)}")
        for k in range(8): A(f"v_cvt_pk_bf16_f32 v{KVO+k}, v{KVO+2*k}, v{KVO+2*k+1}")
        for j in range(2): em(("vm", "pub1", f"buffer_store_dwordx4 {vr(KVO+4*j,4)}, {t1}, {srd(SRD_WS)}, s{S_T0} offen offset:{1024*j} sc1"))
        A("s_waitcnt lgkmcnt(0)")
        for k in range(8): A(f"v_pk_add_f32 {vr(ZO+2*k,2)}, {vr(ZO+2*k,2)}, {vr(R+16+2*k,2)}")
        for k in range(8): A(f"v_cvt_pk_bf16_f32 v{ZO+k}, v{ZO+2*k}, v{ZO+2*k+1}")
        A(f"s_mov_b32 exec_lo, 1\ns_mov_b32 exec_hi, 1")
        for j in range(2): em(("vm", "pub1", f"buffer_store_dwordx4 {vr(ZO+4*j,4)}, {t0}, {srd(SRD_WS)}, s{S_T2} offen offset:{32*j} sc1"))
        A("s_mov_b64 exec, -1")
        self.stamp("pub1")

    def flag_store(self, fn, tags):
        A = self.A
        fn(S_T0)
        self.em(("wait", tags, ""))
        A(f"s_mov_b64 exec, 1")
        self.em(("vm", "flag", f"buffer_store_dwordx2 {vr(V_CNT,2)}, off, {srd(SRD_WS)}, s{S_T0} sc1"))
        A("s_mov_b64 exec, -1")

    def poll(self, soff, nlanes):
        A = self.A
        lab, done = self.label("poll"), self.label("pdone")
        A(f"v_lshlrev_b32 v{V_T+6}, 3, v{V_LANE}\ns_mov_b32 s{S_SPIN}, 0")
        A("s_mov_b32 exec_hi, 0")
        if nlanes < 32: A(f"s_mov_b32 exec_lo, {(1 << nlanes) - 1}")
        A(f"{lab}:")
        A(f"buffer_load_dwordx2 {vr(V_T+2,2)}, v{V_T+6}, {srd(SRD_WS)}, {soff} offen sc1")
        A(f"s_add_u32 s{S_SPIN}, s{S_SPIN}, 1")
        A("s_waitcnt vmcnt(0)")
        A(f"v_cmp_ne_u64 vcc, s[{S_NON}:{S_NON+1}], {vr(V_T+2,2)}")
        A(f"s_cmp_ge_u32 s{S_SPIN}, {SPIN_MAX}\ns_cbranch_scc1 {done}")
        A(f"s_nop 4\ns_cbranch_vccnz {lab}")
        A(f"{done}:\ns_mov_b64 exec, -1")
        self.vm_done += self.vm; self.vm = []

    FQ = [64, 80, 128, 144]
    def e2(self):
        A = self.A; o = self.o; em = self.em
        WSET = [(32, 48), (96, 112)]
        self.em(("wait", [("wo", 0)], ""))
        r1 = self.wo_reads(0)
        for x in self.unit_S0(ACC[0], WSET[0][0]): A(x)
        for x in r1: A(x)
        self.stamp("r1")
        dma = self.wo_dma(1)
        for u in range(4):
            P, E = WSET[u % 2]
            for x in self.unit_S1(P) + self.unit_S2(P, E): A(x)
            d = dma[16 * (u - 1):16 * u] if u else []
            if u == 1: A("s_waitcnt lgkmcnt(0)")
            for k, x in enumerate(self.unit_S3(P, E)):
                A(x)
                if k % 2 == 1 and d: em(d.pop(0))
            assert not d
            for x in self.unit_S4(P, E) + self.unit_S5a(P, E): A(x)
            s5 = self.unit_S5b(P, E, self.FQ[u], self.FQ[u] + 8)
            nxt = self.unit_S0(ACC[0] + 8 * (u + 1), WSET[(u + 1) % 2][0]) if u < 3 else []
            self.interleave(s5, nxt, start=0, every=6)
            if u == 0:
                self.get_nonce()
                self.flag_store(self.f1w, ["pub1"])
        self.stamp("e2")

    def e3(self):
        A = self.A; o = self.o; em = self.em
        L = f"v{V_LANE}"; t0, t1 = f"v{V_T}", f"v{V_T+1}"
        V_XW, V_XR = V_XA, V_XA + 1
        A(f"s_lshl_b32 s{S_T1}, s{S_B}, 5\ns_add_u32 s{S_T1}, s{S_T1}, s{S_HEAD}")
        A(f"s_lshl_b32 s{S_T2}, s{S_T1}, 10\ns_add_u32 s{S_T2}, s{S_T2}, {WS_Z}")
        A(f"s_lshl_b32 s{S_T1}, s{S_T1}, 15\ns_lshl_b32 s3, s{S_RH}, 11\ns_add_u32 s{S_T1}, s{S_T1}, s3")
        A(f"v_lshlrev_b32 {t0}, 4, {L}")
        tz = f"v{V_T+4}"; tz2 = f"v{V_T+5}"
        A(f"v_bfe_u32 {t1}, {L}, 3, 1\nv_lshlrev_b32 {t1}, 2, {t1}\nv_and_b32 {tz}, 3, {L}\nv_add_u32 {tz}, {tz}, {t1}\nv_lshlrev_b32 {tz}, 7, {tz}")
        A(f"v_lshrrev_b32 {t1}, 5, {L}\nv_lshl_add_u32 {tz}, {t1}, 4, {tz}\ns_lshl_b32 s3, s{S_RH}, 6\nv_add_u32 {tz}, s3, {tz}\nv_xor_b32 {tz2}, 64, {tz}")
        self.f1base(S_T0)
        self.poll(f"s{S_T0}", 16)
        self.stamp("sync1")
        PL, ZF, S, KVF = 0, 96, 112, 160
        for r in range(8):
            for j in range(2):
                em(("vm", ("pl", r), f"buffer_load_dwordx4 {vr(PL + 8*r + 4*j, 4)}, {t0}, {srd(SRD_WS)}, s{S_T1} offen offset:{1024*j} sc1"))
            if r < 7: A(f"s_add_u32 s{S_T1}, s{S_T1}, 4096")
        for sl in range(2):
            for j in range(2):
                em(("vm", "zl", f"buffer_load_dwordx4 {vr(ZF + 8*sl + 4*j, 4)}, {tz2 if sl else tz}, {srd(SRD_WS)}, s{S_T2} offen offset:{32*j} sc1"))
        for r in range(8):
            em(("wait", [("pl", r)], ""))
            for j in range(2):
                A(f"{MF32} {vr(S,16)}, {vr(V_ID + 4*j, 4)}, {vr(PL + 8*r + 4*j, 4)}, {'0' if r + j == 0 else vr(S,16)}")
        A(f"s_lshl_b32 s{S_T1}, s{S_B}, 4\ns_lshl_b32 s3, s{S_R}, 1\ns_add_u32 s{S_T1}, s{S_T1}, s3\ns_add_u32 s{S_T1}, s{S_T1}, s{S_RH}")
        A(f"s_lshl_b32 s{S_T1}, s{S_T1}, 5\ns_add_u32 s{S_T1}, s{S_T1}, s{S_HEAD}\ns_lshl_b32 s{S_T1}, s{S_T1}, 13\ns_add_u32 s{S_T1}, s{S_T1}, {WS_O}")
        A(f"v_bfe_u32 {t0}, {L}, 4, 1\nv_lshlrev_b32 {t0}, 10, {t0}\nv_lshrrev_b32 {t1}, 5, {L}\nv_lshl_add_u32 {t0}, {t1}, 8, {t0}\nv_and_b32 {t1}, 15, {L}\nv_lshl_add_u32 {t0}, {t1}, 4, {t0}")
        for k in range(8): A(f"v_cvt_pk_bf16_f32 v{KVF+k}, v{S+2*k}, v{S+2*k+1}")
        for j in range(2): A(f"ds_write_b128 v{V_XW}, {vr(KVF + 4*j, 4)} offset:{X2_OFF + 1024*j}")
        A("s_waitcnt lgkmcnt(0)\ns_barrier")
        for j in range(2): A(f"ds_read_b128 {vr(KVF + 8 + 4*j, 4)}, v{V_XR} offset:{X2_OFF + 1024*j}")
        em(("wait", ["zl"], ""))
        self.stamp("kvsum")
        SETS = [(0, 16), (32, 48)]
        def mm(u):
            N, D = SETS[u % 2]; F = self.FQ[u]
            den = [f"{MF32} {vr(D,16)}, {vr(ZF + 4*k, 4)}, {vr(F + 4*k, 4)}, {'0' if k == 0 else vr(D,16)}" for k in range(4)]
            num = [f"{MF32} {vr(N,16)}, {vr(KVF + 4*k, 4)}, {vr(F + 4*k, 4)}, {'0' if k == 0 else vr(N,16)}" for k in range(4)]
            return den, num
        def fin(u):
            N, D = SETS[u % 2]
            a = [f"v_add_f32 v{D}, v{D}, v{D+1}", f"v_add_f32 v{D+2}, v{D+2}, v{D+3}", f"v_add_f32 v{D+4}, v{D+4}, v{D+5}", f"v_add_f32 v{D+6}, v{D+6}, v{D+7}",
                 f"v_add_f32 v{D}, v{D}, v{D+2}", f"v_add_f32 v{D+4}, v{D+4}, v{D+6}", f"v_add_f32 v{D}, v{D}, v{D+4}", f"v_add_f32 v{D}, 0x358637bd, v{D}",
                 f"v_rcp_f32 v{D}, v{D}"]
            b = [f"v_mul_f32 v{N+k}, v{N+k}, v{D}" for k in range(16)]
            b += [f"v_cvt_pk_bf16_f32 v{N+k}, v{N+2*k}, v{N+2*k+1}" for k in range(8)]
            b += [("vm", "pub2", f"buffer_store_dwordx4 {vr(N+4*j,4)}, {t0}, {srd(SRD_WS)}, s{S_T1} offen offset:{2048*(u%2) + 512*j} sc1") for j in range(2)]
            if u == 1: b.append(f"s_add_u32 s{S_T1}, s{S_T1}, 4096")
            return a, b
        d0, n0 = mm(0)
        for x in d0: A(x)
        A("s_waitcnt lgkmcnt(0)")
        for x in n0: A(x)
        for u in range(4):
            a, b = fin(u)
            if u < 3:
                d, n = mm(u + 1)
                self.interleave(a + b[:24], d + n, start=0, every=4)
                for x in b[24:]: em(x)
            else:
                for x in a + b: em(x)
        self.stamp("e3")
        r2 = self.wo_reads(1)
        h = o.get("r2split", 64)
        for x in r2[:h]: A(x)
        self.flag_store(self.f2w, ["pub2"])
        for x in r2[h:]: A(x)
        self.stamp("pub2")
        self.padspin("pub2")

    def gemm2(self):
        A = self.A; o = self.o; em = self.em
        L = f"v{V_LANE}"; t0, t1 = f"v{V_T}", f"v{V_T+1}"
        V_OD, V_OA, V_OUT, OF = V_WD, V_XA, V_WD + 1, 64
        NS = 10
        A(f"s_and_b32 s{S_T2}, s{S_XCD}, 3\ns_lshl_b32 s{S_T2}, s{S_T2}, 2\ns_and_b32 s3, s{S_J}, 3\ns_add_u32 s{S_T2}, s{S_T2}, s3")
        A(f"s_lshl_b32 s{S_T1}, s{S_B}, 4\ns_add_u32 s{S_T1}, s{S_T1}, s{S_T2}")
        A(f"s_lshl_b32 s{S_T0}, s{S_T1}, 8\ns_add_u32 s{S_T0}, s{S_T0}, {WS_F2}")
        A(f"s_lshl_b32 s{S_KX}, s{S_T1}, 18\ns_add_u32 s{S_KX}, s{S_KX}, {WS_O}")
        A(f"s_lshl_b32 s{S_MX}, s{S_W}, 12")
        A(f"v_lshlrev_b32 v{V_OA}, 4, {L}\nv_add_u32 v{V_OD}, s{S_MX}, v{V_OA}")
        A(f"v_add_u32 v{V_OA+1}, 0x10000, v{V_OA}\nv_add_u32 v{V_OA+2}, 0x20000, v{V_OA}")
        A(f"s_lshl_b32 s{S_KW}, s{S_T2}, 19\ns_lshl_b32 s3, s{S_B}, 11\ns_add_u32 s{S_KW}, s{S_KW}, s3")
        A(f"s_lshr_b32 s3, s{S_J}, 2\ns_lshl_b32 s3, s3, 8\ns_add_u32 s{S_KW}, s{S_KW}, s3\ns_lshl_b32 s3, s{S_W}, 6\ns_add_u32 s{S_KW}, s{S_KW}, s3")
        A(f"v_and_b32 {t0}, 15, {L}\nv_lshlrev_b32 {t0}, 12, {t0}\nv_bfe_u32 {t1}, {L}, 4, 1\nv_lshl_add_u32 {t0}, {t1}, 5, {t0}\nv_lshrrev_b32 {t1}, 5, {L}\nv_lshl_add_u32 v{V_OUT}, {t1}, 4, {t0}")
        A("s_waitcnt lgkmcnt(0)\ns_barrier")
        self.poll(f"s{S_T0}", 32)
        self.stamp("sync2")
        def dma(i):
            base = 16384 * (i % NS)
            out = [f"s_add_u32 m0, s{S_MX}, {base}" if base else f"s_mov_b32 m0, s{S_MX}"]
            out += [("vm", ("o", i), f"buffer_load_dwordx4 v{V_OD}, {srd(SRD_WS)}, s{S_KX} offen offset:{1024*k} sc1 lds") for k in range(4)]
            out.append(f"s_add_u32 s{S_KX}, s{S_KX}, 16384")
            return out
        def reads(gm):
            i, m = divmod(gm, 8)
            off = 16384 * (i % NS) + 1024 * m
            return [f"ds_read_b128 {vr(OF + 8*(gm%4) + 4*s, 4)}, v{V_OA + (off + 8192*s) // 65536} offset:{(off + 8192*s) % 65536}" for s in range(2)]
        def mf(i, m):
            out = []
            nbs = (0, 1) if m % 2 == 0 else (1, 0)
            for k, nb in enumerate(nbs):
                for q, s in enumerate((0, 1) if k == 0 else (1, 0)):
                    d = vr(8 * m + 4 * nb, 4)
                    out.append(f"{MF16} {d}, {ar(8*(2*i+s) + 4*nb, 4)}, {vr(OF + 8*((8*i+m)%4) + 4*s, 4)}, {'0' if i == 0 and q == 0 else d}")
            return out
        def fin(m):
            b = 8 * m
            return [f"v_cvt_pk_bf16_f32 v{b}, v{b}, v{b+1}", f"v_cvt_pk_bf16_f32 v{b+1}, v{b+2}, v{b+3}",
                    f"v_cvt_pk_bf16_f32 v{b+2}, v{b+4}, v{b+5}", f"v_cvt_pk_bf16_f32 v{b+3}, v{b+6}, v{b+7}",
                    f"v_permlane16_swap_b32 v{b}, v{b+2}", f"v_permlane16_swap_b32 v{b+1}, v{b+3}",
                    ("vm", "out", f"buffer_store_dwordx4 {vr(b,4)}, v{V_OUT}, {srd(SRD_OUT)}, s{S_KW} offen{o.get('outpol','')}"), f"s_add_u32 s{S_KW}, s{S_KW}, 0x10000"]
        npre = o.get("g2pre", 3)
        for i in range(npre):
            for x in dma(i): em(x)
        nxt = npre
        em(("wait", [("o", 0)], "")); A("s_barrier")
        self.stamp("o first")
        for gm in range(3):
            for r in reads(gm): A(r)
        rate = o.get("g2rate", 1.5)
        acc = 0.0
        for i in range(16):
            fill = [[] for _ in range(32)]
            pre = {0: "s_waitcnt lgkmcnt(4)", 4: "s_waitcnt lgkmcnt(4)", 8: "s_waitcnt lgkmcnt(4)", 12: "s_waitcnt lgkmcnt(4)", 16: "s_waitcnt lgkmcnt(4)", 20: "s_waitcnt lgkmcnt(0)"}
            for m in range(8):
                gm = 8 * i + m + 3
                if gm < 128:
                    for k, r in enumerate(reads(gm)): fill[4 * m + 1 + k].append(r)
            if i < 15:
                fill[20].insert(0, ("wait", [("o", i + 1)], "")); fill[20].insert(1, "s_barrier")
            acc += rate
            ops = []
            while acc >= 1 and nxt < 16 and (nxt - NS) < i:
                ops += dma(nxt); nxt += 1; acc -= 1
            slots = [g for g in range(0, 20) if len(fill[g]) == 0] + [g for g in range(0, 20) if len(fill[g]) == 1 and g + 1 not in pre]
            slots = sorted(slots[:max(len(ops), 0)])
            assert len(slots) >= len(ops)
            for g, x in zip(slots, ops): fill[g].append(x)
            if i == 15:
                for m in range(6):
                    ops = fin(m)
                    for k, x in enumerate(ops): fill[4 * (m + 2) + k // 2].append(x)
            g = 0
            for m in range(8):
                for x in mf(i, m):
                    if g in pre: A(pre[g])
                    A(x)
                    for y in fill[g]: em(y)
                    g += 1
        assert nxt == 16
        for m in (6, 7):
            for x in fin(m): em(x)
        self.stamp("g2end")
        self.padspin("end")

    def dump_acc(self):
        A = self.A
        A("s_nop 15")
        A(f"s_lshl_b32 s3, s2, 2\ns_add_u32 s3, s3, s{S_W}\ns_mul_i32 s3, s3, {192*256}\ns_add_u32 s3, s3, {WS_DUMP}")
        A(f"v_lshlrev_b32 v{V_T}, 2, v{V_LANE}")
        for r in range(192):
            A(f"buffer_store_dword v{r}, v{V_T}, {srd(SRD_WS)}, s3 offen offset:{(r%16)*256}")
            if r % 16 == 15: A("s_add_u32 s3, s3, 4096")

    def diag_out(self):
        if not self.o.get("diag"): return
        A = self.A
        A("s_waitcnt vmcnt(0)")
        self.stamp("end")
        A("s_memrealtime s[64:65]")
        A("s_waitcnt lgkmcnt(0)")
        A(f"s_lshl_b32 s3, s2, 2\ns_add_u32 s3, s3, s{S_W}\ns_lshl_b32 s3, s3, 7\ns_add_u32 s3, s3, {WS_DIAG}")
        vals = ["s100", "s64"] + [f"s{S_STAMP+2*k}" for k in range(self.nstamp)]
        A(f"v_mov_b32 v{V_T+1}, 0")
        for k, s in enumerate(vals):
            A(f"v_mov_b32 v{V_T}, {s}")
            A(f"buffer_store_dword v{V_T}, v{V_T+1}, {srd(SRD_WS)}, s3 offen offset:{4*k}")

    def body(self):
        self.e1(); self.e2(); self.e3(); self.gemm2()
    def code_pf(self):
        if not self.o.get("codepf", 1): return []
        return [("vm", "pf", f"buffer_load_dword v210, v{V_CP}, {srd(SRD_C)}, 0 offen ; nolint")]
    def hops(self):
        A = self.A
        if not self.o.get("hops", 1): return
        A("s_mov_b64 exec, 0")
        for w in range(3): A(f"s_cmp_eq_u32 s{S_W}, {w}\ns_cbranch_scc1 L_HOP{w}")
        A("s_branch L_HOP3\nL_HOPBACK:\ns_mov_b64 exec, -1\ns_branch L_MAIN\n.p2align 12\nL_MAIN:")
    def cold_code(self): pass
    def extra_after_w(self, i): return []
    def finish_pack(self, ops):
        for x in ops: self.A(x)
    def extra_pend(self, i): return []
    def extra_need(self, i): return []
    def extra_tail(self, i): return []
    def build(self):
        A = self.A
        self.prologue()
        self.phase1()
        if not self.o.get("p1only"):
            self.body()
        if self.o.get("dump"): self.dump_acc()
        self.diag_out()
        A("L_END:\ns_endpgm")
        self.cold_code()
        body, info = A.finish(verbose=self.o.get("verbose"))
        hdr = open("concat_heads__linear_kernel_hedgehog__linear_kernel_hedgehog__prompt.s.ref").read().split("; Override")[0]
        txt = hdr + f"""; @launch grid=(256,1,1) block=(256,1,1) lds={LDS_BYTES}
.amdgcn_target "amdgcn-amd-amdhsa--gfx950"
.text
.globl {KNAME}
.p2align 8
.type {KNAME},@function
{KNAME}:
{body}
.section .rodata,"a"
.p2align 6
.amdhsa_kernel {KNAME}
  .amdhsa_next_free_vgpr 512
  .amdhsa_next_free_sgpr 102
  .amdhsa_accum_offset 256
  .amdhsa_group_segment_fixed_size 0
  .amdhsa_kernarg_size 88
  .amdhsa_user_sgpr_count 2
  .amdhsa_user_sgpr_kernarg_segment_ptr 1
  .amdhsa_system_sgpr_workgroup_id_x 1
.end_amdhsa_kernel
"""
        return txt, info

def main(cls):
    out = sys.argv[1]
    opt = {}
    for a in sys.argv[2:]:
        k, v = a.split("=", 1)
        opt[k] = eval(v)
    g = cls(opt)
    txt, info = g.build()
    open(out, "w").write(txt)
    json.dump(dict(stamps=g.stamp_names, opt={k: str(v) for k, v in opt.items()}), open(out + ".json", "w"))
    print(out, info, len(g.stamp_names))

if __name__ == "__main__":
    main(Gen)
```
